```python
import torch

def _softmax(x, axis=-1):
    return torch.softmax(x, dim=axis)

def _gelu(x):
    return torch.nn.functional.gelu(x, approximate='tanh')

def _silu(x):
    return torch.nn.functional.silu(x)

def _sigmoid(x):
    return torch.sigmoid(x)

def _layernorm(x, axis=-1, eps=1e-05):
    m = x.mean(dim=axis, keepdim=True)
    v = x.var(dim=axis, keepdim=True, unbiased=False)
    return (x - m) / torch.sqrt(v + eps)

def _scatter_add(tgt, idx, src, axis=0):
    return tgt.clone().index_add_(axis, idx, src)

def _segment_sum(src, seg, n):
    out = torch.zeros((n,) + src.shape[1:], dtype=src.dtype)
    return out.index_add_(0, seg, src)

def _pad(x, pw):
    flat = tuple((v for pair in reversed(pw) for v in pair))
    return torch.nn.functional.pad(x, flat)
kernel_name = 'adaLN_cond__ssm_conv_h3__glu_gated_reglu__prompt'

def setup_inputs():

    _w = lambda a: (lambda t: t.to(torch.bfloat16) if t.is_floating_point() else t)(torch.as_tensor(a))

    def _A_setup():
        B, S, D = (1, 2048, 640)
        ks = 4
        return {'q': _w((lambda *s: torch.randn(*s, dtype=torch.bfloat16) * 0.05)(B, S, D)), 'k': _w((lambda *s: torch.randn(*s, dtype=torch.bfloat16) * 1.6)(B, S, D)), 'v': _w((lambda *s: torch.randn(*s, dtype=torch.bfloat16) * 1.6)(B, S, D)), 'shift_k': _w((lambda *s: torch.randn(*s, dtype=torch.bfloat16) * 1.6)(D, ks) * 0.5), 'ssm_k': _w((lambda *s: torch.randn(*s, dtype=torch.bfloat16) * 1.6)(D, S) * (1.0 / S ** 0.5)), 'ssm_D': _w((lambda *s: torch.randn(*s, dtype=torch.bfloat16) * 1.6)(D))}
    _A_in = _A_setup()

    def _B_setup():
        B, S, D, F = (1, 2048, 640, 1728)
        return {'x': _w((lambda *s: torch.randn(*s, dtype=torch.bfloat16) * 0.05)(B, S, D)), 'W_gate': _w((lambda *s: torch.randn(*s, dtype=torch.bfloat16) * 3.2)(D, F) * (2.0 / D) ** 0.5), 'W_up': _w((lambda *s: torch.randn(*s, dtype=torch.bfloat16) * 3.2)(D, F) * (2.0 / D) ** 0.5), 'W_down': _w((lambda *s: torch.randn(*s, dtype=torch.bfloat16) * 3.2)(F, D) * (1.0 / F) ** 0.5)}
    _B_in = _B_setup()
    return {'A_q': _A_in['q'], 'A_k': _A_in['k'], 'A_v': _A_in['v'], 'A_shift_k': _A_in['shift_k'], 'A_ssm_k': _A_in['ssm_k'], 'A_ssm_D': _A_in['ssm_D'], 'B_x': _B_in['x'], 'B_W_gate': _B_in['W_gate'], 'B_W_up': _B_in['W_up'], 'B_W_down': _B_in['W_down'], 'c': _w((lambda *s: torch.randn(*s, dtype=torch.bfloat16) * 0.1)(1, 640) * 8.0), 'w_mod': _w((lambda *s: torch.randn(*s, dtype=torch.bfloat16) * 0.1)(640, 6 * 640) * 640 ** (-0.5) * 8.0)}

def reference(A_q, A_k, A_v, A_shift_k, A_ssm_k, A_ssm_D, B_x, B_W_gate, B_W_up, B_W_down, c, w_mod):

    def _A_ref(q, k, v, shift_k, ssm_k, ssm_D):
        B, S, D = q.shape
        ks = shift_k.shape[-1]
        k_pad = _pad(k, ((0, 0), (ks - 1, 0), (0, 0)))
        k_shift = torch.zeros_like(k)
        for t in range(ks):
            k_shift = k_shift + k_pad[:, t:t + S, :] * shift_k[:, ks - 1 - t][None, None, :]
        kv = k_shift * v
        L = 2 * S
        kv_pad = _pad(kv, ((0, 0), (0, S), (0, 0)))
        kf_pad = _pad(ssm_k, ((0, 0), (0, S)))
        kv_f = (lambda x, axes=(-2, -1): torch.fft.rfft2(x.float(), dim=axes))(kv_pad[:, None, :, :], axes=(1, 2))
        kf_f = (lambda x, axes=(-2, -1): torch.fft.rfft2(x.float(), dim=axes))(kf_pad[:, None, :], axes=(1, 2))
        kf_f = (lambda x, *d: x.permute(*d))(kf_f, 1, 2, 0)
        y_f = kv_f * kf_f[None, :, :, :]
        y = (lambda x, s, axes=(-2, -1): torch.fft.irfft2(x, s=s, dim=axes).to(torch.bfloat16))(y_f, (1, L), axes=(1, 2))[:, 0, :S, :]
        y = y + kv * ssm_D[None, None, :]
        return q * y

    def _B_ref(x, W_gate, W_up, W_down):
        gate = torch.einsum('bsd,df->bsf', x, W_gate)
        up = torch.einsum('bsd,df->bsf', x, W_up)
        gate = gate * (lambda x, dt: x.to(dt))(gate > 0, gate.dtype)
        h = gate * up
        return torch.einsum('bsf,fd->bsd', h, W_down)
    x = A_q
    mod = (_silu(c) @ w_mod).reshape(c.shape[0], 6, 1, -1)
    sa, ca, ga, sb, cb, gb = (mod[:, 0].clone(), mod[:, 1].clone(), mod[:, 2].clone(), mod[:, 3].clone(), mod[:, 4].clone(), mod[:, 5].clone())
    h = _layernorm(x, axis=-1) * (1 + ca) + sa
    x = x + ga * _A_ref(h, A_k, A_v, A_shift_k, A_ssm_k, A_ssm_D)
    h = _layernorm(x, axis=-1) * (1 + cb) + sb
    x = x + gb * _B_ref(h, B_W_gate, B_W_up, B_W_down)
    return x
```

```python
import sys
NAME = "adaLN_cond__ssm_conv_h3__glu_gated_reglu__prompt"
S, D, F = 2048, 640, 1728
KA = dict(x=0, k=8, v=16, shift=24, ssm=32, ssmD=40, bx=48, wg=56, wu=64, wd=72, c=80, wmod=88, out=96, dbg=104, ws=112)
WS = {}
_off = 0
def alloc(name, n):
    global _off
    WS[name] = _off
    _off += (n + 4095) // 4096 * 4096
alloc("KV", 256 * 640 * 32)
alloc("XT", 256 * 640 * 16)
alloc("ST", 2 * 2048 * 4)
alloc("MODP", 4 * 3840 * 4)
alloc("X1T", 640 * 2048 * 2)
alloc("WP", 54 * 20 * 4096)
alloc("CSB", 4 * 1728 * 4)
alloc("GB", 640 * 4)
alloc("WD", 54 * 40 * 1024)
alloc("HH", 32 * 54 * 4096)
WS_END = _off

class A:
    def __init__(self):
        self.l = []
        self.n = 0
    def __call__(self, s):
        for x in s.strip("\n").split("\n"):
            x = x.strip()
            if x:
                self.l.append(("" if x.endswith(":") else "    ") + x)
    def label(self, p="L"):
        self.n += 1
        return f"{p}_{self.n}"
    def text(self):
        return "\n".join(self.l) + "\n"

def vr(b, n=1, p="v"):
    return f"{p}{b}" if n == 1 else f"{p}[{b}:{b+n-1}]"
def sr(b, n=1):
    return vr(b, n, "s")
def ar(b, n=1):
    return vr(b, n, "a")

def srd(a, dst, base, nbytes):
    a(f"""s_mov_b32 s{dst}, s{base}
    s_and_b32 s{dst+1}, s{base+1}, 0xffff
    s_mov_b32 s{dst+2}, {nbytes}
    s_mov_b32 s{dst+3}, 0x20000""")

def add64(a, dst, base, off):
    a(f"""s_add_u32 s{dst}, s{base}, {off}
    s_addc_u32 s{dst+1}, s{base+1}, 0""")

def kernel_begin(a, name):
    a(f""".globl {name}
    .p2align 8
    .type {name},@function
    {name}:""")

def kd(name, vgpr, accum, sgpr=102):
    return f""".amdhsa_kernel {name}
  .amdhsa_next_free_vgpr {vgpr}
  .amdhsa_next_free_sgpr {sgpr}
  .amdhsa_accum_offset {accum}
  .amdhsa_group_segment_fixed_size 0
  .amdhsa_kernarg_size 120
  .amdhsa_user_sgpr_count 2
  .amdhsa_user_sgpr_kernarg_segment_ptr 1
  .amdhsa_system_sgpr_workgroup_id_x 1
.end_amdhsa_kernel
"""

NT = " nt"

def gen_k0(a):
    kernel_begin(a, "k0_kernel")
    Lmod, Lend = a.label("k0_mod"), a.label("k0_end")
    a(f"""s_cmp_ge_u32 s2, 496
    s_cbranch_scc1 {Lend}
    s_cmp_ge_u32 s2, 256
    s_cbranch_scc1 {Lmod}
    s_load_dwordx4 s[4:7], s[0:1], {KA['x']}
    s_load_dwordx4 s[8:11], s[0:1], {KA['v']}
    s_load_dwordx2 s[12:13], s[0:1], {KA['ws']}
    s_mul_i32 s3, s2, {8*1280}
    v_lshlrev_b32 v1, 2, v0
    v_add_u32 v2, s3, v1
    v_add_u32 v1, {-4*1280 & 0xffffffff}, v2
    v_lshlrev_b32 v3, 4, v0
    s_movk_i32 s28, {3*1280}
    s_movk_i32 s29, {6*1280}
    s_waitcnt lgkmcnt(0)""")
    srd(a, 16, 6, S * D * 2)
    srd(a, 20, 8, S * D * 2)
    srd(a, 24, 4, S * D * 2)
    KR, VR, XR, SH = 8, 20, 30, 4
    def rowld(dst, srdb, row):
        if row < 0:
            a(f"buffer_load_dword v{dst}, v1, s[{srdb}:{srdb+3}], 0 offen offset:{(row+4)*1280}{NT}")
        else:
            so = ["0", "s28", "s29"][row // 3]
            a(f"buffer_load_dword v{dst}, v2, s[{srdb}:{srdb+3}], {so} offen offset:{(row%3)*1280}{NT}")
    a(f"global_load_dwordx4 v[{SH}:{SH+3}], v3, s[10:11]")
    for i in range(12): rowld(KR + i, 16, i - 4)
    for i in range(9): rowld(VR + i, 20, i - 1)
    for i in range(8): rowld(XR + i, 24, i)
    a(f"""s_sub_u32 s14, 255, s2
    s_mul_i32 s14, s14, {640*32}
    s_add_u32 s14, s14, {WS['KV']}""")
    add64(a, 30, 12, "s14")
    a(f"""s_mul_i32 s14, s2, {640*16}
    s_add_u32 s14, s14, {WS['XT']}""")
    add64(a, 32, 12, "s14")
    a(f"""s_mov_b32 s34, 0xffff0000
    s_mov_b32 s35, 0x05040100
    s_mov_b32 s36, 0x07060302
    s_mov_b32 s37, 0x3f803f80
    v_lshlrev_b32 v38, 6, v0
    v_lshlrev_b32 v39, 5, v0""")
    SP, KP, VP, KV = 40, 48, 72, 90
    a(f"s_waitcnt vmcnt(29)")
    a(f"""v_lshlrev_b32 v{SP+0}, 16, v{SH+0}
    v_lshlrev_b32 v{SP+1}, 16, v{SH+2}
    v_and_b32 v{SP+2}, s34, v{SH+0}
    v_and_b32 v{SP+3}, s34, v{SH+2}
    v_lshlrev_b32 v{SP+4}, 16, v{SH+1}
    v_lshlrev_b32 v{SP+5}, 16, v{SH+3}
    v_and_b32 v{SP+6}, s34, v{SH+1}
    v_and_b32 v{SP+7}, s34, v{SH+3}""")
    a(f"s_waitcnt vmcnt(17)")
    for i in range(12):
        a(f"v_lshlrev_b32 v{KP+2*i}, 16, v{KR+i}\nv_and_b32 v{KP+2*i+1}, s34, v{KR+i}")
    for r in range(9):
        i = r + 3
        a(f"v_pk_mul_f32 {vr(KV+2*r,2)}, {vr(KP+2*(i-3),2)}, {vr(SP+6,2)}")
    for j in (2, 1, 0):
        for r in range(9):
            i = r + 3
            a(f"v_pk_fma_f32 {vr(KV+2*r,2)}, {vr(KP+2*(i-j),2)}, {vr(SP+2*j,2)}, {vr(KV+2*r,2)}")
    a(f"s_waitcnt vmcnt(8)")
    for i in range(9):
        a(f"v_lshlrev_b32 v{VP+2*i}, 16, v{VR+i}\nv_and_b32 v{VP+2*i+1}, s34, v{VR+i}")
    for r in range(9):
        a(f"v_pk_mul_f32 {vr(KV+2*r,2)}, {vr(KV+2*r,2)}, {vr(VP+2*r,2)}")
    OUT = 48
    kvreg = lambda row, ch: KV + 2 * (row + 1) + ch
    for ch in range(2):
        for j in range(4):
            a(f"v_cvt_pk_bf16_f32 v{OUT+8*ch+j}, v{kvreg(7-2*j,ch)}, v{kvreg(6-2*j,ch)}")
        for j in range(4):
            a(f"v_cvt_pk_bf16_f32 v{OUT+8*ch+4+j}, v{kvreg(6-2*j,ch)}, v{kvreg(5-2*j,ch)}")
    for i in range(4):
        a(f"global_store_dwordx4 v38, {vr(OUT+4*i,4)}, s[30:31] offset:{16*i}")
    a(f"s_waitcnt vmcnt(4)")
    XO = 64
    for j in range(4):
        a(f"v_perm_b32 v{XO+j}, v{XR+2*j+1}, v{XR+2*j}, s35")
        a(f"v_perm_b32 v{XO+4+j}, v{XR+2*j+1}, v{XR+2*j}, s36")
    for i in range(2):
        a(f"global_store_dwordx4 v39, {vr(XO+4*i,4)}, s[32:33] offset:{16*i}")
    S1, S2 = 72, 80
    for r in range(8):
        a(f"v_dot2_f32_bf16 v{S1+r}, v{XR+r}, s37, 0")
        a(f"v_dot2_f32_bf16 v{S2+r}, v{XR+r}, v{XR+r}, 0")
    a("s_nop 2")
    for r in range(8):
        a(f"v_permlane32_swap_b32 v{S1+r}, v{S2+r}")
    a("s_nop 0")
    for r in range(8):
        a(f"v_add_f32 v{S1+r}, v{S1+r}, v{S2+r}")
    a("s_nop 0")
    for r in range(4):
        a(f"v_permlane16_swap_b32 v{S1+r}, v{S1+4+r}")
    a("s_nop 0")
    for r in range(4):
        a(f"v_add_f32 v{S1+r}, v{S1+r}, v{S1+4+r}")
    for rot in (8, 4, 2, 1):
        for r in range(4):
            a(f"v_add_f32_dpp v{S1+r}, v{S1+r}, v{S1+r} row_ror:{rot} row_mask:0xf bank_mask:0xf")
    a(f"""v_and_b32 v1, 15, v0
    v_cmp_eq_u32 vcc, 0, v1
    s_and_saveexec_b64 s[14:15], vcc
    ds_write_b128 v0, {vr(S1,4)}
    s_mov_b64 exec, s[14:15]
    s_waitcnt lgkmcnt(0)
    s_barrier
    v_cmp_gt_u32 vcc, 8, v0
    s_and_saveexec_b64 s[14:15], vcc
    s_cbranch_execz {Lend}
    v_lshlrev_b32 v1, 2, v0""")
    for w in range(5):
        a(f"ds_read2_b32 {vr(40+2*w,2)}, v1 offset0:{16*w} offset1:{16*w+8}")
    a(f"""s_lshl_b32 s14, s2, 5
    s_add_u32 s14, s14, {WS['ST']}""")
    add64(a, 30, 12, "s14")
    add64(a, 32, 30, 8192)
    a(f"""s_waitcnt lgkmcnt(0)
    v_pk_add_f32 v[40:41], v[40:41], v[42:43]
    v_pk_add_f32 v[44:45], v[44:45], v[46:47]
    v_pk_add_f32 v[40:41], v[40:41], v[48:49]
    v_pk_add_f32 v[40:41], v[40:41], v[44:45]
    v_mul_f32 v40, {1.0/640:#.9g}, v40
    v_mul_f32 v41, {1.0/640:#.9g}, v41
    v_fma_f32 v41, -v40, v40, v41
    v_max_f32 v41, 0, v41
    v_add_f32 v41, 0x3727c5ac, v41
    v_rsq_f32 v41, v41
    s_nop 0
    v_mul_f32 v40, v40, v41
    v_sub_f32 v40, 0, v40
    global_store_dword v1, v41, s[30:31]
    global_store_dword v1, v40, s[32:33]
    s_endpgm""")
    a(f"""{Lmod}:
    s_load_dwordx4 s[4:7], s[0:1], {KA['c']}
    s_load_dwordx2 s[12:13], s[0:1], {KA['ws']}
    s_sub_u32 s3, s2, 256
    s_and_b32 s8, s3, 3
    s_lshr_b32 s9, s3, 2
    v_lshrrev_b32 v1, 3, v0
    v_and_b32 v2, 7, v0
    v_mul_u32_u24 v3, {4*7680}, v1
    v_lshl_add_u32 v3, v2, 4, v3
    v_lshlrev_b32 v4, 3, v1
    s_mul_i32 s10, s8, {160*7680}
    s_lshl_b32 s11, s9, 7
    s_add_u32 s10, s10, s11
    s_mul_i32 s11, s8, 320
    s_waitcnt lgkmcnt(0)""")
    add64(a, 6, 6, "s10")
    add64(a, 4, 4, "s11")
    a(f"global_load_dwordx2 v[6:7], v4, s[4:5]")
    for i in range(4):
        a(f"global_load_dwordx4 {vr(8+4*i,4)}, v3, s[6:7]{NT}")
        if i < 3: add64(a, 6, 6, 7680)
    a(f"""s_mov_b32 s34, 0xffff0000
    s_waitcnt vmcnt(4)
    v_lshlrev_b32 v24, 16, v6
    v_and_b32 v25, s34, v6
    v_lshlrev_b32 v26, 16, v7
    v_and_b32 v27, s34, v7""")
    for i in range(4): a(f"v_mul_f32 v{28+i}, 0xbfb8aa3b, v{24+i}")
    for i in range(4): a(f"v_exp_f32 v{28+i}, v{28+i}")
    for i in range(4): a(f"v_add_f32 v{28+i}, 1.0, v{28+i}")
    for i in range(4): a(f"v_rcp_f32 v{28+i}, v{28+i}")
    for i in range(4): a(f"v_mul_f32 v{24+i}, v{24+i}, v{28+i}")
    a(f"""v_cvt_pk_bf16_f32 v6, v24, v25
    v_cvt_pk_bf16_f32 v7, v26, v27
    v_lshlrev_b32 v24, 16, v6
    v_and_b32 v26, s34, v6
    v_lshlrev_b32 v28, 16, v7
    v_and_b32 v30, s34, v7""")
    ACC, T = 32, 40
    for i in range(4):
        a(f"s_waitcnt vmcnt({3-i})")
        for j in range(4):
            a(f"v_lshlrev_b32 v{T+2*j}, 16, v{8+4*i+j}\nv_and_b32 v{T+2*j+1}, s34, v{8+4*i+j}")
        for j in range(4):
            if i == 0:
                a(f"v_pk_mul_f32 {vr(ACC+2*j,2)}, {vr(T+2*j,2)}, {vr(24,2)} op_sel_hi:[1,0]")
            else:
                a(f"v_pk_fma_f32 {vr(ACC+2*j,2)}, {vr(T+2*j,2)}, {vr(24+2*i,2)}, {vr(ACC+2*j,2)} op_sel_hi:[1,0,1]")
    a("s_nop 1")
    for j in range(4): a(f"v_permlane32_swap_b32 v{ACC+j}, v{ACC+4+j}")
    a("s_nop 0")
    for j in range(4): a(f"v_add_f32 v{ACC+j}, v{ACC+j}, v{ACC+4+j}")
    a("s_nop 1")
    for j in range(2): a(f"v_permlane16_swap_b32 v{ACC+j}, v{ACC+2+j}")
    a("s_nop 0")
    for j in range(2): a(f"v_add_f32 v{ACC+j}, v{ACC+j}, v{ACC+2+j}")
    a("s_nop 1")
    for j in range(2): a(f"v_add_f32_dpp v{ACC+j}, v{ACC+j}, v{ACC+j} row_ror:8 row_mask:0xf bank_mask:0xf")
    a(f"""v_lshrrev_b32 v1, 6, v0
    v_lshlrev_b32 v1, 8, v1
    v_lshl_add_u32 v1, v2, 5, v1
    v_bfe_u32 v3, v0, 4, 2
    v_lshl_add_u32 v1, v3, 3, v1
    ds_write_b64 v1, {vr(ACC,2)}
    s_waitcnt lgkmcnt(0)
    s_barrier
    v_cmp_gt_u32 vcc, 64, v0
    s_and_saveexec_b64 s[14:15], vcc
    s_cbranch_execz {Lend}
    v_lshlrev_b32 v1, 2, v0
    ds_read2st64_b32 v[40:41], v1 offset0:0 offset1:1
    ds_read2st64_b32 v[42:43], v1 offset0:2 offset1:3
    ds_read_b32 v44, v1 offset:1024
    s_mul_i32 s10, s8, {3840*4}
    s_lshl_b32 s11, s9, 8
    s_add_u32 s10, s10, s11
    s_add_u32 s10, s10, {WS['MODP']}""")
    add64(a, 12, 12, "s10")
    a(f"""s_waitcnt lgkmcnt(0)
    v_add_f32 v40, v40, v41
    v_add_f32 v42, v42, v43
    v_add_f32 v40, v40, v44
    v_add_f32 v40, v40, v42
    global_store_dword v1, v40, s[12:13]
    {Lend}:
    s_endpgm""")
    return ("k0_kernel", (496, 1, 1), (320, 1, 1), 2048, kd("k0_kernel", 108, 108))

def build(gens):
    a = A()
    hdr = open("cdna_kernels/" + NAME + ".s.ref").read().split("; Override launch")[0]
    infos = []
    a('.amdgcn_target "amdgcn-amd-amdhsa--gfx950"\n.text')
    for g in gens:
        infos.append(g(a))
    lines = "".join(f"; @launch kernel={n} grid=({g[0]},{g[1]},{g[2]}) block=({b[0]},{b[1]},{b[2]}) lds={l}\n" for n, g, b, l, _ in infos)
    kds = '.section .rodata,"a"\n' + "".join(".p2align 6\n" + k for *_, k in infos)
    return hdr + lines + a.text() + kds

if __name__ == "__main__":
    import gen_rest
    out = sys.argv[1] if len(sys.argv) > 1 else "k.s"
    open(out, "w").write(build([gen_k0] + gen_rest.GENS))
```

```python
import sys, os
NAME = "adaLN_cond__ssm_conv_h3__glu_gated_reglu__prompt"
KNAME = NAME + "_kernel"
S, D, F = 2048, 640, 1728
KA = dict(x=0, k=8, v=16, shift=24, ssm=32, ssmD=40, bx=48, wg=56, wu=64, wd=72, c=80, wmod=88, out=96, dbg=104, ws=112)
WS = {}
_off = 0
def alloc(name, n):
    global _off
    WS[name] = _off
    _off += (n + 4095) // 4096 * 4096
alloc("FL", 4 * 256 * 128)
alloc("KVT", 640 * 4096 + 4096)
alloc("XTT", 640 * 4096)
alloc("ST", 2 * 2048 * 4)
alloc("MODP", 4 * 3840 * 4)
alloc("X1T", 640 * 4096)
alloc("WP", 54 * 20 * 4096)
alloc("CSB", 4 * 1728 * 4)
alloc("GB", 640 * 4)
alloc("WD", 54 * 40 * 1024)
alloc("HH", 32 * 54 * 4096)
DIAG = bool(int(os.environ.get("DIAG", "0")))
EXP = os.environ.get("EXP", "").split(",")
TS_OFF = 64 << 20
NSTAMP = 20
NT = " nt"
SC = " sc1"
INV640 = f"{1.0/640:#.9g}"

class A:
    def __init__(self):
        self.l = []; self.n = 0
    def __call__(self, s):
        for x in s.strip("\n").split("\n"):
            x = x.strip()
            if x: self.l.append(("" if x.endswith(":") else "    ") + x)
    def label(self, p="L"):
        self.n += 1
        return f"{p}_{self.n}"
    def stamp(self, i):
        if DIAG: self(f"s_memrealtime s[76:77]\ns_waitcnt lgkmcnt(0)\ns_mov_b32 s{48+i}, s76")
    def text(self): return "\n".join(self.l) + "\n"

def vr(b, n=1, p="v"): return f"{p}{b}" if n == 1 else f"{p}[{b}:{b+n-1}]"
def ar(b, n=1): return vr(b, n, "a")
def srd(a, dst, base, nbytes):
    a(f"s_mov_b32 s{dst}, s{base}\ns_and_b32 s{dst+1}, s{base+1}, 0xffff\ns_mov_b32 s{dst+2}, {nbytes}\ns_mov_b32 s{dst+3}, 0x20000")
def add64(a, dst, base, off):
    a(f"s_add_u32 s{dst}, s{base}, {off}\ns_addc_u32 s{dst+1}, s{base+1}, 0")
def dma(a, voff, sbase, m0, extra=""):
    a(f"s_mov_b32 m0, {m0}\ns_nop 0\nglobal_load_lds_dwordx4 v{voff}, s[{sbase}:{sbase+1}]{extra}")
def rbf16(a, dst, src):
    a(f"v_cvt_pk_bf16_f32 v{dst}, v{src}, v{src}\nv_lshlrev_b32 v{dst}, 16, v{dst}")

def get_tag(a, vt):
    L, Ld = a.label("tag"), a.label("tagd")
    a(f"""s_mov_b32 s74, 0x100000
    v_mov_b32 v{vt+2}, 0
    {L}:
    global_load_dwordx2 {vr(vt,2)}, v{vt+2}, s[72:73]{SC}
    s_waitcnt vmcnt(0)
    v_readfirstlane_b32 s70, v{vt}
    v_readfirstlane_b32 s71, v{vt+1}
    s_sub_u32 s74, s74, 1
    s_cbranch_scc1 {Ld}
    s_cmp_eq_u64 s[70:71], 0
    s_cbranch_scc1 {L}
    {Ld}:""")

def publish(a, phase, vt):
    L = a.label("pub")
    a(f"""s_waitcnt vmcnt(0)
    s_barrier
    s_cmp_lg_u32 s3, 0
    s_cbranch_scc1 {L}
    s_lshl_b32 s74, s2, 7
    s_add_u32 s74, s74, {WS['FL'] + phase*256*128}
    v_mov_b32 v{vt+2}, s74
    v_mov_b32 v{vt}, s70
    v_mov_b32 v{vt+1}, s71
    s_mov_b64 exec, 1
    global_store_dwordx2 v{vt+2}, {vr(vt,2)}, s[12:13]{SC}
    s_mov_b64 exec, -1
    {L}:""")

def poll(a, phase, first, count, vt, idxreg=None):
    L, Ld = a.label("poll"), a.label("polld")
    if idxreg is None:
        a(f"v_add_u32 v{vt+2}, {first}, v0")
        idxreg = vt + 2
    a(f"""v_lshlrev_b32 v{vt+2}, 7, v{idxreg}
    v_add_u32 v{vt+2}, {WS['FL'] + phase*256*128}, v{vt+2}
    s_mov_b32 s74, 0x100000""")
    if count < 64: a(f"s_mov_b64 exec, {(1 << count) - 1:#x}" if count <= 31 else f"s_mov_b32 exec_hi, {(1 << (count - 32)) - 1:#x}")
    a(f"""{L}:
    global_load_dwordx2 {vr(vt,2)}, v{vt+2}, s[12:13]{SC}
    s_waitcnt vmcnt(0)
    v_cmp_ne_u64 vcc, s[70:71], {vr(vt,2)}
    s_and_b64 exec, exec, vcc
    s_cbranch_execz {Ld}
    s_sleep 1
    s_sub_u32 s74, s74, 1
    s_cbranch_scc0 {L}
    {Ld}:
    s_mov_b64 exec, -1""")

def xtile_tr_addrs(a, dst, base_sgpr=None):
    a("""v_lshrrev_b32 v2, 2, v0
    v_and_b32 v3, 7, v2
    v_lshlrev_b32 v3, 1, v3
    v_bfe_u32 v4, v0, 1, 1
    v_or_b32 v3, v3, v4
    v_lshlrev_b32 v2, 8, v2
    v_and_b32 v4, 1, v0
    v_lshl_add_u32 v2, v4, 3, v2""")
    if base_sgpr is not None: a(f"v_add_u32 v2, s{base_sgpr}, v2")
    for m in range(8): a(f"v_xor_b32 v4, {2*m}, v3\nv_lshl_add_u32 v{dst+m}, v4, 4, v2")

def stats_issue(a, R, sx):
    a(f"""s_lshl_b32 s14, s2, 2
    s_add_u32 s14, s14, s3
    s_mul_i32 s14, s14, 2560
    v_lshrrev_b32 v{R+10}, 5, v0
    v_mul_u32_u24 v{R+10}, {1280-256}, v{R+10}
    v_lshl_add_u32 v{R+10}, v0, 3, v{R+10}""")
    add64(a, 14, sx, "s14")
    for i in range(5): a(f"global_load_dwordx2 {vr(R+2*i,2)}, v{R+10}, s[14:15] offset:{256*i}")
def stats_compute(a, R):
    s1, s2 = R + 10, R + 11
    a("s_mov_b32 s14, 0x3f803f80")
    for i in range(10):
        a(f"v_dot2_f32_bf16 v{s1}, v{R+i}, s14, {'0' if i == 0 else f'v{s1}'}")
        a(f"v_dot2_f32_bf16 v{s2}, v{R+i}, v{R+i}, {'0' if i == 0 else f'v{s2}'}")
    a(f"s_nop 2\nv_permlane16_swap_b32 v{s1}, v{s2}\ns_nop 0\nv_add_f32 v{s1}, v{s1}, v{s2}")
    for rot in (8, 4, 2, 1):
        a(f"s_nop 1\nv_add_f32_dpp v{s1}, v{s1}, v{s1} row_ror:{rot} row_mask:0xf bank_mask:0xf")
    a(f"""v_mul_f32 v{s1}, {INV640}, v{s1}
    v_mov_b32 v{s2}, v{s1}
    s_nop 1
    v_permlane16_swap_b32 v{s1}, v{s2}
    s_nop 0
    v_fma_f32 v{s2}, -v{s1}, v{s1}, v{s2}
    v_max_f32 v{s2}, 0, v{s2}
    v_add_f32 v{s2}, 0x3727c5ac, v{s2}
    v_rsq_f32 v{s2}, v{s2}
    s_lshl_b32 s14, s2, 2
    s_add_u32 s14, s14, s3
    s_lshl_b32 s14, s14, 3
    s_add_u32 s14, s14, {WS['ST']}
    v_mul_f32 v{s1}, -v{s1}, v{s2}
    v_lshrrev_b32 v{R}, 3, v0
    v_add_u32 v{R}, s14, v{R}
    v_add_u32 v{R+1}, 8192, v{R}
    s_mov_b32 exec_lo, 1
    s_mov_b32 exec_hi, 1
    global_store_dword v{R}, v{s2}, s[12:13]{SC}
    global_store_dword v{R+1}, v{s1}, s[12:13]{SC}
    s_mov_b64 exec, -1""")

def mod_issue(a, R, su, sc, sw):
    a(f"""s_and_b32 s16, s{su}, 3
    s_mul_i32 s17, s16, 160
    s_lshl_b32 s14, s3, 3
    s_add_u32 s17, s17, s14
    v_lshrrev_b32 v{R+25}, 3, v0
    v_add_u32 v{R+25}, s17, v{R+25}
    v_lshlrev_b32 v{R+26}, 1, v{R+25}""")
    for i in range(5): a(f"global_load_ushort v{R+20+i}, v{R+26}, s[{sc}:{sc+1}] offset:{64*i}")
    a(f"""v_mul_u32_u24 v{R+25}, 7680, v{R+25}
    v_and_b32 v{R+26}, 7, v0
    v_lshl_add_u32 v{R+25}, v{R+26}, 4, v{R+25}
    s_lshr_b32 s16, s{su}, 2
    s_lshl_b32 s16, s16, 7""")
    add64(a, 14, sw, "s16")
    for i in range(5):
        a(f"global_load_dwordx4 {vr(R+4*i,4)}, v{R+25}, s[14:15]{NT}")
        if i < 4: add64(a, 14, 14, 32 * 7680)
def mod_compute(a, R, T, ldsoff):
    SV, ACC, U = T, T + 10, T + 18
    for i in range(5): a(f"v_lshlrev_b32 v{R+20+i}, 16, v{R+20+i}")
    for i in range(5): a(f"v_mul_f32 v{SV+2*i}, 0xbfb8aa3b, v{R+20+i}")
    for i in range(5): a(f"v_exp_f32 v{SV+2*i}, v{SV+2*i}")
    for i in range(5): a(f"v_add_f32 v{SV+2*i}, 1.0, v{SV+2*i}")
    for i in range(5): a(f"v_rcp_f32 v{SV+2*i}, v{SV+2*i}")
    for i in range(5): a(f"v_mul_f32 v{SV+2*i}, v{R+20+i}, v{SV+2*i}")
    for i in range(5): rbf16(a, SV + 2 * i, SV + 2 * i)
    for i in range(5):
        for j in range(4): a(f"v_lshlrev_b32 v{U+2*j}, 16, v{R+4*i+j}\nv_and_b32 v{U+2*j+1}, s69, v{R+4*i+j}")
        for j in range(4):
            if i == 0: a(f"v_pk_mul_f32 {vr(ACC+2*j,2)}, {vr(U+2*j,2)}, {vr(SV,2)} op_sel_hi:[1,0]")
            else: a(f"v_pk_fma_f32 {vr(ACC+2*j,2)}, {vr(U+2*j,2)}, {vr(SV+2*i,2)}, {vr(ACC+2*j,2)} op_sel_hi:[1,0,1]")
    a("s_nop 1")
    for j in range(4): a(f"v_permlane32_swap_b32 v{ACC+j}, v{ACC+4+j}")
    a("s_nop 0")
    for j in range(4): a(f"v_add_f32 v{ACC+j}, v{ACC+j}, v{ACC+4+j}")
    a("s_nop 1")
    for j in range(2): a(f"v_permlane16_swap_b32 v{ACC+j}, v{ACC+2+j}")
    a("s_nop 0")
    for j in range(2): a(f"v_add_f32 v{ACC+j}, v{ACC+j}, v{ACC+2+j}")
    a("s_nop 1")
    for j in range(2): a(f"v_add_f32_dpp v{ACC+j}, v{ACC+j}, v{ACC+j} row_ror:8 row_mask:0xf bank_mask:0xf")
    a(f"""s_lshl_b32 s14, s3, 8
    s_add_u32 s14, s14, {ldsoff}
    v_and_b32 v{U}, 7, v0
    v_lshrrev_b32 v{U+1}, 4, v0
    v_lshlrev_b32 v{U}, 5, v{U}
    v_lshl_add_u32 v{U}, v{U+1}, 3, v{U}
    v_add_u32 v{U}, s14, v{U}
    ds_write_b64 v{U}, {vr(ACC,2)}""")
def mod_final(a, su, T, ldsoff):
    a(f"""v_lshlrev_b32 v{T}, 2, v0
    v_add_u32 v{T+1}, {ldsoff}, v{T}
    ds_read2st64_b32 {vr(T+2,2)}, v{T+1} offset0:0 offset1:1
    ds_read2st64_b32 {vr(T+4,2)}, v{T+1} offset0:2 offset1:3
    s_and_b32 s14, s{su}, 3
    s_mul_i32 s14, s14, {3840*4}
    s_lshr_b32 s15, s{su}, 2
    s_lshl_b32 s15, s15, 8
    s_add_u32 s14, s14, s15
    s_add_u32 s14, s14, {WS['MODP']}
    v_add_u32 v{T}, s14, v{T}
    s_waitcnt lgkmcnt(0)
    v_pk_add_f32 {vr(T+2,2)}, {vr(T+2,2)}, {vr(T+4,2)}
    s_nop 0
    v_add_f32 v{T+2}, v{T+2}, v{T+3}
    global_store_dword v{T}, v{T+2}, s[12:13]{SC}""")

RW = 4608 + 4160 * 2
OF, OE, OO = 512, 4608, 4608 + 4160
KB = 68096; VB = KB + 17 * 1040; XB = VB + 16 * 1040; MRED = XB + 16 * 1040
LDS_BYTES = 122880

def phase_conv(a, Lg1):
    a(f"""s_load_dwordx4 s[4:7], s[0:1], {KA['x']}
    s_load_dwordx4 s[8:11], s[0:1], {KA['v']}
    s_load_dwordx4 s[36:39], s[0:1], {KA['ssm']}
    s_load_dwordx4 s[40:43], s[0:1], {KA['c']}
    s_lshr_b32 s44, s2, 4
    s_and_b32 s45, s2, 15
    v_lshrrev_b32 v4, 3, v0
    v_and_b32 v5, 7, v0
    v_mul_u32_u24 v2, 1280, v4
    v_lshl_add_u32 v2, v5, 4, v2
    s_lshl_b32 s14, s45, 4
    s_add_u32 s14, s14, s3
    s_mul_i32 s14, s14, {8*1280}
    s_lshl_b32 s15, s44, 7
    s_add_u32 s14, s14, s15
    v_add_u32 v2, s14, v2
    v_add_u32 v3, {(-8*1280) & 0xffffffff}, v2
    s_lshl_b32 s14, s3, 3
    v_add_u32 v6, s14, v4
    s_lshl_b32 s14, s44, 9
    v_lshl_add_u32 v7, v6, 4, s14
    s_mul_i32 s28, s3, 1040
    s_mov_b32 s29, {32*1280}
    s_mov_b32 s30, {64*1280}
    s_mov_b32 s31, {96*1280}
    s_waitcnt lgkmcnt(0)""")
    srd(a, 16, 6, S * D * 2); srd(a, 20, 8, S * D * 2); srd(a, 24, 4, S * D * 2)
    Lh = a.label("nohalo")
    a(f"""s_cmp_lg_u32 s3, 0
    s_cbranch_scc1 {Lh}
    s_mov_b32 m0, {KB}
    s_nop 0
    buffer_load_dwordx4 v3, s[16:19], 0 offen{NT} lds
    {Lh}:""")
    SH = 8
    a(f"global_load_dwordx4 {vr(SH,4)}, v7, s[10:11]")
    so = ["0", "s29", "s30", "s31"]
    def tile_dma(base, srdb):
        for i in range(4):
            a(f"s_add_u32 m0, s28, {base + 4*1040*i}\ns_nop 0\nbuffer_load_dwordx4 v2, s[{srdb}:{srdb+3}], {so[i]} offen{NT} lds")
    tile_dma(KB + 1040, 16); tile_dma(VB, 20)
    tile_dma(XB, 24)
    a(f"""s_add_u32 s46, s2, 80
    s_cmp_lt_u32 s2, 120
    s_cselect_b32 s46, s2, s46""")
    MR, SR = 160, 188
    mod_issue(a, MR, 46, 40, 42)
    stats_issue(a, SR, 4)
    NSIDE = 4 + 10 + 5
    a(f"""v_mul_u32_u24 v12, 1040, v5
    v_lshl_add_u32 v12, v6, 2, v12
    v_add_u32 v12, {KB}, v12
    v_lshlrev_b32 v13, 13, v6
    v_lshl_add_u32 v14, v5, 4, v13
    v_xor_b32 v3, 7, v5
    v_lshl_add_u32 v13, v3, 4, v13
    s_lshl_b32 s14, s44, 18
    s_lshl_b32 s15, s45, 8
    s_sub_u32 s32, s14, s15
    s_add_u32 s32, s32, {WS['KVT'] + 4096 + 240*16}
    s_add_u32 s34, s14, s15
    s_add_u32 s34, s34, {WS['XTT'] + 4096}""")
    add64(a, 32, 12, "s32"); add64(a, 34, 12, "s34")
    a.stamp(1)
    a(f"s_waitcnt vmcnt({NSIDE})\ns_barrier")
    a.stamp(2)
    SP, KR, VR_, KP, VP, KV, OUT = 16, 24, 46, 62, 84, 100, 116
    def rdk(h, lo, hi):
        for i in range(lo, hi):
            off = 8320 * h + (640 + 128 * i if i < 3 else 1040 + 128 * (i - 3))
            a(f"ds_read_b32 v{KR+11*h+i}, v12 offset:{off}")
    def rdv(h, lo, hi, base=VB, dst=VR_):
        for i in range(lo, hi): a(f"ds_read_b32 v{dst+8*h+i}, v12 offset:{base-KB + 8320*h + 128*i}")
    rdk(0, 0, 11); rdv(0, 0, 4)
    a(f"""v_lshlrev_b32 v{SP+0}, 16, v{SH+0}
    v_lshlrev_b32 v{SP+1}, 16, v{SH+2}
    v_and_b32 v{SP+2}, s69, v{SH+0}
    v_and_b32 v{SP+3}, s69, v{SH+2}
    v_lshlrev_b32 v{SP+4}, 16, v{SH+1}
    v_lshlrev_b32 v{SP+5}, 16, v{SH+3}
    v_and_b32 v{SP+6}, s69, v{SH+1}
    v_and_b32 v{SP+7}, s69, v{SH+3}""")
    def ks(h):
        for i in range(11): a(f"v_lshlrev_b32 v{KP+2*i}, 16, v{KR+11*h+i}\nv_and_b32 v{KP+2*i+1}, s69, v{KR+11*h+i}")
        for r in range(8): a(f"v_pk_mul_f32 {vr(KV+2*r,2)}, {vr(KP+2*r,2)}, {vr(SP+6,2)}")
        for j in (2, 1, 0):
            for r in range(8): a(f"v_pk_fma_f32 {vr(KV+2*r,2)}, {vr(KP+2*(r+3-j),2)}, {vr(SP+2*j,2)}, {vr(KV+2*r,2)}")
    def kvs(h):
        for i in range(8): a(f"v_lshlrev_b32 v{VP+2*i}, 16, v{VR_+8*h+i}\nv_and_b32 v{VP+2*i+1}, s69, v{VR_+8*h+i}")
        for r in range(8): a(f"v_pk_mul_f32 {vr(KV+2*r,2)}, {vr(KV+2*r,2)}, {vr(VP+2*r,2)}")
        for ch in range(2):
            o = OUT + 8 * h + 4 * ch
            for j in range(4): a(f"v_cvt_pk_bf16_f32 v{o+j}, v{KV+2*(7-2*j)+ch}, v{KV+2*(6-2*j)+ch}")
            a(f"global_store_dwordx4 v13, {vr(o,4)}, s[32:33] offset:{-4096*(1-ch) + 128*(1-h)}{SC}")
    a("s_waitcnt lgkmcnt(4)"); rdv(0, 4, 8); rdk(1, 0, 7)
    ks(0)
    a("s_waitcnt lgkmcnt(7)"); rdk(1, 7, 11); rdv(1, 0, 4)
    kvs(0)
    a("s_waitcnt lgkmcnt(4)"); rdv(1, 4, 8)
    ks(1)
    a("s_waitcnt lgkmcnt(0)")
    kvs(1)
    a.stamp(3)
    get_tag(a, 16)
    publish(a, 0, 16)
    a.stamp(4)
    a(f"""s_lshl_b32 s8, s2, 2
    s_add_u32 s8, s8, s3
    s_mul_i32 s9, s3, {RW}
    s_add_u32 s9, s9, 16384
    s_lshl_b32 s10, s8, 12
    v_lshlrev_b32 v2, 4, v0
    s_add_u32 s11, s9, {OF}""")
    add64(a, 36, 36, "s10")
    for i in range(4): dma(a, 2, 36, "s11", f" offset:{1024*i}{NT}")
    rdv(0, 0, 8, XB, 24); rdv(1, 0, 7, XB, 24)
    a("s_mov_b32 s14, 0x05040100\ns_mov_b32 s15, 0x07060302")
    for h in range(2):
        a(f"s_waitcnt lgkmcnt({7 if h == 0 else 0})")
        if h == 0: rdv(1, 7, 8, XB, 24)
        for ch in range(2):
            o = 40 + 8 * h + 4 * ch
            for j in range(4): a(f"v_perm_b32 v{o+j}, v{24+8*h+2*j+1}, v{24+8*h+2*j}, s{14+ch}")
            a(f"global_store_dwordx4 v14, {vr(o,4)}, s[34:35] offset:{-4096*(1-ch) + 128*h}{SC}")
    mod_compute(a, MR, 60, MRED)
    stats_compute(a, SR)
    a(f"""v_and_b32 v4, 15, v0
    v_lshrrev_b32 v5, 4, v0
    v_mov_b32 v8, 0
    v_mov_b32 v9, 0
    v_lshl_add_u32 v6, v0, 3, s9
    ds_write_b64 v6, v[8:9]
    v_lshl_add_u32 v6, v4, 2, s9
    ds_write_b32 v6, v8 offset:{OE+4096}
    ds_write_b32 v6, v8 offset:{OO+4096}
    s_waitcnt lgkmcnt(0)
    s_barrier""")
    Lnf = a.label("nofin")
    a(f"s_cmp_lg_u32 s3, 3\ns_cbranch_scc1 {Lnf}")
    mod_final(a, 46, 60, MRED)
    a(f"{Lnf}:")
    a.stamp(5)
    a("s_and_b32 s14, s2, 0xf0")
    poll(a, 0, "s14", 16, 16)
    a.stamp(6)
    a(f"s_add_u32 s10, s10, {WS['KVT']}\ns_add_u32 s11, s9, {OE}")
    add64(a, 14, 12, "s10")
    KO = 176
    for i in range(4):
        a(f"global_load_dwordx4 {vr(KO+6*i,4)}, v2, s[14:15] offset:{1024*i}{SC}")
        a(f"global_load_dword v{KO+6*i+4}, v2, s[14:15] offset:{1024*i+16}{SC}")
    for i in range(4): dma(a, 2, 14, "s11", f" offset:{1024*i}{SC}")
    RA, RB = 10, 14
    a(f"""v_and_b32 v6, 1, v4
    v_xor_b32 v6, 1, v6
    v_mul_u32_u24 v6, {4160-2}, v6
    v_lshl_add_u32 v6, v5, 4, v6
    v_lshlrev_b32 v7, 1, v4
    v_sub_u32 v6, v6, v7
    v_add_u32 v6, s9, v6""")
    for q2 in range(4): a(f"v_add_u32 v{RA+q2}, {OE + 2*2031 - 512*(2*q2+1) - 64}, v6")
    a(f"""v_lshlrev_b32 v6, 5, v4
    v_lshl_add_u32 v6, v5, 4, v6
    v_add_u32 v6, s9, v6
    v_add_u32 v{RB}, {OF - 32 - 64}, v6
    v_add_u32 v3, s9, v2
    v_cmp_eq_u32 vcc, 63, v0""")
    ACC, FA, FB = 16, 48, 112
    for i in range(32): a(f"v_mov_b32 v{ACC+i}, 0")
    for i in range(4):
        a(f"s_waitcnt vmcnt({10-2*i})")
        if i == 3: a(f"v_cndmask_b32 v{KO+6*i+4}, v{KO+6*i+4}, v8, vcc")
        for j in range(4): a(f"v_alignbit_b32 v{KO+6*i+j}, v{KO+6*i+j+1}, v{KO+6*i+j}, 16")
        a(f"ds_write_b128 v3, {vr(KO+6*i,4)} offset:{OO+1024*i}")
    def reads(buf, teven):
        r = []; to = 16 if teven else 0
        for q in range(8):
            r.append(f"ds_read_b128 {vr(FB+32*buf+4*q,4)}, v{RB} offset:{512*q + 4*to}")
            o = to + (0 if q & 1 else 128)
            r.append(f"ds_read2_b32 {vr(FA+32*buf+4*q,2)}, v{RA+q//2} offset0:{o} offset1:{o+1}")
            r.append(f"ds_read2_b32 {vr(FA+32*buf+4*q+2,2)}, v{RA+q//2} offset0:{o+2} offset1:{o+3}")
        return r
    def step(buf, extra):
        extra = list(extra)
        for q in range(8):
            for n in range(q, 8):
                a(f"v_mfma_f32_16x16x32_bf16 {vr(ACC+4*n,4)}, {vr(FA+32*buf+4*q,4)}, {vr(FB+32*buf+4*(n-q),4)}, {vr(ACC+4*n,4)}")
                if extra: a(extra.pop(0))
        assert not extra
        a("s_waitcnt lgkmcnt(0)")
    a("s_waitcnt vmcnt(0) lgkmcnt(0)")
    for r in reads(0, True): a(r)
    publish(a, 1, 176)
    a.stamp(7)
    Lloop, Lnh = a.label("cloop"), a.label("nohook")
    a(f"s_mov_b32 s33, 0\ns_waitcnt lgkmcnt(0)\n{Lloop}:")
    XR = 200
    a(f"s_cmp_lg_u32 s33, 3\ns_cbranch_scc1 {Lnh}")
    a("s_lshl_b32 s14, s3, 6")
    poll(a, 1, "s14", 64, 176)
    a(f"""s_barrier
    s_lshl_b32 s16, s3, 12
    s_add_u32 s17, s16, {WS['ST']}""")
    add64(a, 14, 12, "s17")
    for i in range(4): dma(a, 2, 14, "s16", f" offset:{1024*i}{SC}")
    a(f"""v_lshlrev_b32 v15, 5, v4
    v_lshl_add_u32 v15, v5, 3, v15
    s_lshl_b32 s17, s8, 12
    s_add_u32 s17, s17, {WS['XTT']}""")
    add64(a, 14, 12, "s17")
    for n in range(8): a(f"global_load_dwordx2 {vr(XR+2*n,2)}, v15, s[14:15] offset:{512*n}{SC}")
    a(f"""v_and_b32 v176, 3, v0
    v_bfe_u32 v177, v0, 2, 2
    v_mul_u32_u24 v176, 15360, v176
    v_mul_u32_u24 v177, 2560, v177
    s_lshl_b32 s17, s8, 2
    s_add_u32 s17, s17, {WS['MODP']}
    v_add3_u32 v176, v176, v177, s17
    global_load_dword v178, v176, s[12:13]{SC}
    s_lshl_b32 s17, s8, 1
    v_mov_b32 v177, s17
    global_load_ushort v179, v177, s[38:39]
    {Lnh}:""")
    step(0, reads(1, False) + [f"v_subrev_u32 v{RA+i}, 128, v{RA+i}" for i in range(5)])
    step(1, reads(0, True) + ["s_add_u32 s33, s33, 1", "s_cmp_lt_u32 s33, 4"])
    a(f"s_cbranch_scc1 {Lloop}")
    a.stamp(8)
    P, Q, DD = 2, 6, 8
    a(f"""s_waitcnt vmcnt(0)
    s_barrier
    v_sub_u32 v11, s9, v15
    v_add_u32 v11, {OE + 4088 - 512*7}, v11
    v_lshlrev_b32 v12, 1, v15""")
    KVR, SA, SB, T = 48, 64, 96, 128
    for n in range(4):
        a(f"ds_read_b64 {vr(KVR+2*n,2)}, v11 offset:{512*(7-n)}")
        a(f"ds_read_b128 {vr(SA+4*n,4)}, v12 offset:{1024*n}")
        a(f"ds_read_b128 {vr(SB+4*n,4)}, v12 offset:{8192+1024*n}")
    a(f"""v_add_f32_dpp v178, v178, v178 quad_perm:[1,0,3,2] row_mask:0xf bank_mask:0xf
    v_lshlrev_b32 v{DD}, 16, v179
    s_nop 0
    v_add_f32_dpp v178, v178, v178 quad_perm:[2,3,0,1] row_mask:0xf bank_mask:0xf""")
    rbf16(a, 178, 178)
    a(f"""s_nop 0
    v_readlane_b32 s20, v178, 0
    v_readlane_b32 s21, v178, 4
    v_readlane_b32 s22, v178, 8
    s_lshl_b32 s17, s8, 12
    s_add_u32 s17, s17, {WS['X1T']}
    v_add_f32 v177, s21, 1.0""")
    rbf16(a, 177, 177)
    a(f"""v_mul_f32 v{P}, s22, v177
    v_mov_b32 v{Q}, s22
    v_mul_f32 v{Q}, s20, v{Q}""")
    add64(a, 14, 12, "s17")
    a(f"""v_lshlrev_b32 v10, 5, v4
    v_lshrrev_b32 v13, 1, v5
    v_lshl_add_u32 v10, v13, 4, v10
    v_and_b32 v13, 1, v5
    v_lshl_add_u32 v10, v13, 9, v10""")
    for n in range(8):
        if n == 0:
            a("s_waitcnt lgkmcnt(0)")
            for m in range(4, 8):
                a(f"ds_read_b64 {vr(KVR+2*m,2)}, v11 offset:{512*(7-m)}")
                a(f"ds_read_b128 {vr(SA+4*m,4)}, v12 offset:{1024*m}")
                a(f"ds_read_b128 {vr(SB+4*m,4)}, v12 offset:{8192+1024*m}")
        if n == 4: a("s_waitcnt lgkmcnt(0)")
        t = T + 8 * (n & 1)
        a(f"""v_lshlrev_b32 v{t}, 16, v{XR+2*n}
        v_and_b32 v{t+1}, s69, v{XR+2*n}
        v_lshlrev_b32 v{t+2}, 16, v{XR+2*n+1}
        v_and_b32 v{t+3}, s69, v{XR+2*n+1}
        v_and_b32 v{t+4}, s69, v{KVR+2*n+1}
        v_lshlrev_b32 v{t+5}, 16, v{KVR+2*n+1}
        v_and_b32 v{t+6}, s69, v{KVR+2*n}
        v_lshlrev_b32 v{t+7}, 16, v{KVR+2*n}""")
        for h in range(2):
            a(f"v_pk_fma_f32 {vr(SA+4*n+2*h,2)}, {vr(t+2*h,2)}, {vr(SA+4*n+2*h,2)}, {vr(SB+4*n+2*h,2)}")
            a(f"v_pk_fma_f32 {vr(ACC+4*n+2*h,2)}, {vr(t+4+2*h,2)}, {vr(DD,2)}, {vr(ACC+4*n+2*h,2)} op_sel_hi:[1,0,1]")
        for h in range(2): a(f"v_pk_fma_f32 {vr(SA+4*n+2*h,2)}, {vr(SA+4*n+2*h,2)}, {vr(P,2)}, {vr(Q,2)} op_sel_hi:[1,0,0]")
        for h in range(2): a(f"v_pk_fma_f32 {vr(t+2*h,2)}, {vr(SA+4*n+2*h,2)}, {vr(ACC+4*n+2*h,2)}, {vr(t+2*h,2)}")
        o = 144 + 4 * (n >> 1) + 2 * (n & 1)
        a(f"v_cvt_pk_bf16_f32 v{o}, v{t}, v{t+1}\nv_cvt_pk_bf16_f32 v{o+1}, v{t+2}, v{t+3}")
        if n & 1:
            o -= 2
            a(f"""s_nop 1
            v_permlane16_swap_b32 v{o}, v{o+2}
            v_permlane16_swap_b32 v{o+1}, v{o+3}
            global_store_dwordx4 v10, {vr(o,4)}, s[14:15] offset:{512*(n-1)}{SC}""")
    a.stamp(9)
    publish(a, 2, 16)
    a(f"s_branch {Lg1}")

def phase_aux(a, Lg1):
    Lwd = a.label("aux_wd")
    a(f"""s_load_dwordx2 s[4:5], s[0:1], {KA['x']}
    s_load_dwordx4 s[36:39], s[0:1], {KA['wg']}
    s_load_dwordx2 s[6:7], s[0:1], {KA['wd']}
    s_load_dwordx4 s[40:43], s[0:1], {KA['c']}
    s_sub_u32 s8, s2, 160
    s_cmp_ge_u32 s8, 54
    s_cbranch_scc1 {Lwd}
    s_cmp_ge_u32 s8, 27
    s_cselect_b32 s9, 1, 0
    s_mul_i32 s10, s9, 27
    s_sub_u32 s10, s8, s10""")
    C1, SBT, RED = 81920, 84480, 85760
    SR = 188
    a(f"""v_lshrrev_b32 v2, 3, v0
    v_bfe_u32 v3, v0, 4, 2
    v_lshlrev_b32 v3, 1, v3
    v_and_b32 v4, 7, v0
    v_xor_b32 v3, v3, v4
    v_mul_u32_u24 v2, 3456, v2
    v_lshl_add_u32 v2, v3, 4, v2
    s_lshl_b32 s11, s10, 7
    s_mul_i32 s16, s3, {32*3456}
    s_add_u32 s11, s11, s16
    s_waitcnt lgkmcnt(0)
    s_cmp_eq_u32 s9, 1
    s_cselect_b32 s36, s38, s36
    s_cselect_b32 s37, s39, s37""")
    add64(a, 36, 36, "s11")
    stats_issue(a, SR, 4)
    a(f"s_mul_i32 s16, s3, {5*4096}")
    for io in range(5):
        for u in range(4):
            dma(a, 2, 36, "s16", NT)
            a("s_add_u32 s16, s16, 1024")
            if io < 4 or u < 3: add64(a, 36, 36, 8 * 3456 if u < 3 else (128 - 24) * 3456)
    a("s_waitcnt vmcnt(20)")
    stats_compute(a, SR)
    a.stamp(3)
    get_tag(a, 16)
    publish(a, 1, 16)
    a.stamp(4)
    poll(a, 1, 214, 40, 16)
    a.stamp(6)
    a(f"""s_lshl_b32 s14, s3, 6
    v_add_u32 v5, s14, v0
    v_min_u32 v5, 159, v5
    v_lshlrev_b32 v6, 4, v5""")
    add64(a, 14, 12, WS['MODP'] + 3 * 2560)
    MP = 16
    for p in range(4):
        for idx in range(2): a(f"global_load_dwordx4 {vr(MP+16*idx+4*p,4)}, v6, s[14:15] offset:{2560*idx}{SC}")
        if p < 3: add64(a, 14, 14, 15360)
    TA = 10
    a(f"""v_lshrrev_b32 v2, 2, v0
    v_bfe_u32 v3, v0, 3, 2
    v_and_b32 v4, 3, v0
    v_lshlrev_b32 v2, 7, v2
    v_lshl_add_u32 v2, v4, 3, v2
    s_mul_i32 s16, s3, {5*4096}
    v_add_u32 v2, s16, v2""")
    for T_ in range(4): a(f"v_xor_b32 v4, {T_}, v3\nv_lshl_add_u32 v{TA+T_}, v4, 5, v2")
    a(f"""v_lshrrev_b32 v2, 4, v0
    s_lshl_b32 s16, s3, 7
    s_add_u32 s16, s16, {C1}
    v_lshl_add_u32 v14, v2, 4, s16
    s_lshl_b32 s16, s3, 6
    s_add_u32 s16, s16, {SBT}
    v_lshl_add_u32 v15, v2, 3, s16
    v_lshlrev_b32 v9, 4, v0
    s_mul_i32 s16, s10, {2*20*4096}
    s_lshl_b32 s17, s3, 12
    s_add_u32 s16, s16, s17
    s_lshl_b32 s17, s9, 10
    s_add_u32 s16, s16, s17
    s_add_u32 s16, s16, {WS['WP']}""")
    add64(a, 14, 12, "s16"); add64(a, 18, 14, 20 * 4096)
    a("s_waitcnt vmcnt(0)")
    for idx in range(2):
        b = MP + 16 * idx
        for h in range(2):
            a(f"v_pk_add_f32 {vr(b+2*h,2)}, {vr(b+2*h,2)}, {vr(b+4+2*h,2)}")
            a(f"v_pk_add_f32 {vr(b+8+2*h,2)}, {vr(b+8+2*h,2)}, {vr(b+12+2*h,2)}")
        for h in range(2): a(f"v_pk_add_f32 {vr(b+2*h,2)}, {vr(b+2*h,2)}, {vr(b+8+2*h,2)}")
    a(f"""v_cvt_pk_bf16_f32 v{MP+4}, v{MP}, v{MP+1}
    v_cvt_pk_bf16_f32 v{MP+5}, v{MP+2}, v{MP+3}
    v_lshlrev_b32 v7, 3, v5
    v_add_u32 v8, {SBT}, v7
    ds_write_b64 v8, {vr(MP+4,2)}""")
    for i in range(4):
        rbf16(a, MP + 16 + i, MP + 16 + i)
        a(f"v_add_f32 v{MP+16+i}, 1.0, v{MP+16+i}")
        rbf16(a, MP + 16 + i, MP + 16 + i)
    a(f"v_add_u32 v8, {C1}, v6\nds_write_b128 v8, {vr(MP+16,4)}")
    CS, BI, CC, SS, RAW, U = 136, 140, 24, 16, 36, 52
    for i in range(8): a(f"v_mov_b32 v{CS+i}, 0")
    a("s_mov_b32 s35, 0x3f803f80\ns_waitcnt lgkmcnt(0)\ns_barrier")
    for io in range(5):
        for hf in range(2):
            a(f"ds_read_b128 {vr(CC+4*hf,4)}, v14 offset:{512*io+64*hf}")
            a(f"ds_read_b64 {vr(SS+2*hf,2)}, v15 offset:{256*io+32*hf}")
        for T_ in range(4):
            for hf in range(2): a(f"ds_read_b64_tr_b16 {vr(RAW+4*T_+2*hf,2)}, v{TA+T_} offset:{4096*io+2048*hf}")
        for T_ in range(4):
            a(f"s_waitcnt lgkmcnt({6-2*T_})")
            u = U + 12 * (T_ & 1)
            for j in range(4):
                a(f"v_lshlrev_b32 v{u+2*j}, 16, v{RAW+4*T_+j}\nv_and_b32 v{u+2*j+1}, s69, v{RAW+4*T_+j}")
                a(f"v_dot2_f32_bf16 v{BI+T_}, v{RAW+4*T_+j}, v{SS+j}, v{BI+T_}")
            for j in range(4): a(f"v_pk_mul_f32 {vr(u+2*j,2)}, {vr(u+2*j,2)}, {vr(CC+2*j,2)}")
            o = 100 + 4 * T_ + 16 * (io & 1)
            for j in range(4): a(f"v_cvt_pk_bf16_f32 v{o+j}, v{u+2*j}, v{u+2*j+1}")
            for j in range(4): a(f"v_dot2_f32_bf16 v{CS+T_}, v{o+j}, s35, v{CS+T_}")
            sb_ = 14 if T_ < 2 else 18
            a(f"global_store_dwordx4 v9, {vr(o,4)}, s[{sb_}:{sb_+1}] offset:{2048*(T_&1)}{SC}")
        if io < 4: add64(a, 14, 14, 4 * 4096); add64(a, 18, 18, 4 * 4096)
    a("s_nop 2")
    for T_ in range(4): a(f"v_permlane32_swap_b32 v{CS+T_}, v{BI+T_}")
    a("s_nop 0")
    for T_ in range(4): a(f"v_add_f32 v{CS+T_}, v{CS+T_}, v{BI+T_}")
    a("s_nop 1")
    for T_ in range(2): a(f"v_permlane16_swap_b32 v{CS+T_}, v{CS+2+T_}")
    a("s_nop 0")
    for T_ in range(2): a(f"v_add_f32 v{CS+T_}, v{CS+T_}, v{CS+2+T_}")
    Lsk = a.label("aux_sk")
    a(f"""v_lshrrev_b32 v2, 4, v0
    v_and_b32 v3, 15, v0
    v_lshlrev_b32 v2, 7, v2
    v_lshl_add_u32 v2, v3, 2, v2
    s_lshl_b32 s16, s3, 9
    s_add_u32 s16, s16, {RED}
    v_add_u32 v2, s16, v2
    ds_write2_b32 v2, v{CS}, v{CS+1} offset0:0 offset1:16
    s_waitcnt lgkmcnt(0)
    s_barrier
    s_cmp_ge_u32 s3, 2
    s_cbranch_scc1 {Lsk}
    s_lshl_b32 s16, s3, 8
    s_add_u32 s16, s16, {RED}
    v_lshlrev_b32 v3, 2, v0
    v_add_u32 v2, s16, v3
    ds_read2st64_b32 v[4:5], v2 offset0:0 offset1:2
    ds_read2st64_b32 v[6:7], v2 offset0:4 offset1:6
    s_lshl_b32 s16, s9, 1
    s_add_u32 s16, s16, s3
    s_mul_i32 s16, s16, {1728*4}
    s_lshl_b32 s17, s10, 8
    s_add_u32 s16, s16, s17
    s_add_u32 s16, s16, {WS['CSB']}""")
    add64(a, 14, 12, "s16")
    a(f"""s_waitcnt lgkmcnt(0)
    v_add_f32 v4, v4, v5
    v_add_f32 v6, v6, v7
    v_add_f32 v4, v4, v6
    global_store_dword v3, v4, s[14:15]{SC}
    {Lsk}:""")
    a.stamp(9)
    publish(a, 2, 16)
    a(f"s_branch {Lg1}")

    a(f"""{Lwd}:
    s_sub_u32 s8, s8, 54
    s_min_u32 s46, s8, 39
    s_lshl_b32 s46, s46, 1
    s_add_u32 s46, s46, 120
    s_add_u32 s47, s46, 1
    s_waitcnt lgkmcnt(0)""")
    M0, M1, SR = 100, 128, 188
    mod_issue(a, M0, 46, 40, 42); mod_issue(a, M1, 47, 40, 42)
    stats_issue(a, SR, 4)
    a("s_waitcnt vmcnt(15)")
    mod_compute(a, M0, 60, 65536)
    a("s_waitcnt vmcnt(5)")
    mod_compute(a, M1, 60, 65536 + 1024)
    L0, L1 = a.label("aux_f0"), a.label("aux_f1")
    a(f"""s_waitcnt lgkmcnt(0)
    s_barrier
    s_cmp_ge_u32 s8, 40
    s_cbranch_scc1 {L1}
    s_cmp_lg_u32 s3, 0
    s_cbranch_scc1 {L0}""")
    mod_final(a, 46, 60, 65536)
    a(f"{L0}:\ns_cmp_lg_u32 s3, 1\ns_cbranch_scc1 {L1}")
    mod_final(a, 47, 60, 65536 + 1024)
    a(f"{L1}:\ns_waitcnt vmcnt(0)")
    stats_compute(a, SR)
    a.stamp(3)
    get_tag(a, 16)
    publish(a, 1, 16)
    a.stamp(4)
    Lgb, Ldone = a.label("aux_gb"), a.label("aux_done")
    a(f"""s_cmp_eq_u32 s8, 41
    s_cbranch_scc1 {Lgb}
    s_lshl_b32 s8, s8, 2
    s_add_u32 s8, s8, s3
    s_cmp_ge_u32 s8, 135
    s_cbranch_scc1 {Ldone}
    s_lshl_b32 s8, s8, 1
    v_lshrrev_b32 v2, 4, v0
    v_and_b32 v3, 15, v0
    v_lshlrev_b32 v4, 1, v2
    v_xor_b32 v4, v4, v3
    v_mul_u32_u24 v2, 1280, v2
    v_lshl_add_u32 v5, v4, 4, v2
    v_xor_b32 v4, 8, v4
    v_lshl_add_u32 v6, v4, 4, v2
    v_add_u32 v6, {4*1280}, v6
    s_lshl_b32 s16, s3, 14""")
    for un in range(2):
        a(f"""s_add_u32 s9, s8, {un}
        s_mul_i32 s10, s9, 52429
        s_lshr_b32 s10, s10, 18
        s_mul_i32 s11, s10, 5
        s_sub_u32 s11, s9, s11
        s_mul_i32 s17, s10, {32*1280}
        s_lshl_b32 s18, s11, 8
        s_add_u32 s17, s17, s18""")
        add64(a, 4, 6, "s17")
        a(f"s_lshl_b32 s17, s9, 13\ns_add_u32 s17, s17, {WS['WD']}")
        add64(a, 20 + 2 * un, 12, "s17")
        for u in range(8):
            dma(a, 5 + (u & 1), 4, "s16", NT)
            a("s_add_u32 s16, s16, 1024")
            if u & 1 and u < 7: add64(a, 4, 4, 8 * 1280)
    a("s_lshl_b32 s16, s3, 14")
    xtile_tr_addrs(a, 10, 16)
    a("v_lshlrev_b32 v9, 4, v0")
    for un in range(2):
        a("s_waitcnt vmcnt(8)")
        for dt in range(8):
            for hf in range(2): a(f"ds_read_b64_tr_b16 {vr(32+32*un+4*dt+2*hf,2)}, v{10+dt} offset:{8192*un+4096*hf}")
            if dt == 3: a("s_waitcnt lgkmcnt(0)")
        add64(a, 24, 20 + 2 * un, 4096)
        for dt in range(8):
            if dt == 4: a("s_waitcnt lgkmcnt(0)")
            sb_ = 20 + 2 * un if dt < 4 else 24
            a(f"global_store_dwordx4 v9, {vr(32+32*un+4*dt,4)}, s[{sb_}:{sb_+1}] offset:{1024*(dt&3)}{SC}")
    a(f"s_branch {Ldone}\n{Lgb}:")
    poll(a, 1, 120, 40, 16)
    a(f"""s_lshl_b32 s14, s3, 6
    v_add_u32 v5, s14, v0
    v_min_u32 v5, 159, v5
    v_lshlrev_b32 v6, 4, v5""")
    add64(a, 14, 12, WS['MODP'] + 5 * 2560)
    for p in range(4):
        a(f"global_load_dwordx4 {vr(16+4*p,4)}, v6, s[14:15]{SC}")
        if p < 3: add64(a, 14, 14, 15360)
    add64(a, 14, 12, WS['GB'])
    a("s_waitcnt vmcnt(0)")
    for h in range(2):
        a(f"v_pk_add_f32 {vr(16+2*h,2)}, {vr(16+2*h,2)}, {vr(20+2*h,2)}")
        a(f"v_pk_add_f32 {vr(24+2*h,2)}, {vr(24+2*h,2)}, {vr(28+2*h,2)}")
    for h in range(2): a(f"v_pk_add_f32 {vr(16+2*h,2)}, {vr(16+2*h,2)}, {vr(24+2*h,2)}")
    for i in range(4): rbf16(a, 16 + i, 16 + i)
    a(f"global_store_dwordx4 v6, v[16:19], s[14:15]{SC}\n{Ldone}:")
    a.stamp(9)
    publish(a, 2, 20)

NWD1 = int(os.environ.get("NWD1", "30"))
NWD2 = int(os.environ.get("NWD2", "20"))
def wd_reg(i):
    order = list(range(64, 256, 4)) + list(range(0, 64, 4))
    return ar(order[i], 4) if i < 64 else vr(232 + 4 * (i - 64), 4)
def wd_load(i):
    st, d = divmod(i, 5)
    pre = f"s_add_u32 s47, s46, {st*4*40960}\n" if d == 0 or True else ""
    return pre + f"buffer_load_dwordx4 {wd_reg(i)}, v{9 if d < 4 else 8}, s[40:43], s47 offen offset:{1024*(d&3)}{SC}"

def phase_g1(a):
    Lw3, Lepi3, Lg2 = a.label("g1_w3"), a.label("g1_epi3"), a.label("g2")
    a.stamp(10)
    a(f"""s_lshr_b32 s4, s2, 3
    s_bfe_u32 s5, s2, 0x10002
    s_lshl_b32 s5, s5, 3
    s_and_b32 s6, s4, 7
    s_add_u32 s5, s5, s6
    s_and_b32 s6, s2, 3
    s_lshl_b32 s6, s6, 2
    s_lshr_b32 s4, s4, 3
    s_add_u32 s6, s6, s4
    s_mul_i32 s7, s6, 3
    s_add_u32 s7, s7, s3
    s_min_u32 s8, s6, 11
    s_lshr_b32 s9, s8, 1
    s_add_u32 s9, s9, 48
    s_and_b32 s8, s8, 1
    s_cmp_eq_u32 s3, 3
    s_cselect_b32 s7, s9, s7
    s_cselect_b32 s8, s8, 0
    v_lshrrev_b32 v2, 4, v0
    v_and_b32 v3, 15, v0
    v_lshlrev_b32 v4, 1, v2
    v_xor_b32 v4, v4, v3
    v_lshlrev_b32 v2, 12, v2
    s_lshl_b32 s9, s3, 15
    s_lshl_b32 s10, s5, 8
    s_add_u32 s9, s9, s10
    v_add_u32 v2, s9, v2
    v_lshl_add_u32 v5, v4, 4, v2
    v_xor_b32 v4, 8, v4
    v_lshl_add_u32 v6, v4, 4, v2
    v_add_u32 v6, {4*4096}, v6
    v_lshlrev_b32 v9, 4, v0
    v_add_u32 v8, 4096, v9
    s_mul_i32 s9, s7, {20*4096}
    s_add_u32 s9, s9, {WS['WP']}""")
    add64(a, 14, 12, WS['X1T']); srd(a, 16, 14, 640 * 4096)
    add64(a, 14, 12, "s9"); srd(a, 20, 14, 20 * 4096)
    a(f"""s_lshr_b32 s4, s2, 3
    s_bfe_u32 s44, s2, 0x20001
    s_lshl_b32 s44, s44, 3
    s_and_b32 s45, s4, 7
    s_add_u32 s44, s44, s45
    s_and_b32 s45, s2, 1
    s_lshl_b32 s45, s45, 2
    s_lshr_b32 s4, s4, 3
    s_add_u32 s45, s45, s4
    s_mul_i32 s9, s45, 5120
    s_add_u32 s10, s9, {WS['WD']}""")
    add64(a, 14, 12, "s10"); srd(a, 40, 14, 0)
    a(f"""s_sub_u32 s42, {54*40960}, s9
    s_mul_i32 s46, s3, 40960
    s_lshl_b32 s24, s8, 11
    s_mov_b32 s25, 0
    s_lshl_b32 s26, s3, 11""")
    def xd():
        return ["s_mov_b32 m0, s26", f"buffer_load_dwordx4 v5, s[16:19], s25 offen{SC} lds",
                "s_add_u32 m0, s26, 1024", f"buffer_load_dwordx4 v6, s[16:19], s25 offen{SC} lds",
                "s_add_u32 s25, s25, 0x20000", "s_add_u32 s26, s26, 8192", "s_and_b32 s26, s26, 0xffff"]
    def emit_xd():
        l = xd(); a("\n".join([l[0], "s_nop 0", l[1], l[2], "s_nop 0"] + l[3:]))
    def wl(buf, nfr):
        return [f"buffer_load_dwordx4 {ar(16*buf+4*f,4)}, v9, s[20:23], s24 offen offset:{1024*f}{SC}" for f in range(nfr)] + ["s_add_u32 s24, s24, 4096"]
    ACC, XF, TA, CB = 128, 64, 10, 20
    xtile_tr_addrs(a, TA)
    for i in range(128): a(f"v_mov_b32 v{ACC+i}, 0")
    for i in range(4): a(f"v_mov_b32 v{56+i}, 0x3f803f80")
    a(f"""s_lshr_b32 s9, s7, 1
    s_add_u32 s9, s9, 160
    v_mul_u32_u24 v60, 27, v0
    v_add_u32 v60, s9, v60""")
    poll(a, 2, None, 2, 60 - 2, idxreg=60) if False else poll(a, 2, None, 2, 52, idxreg=60)
    a.stamp(11)
    a(f"""v_lshrrev_b32 v2, 4, v0
    v_lshlrev_b32 v2, 4, v2
    s_lshl_b32 s9, s7, 7
    s_lshl_b32 s10, s8, 6
    s_add_u32 s9, s9, s10
    s_add_u32 s9, s9, {WS['CSB']}""")
    add64(a, 14, 12, "s9")
    def trreads(buf, slot):
        return [f"ds_read_b64_tr_b16 {vr(XF+32*buf+4*m+2*hf,2)}, v{TA+m} offset:{8192*slot+4096*hf}" for m in range(8) for hf in range(2)]
    def body(nfr, w3):
        for mt_ in range(4):
            for h in range(nfr // 2): a(f"global_load_dwordx4 {vr(CB+16*h+4*mt_,4)}, v2, s[14:15] offset:{64*h}{SC}")
            if mt_ < 3: add64(a, 14, 14, 1728 * 4)
        for j in range(3): a("\n".join(wl(j, nfr)))
        a("s_lshl_b32 s9, s3, 6")
        poll(a, 2, "s9", 64, 52)
        a("s_barrier")
        a.stamp(12)
        for j in range(4): emit_xd()
        a("s_waitcnt vmcnt(6)\ns_barrier")
        for r in trreads(0, 0): a(r)
        per = nfr + 2
        Lloop = a.label("g1_loop")
        def kstep(st, vm, loopctl, tail):
            a(f"s_waitcnt vmcnt({vm})\ns_barrier")
            slots = [[] for _ in range(32)]
            t0 = 0
            if st == 3 and not tail:
                for m in range(8): slots[m // 4].append(f"v_xor_b32 v{TA+m}, 0x8000, v{TA+m}")
                t0 = 2
            if not (tail and st == 3):
                for i, e in enumerate(trreads((st + 1) & 1, (st + 1) & 3)): slots[t0 + i].append(e)
            mem = []
            if not tail: mem = wl((st + 3) & 3, nfr) + xd()
            elif st == 0: mem = wl(3, nfr)
            mem += loopctl
            for i, e in enumerate(mem): slots[min(31, 18 + i)].append(e)
            if tail and st >= 1:
                n = NWD1 // 3
                for i in range(n): slots[(i * 32) // n].append(wd_load((st - 1) * n + i))
            k = 0
            for m in range(8):
                for f in range(4):
                    xb = vr(XF + 32 * (st & 1) + 4 * m, 4)
                    A_ = vr(56, 4) if (w3 and f == 2) else xb if (w3 and f == 3) else ar(16 * st + 4 * f, 4)
                    d = vr(ACC + 32 * f + 4 * m, 4)
                    a(f"v_mfma_f32_16x16x32_bf16 {d}, {A_}, {xb}, {d}")
                    for e in slots[k]: a(e)
                    k += 1
            a("s_waitcnt lgkmcnt(0)")
        a(f"s_mov_b32 s27, 0\ns_waitcnt vmcnt(0) lgkmcnt(0)")
        a.stamp(13)
        a(f"{Lloop}:")
        for st in range(4): kstep(st, 2 * per, ["s_add_u32 s27, s27, 1", "s_cmp_lt_u32 s27, 4"] if st == 3 else [], False)
        a(f"s_cbranch_scc1 {Lloop}")
        n = NWD1 // 3
        kstep(0, 2 * per, [], True)
        kstep(1, per + nfr, [], True)
        kstep(2, nfr + n, [], True)
        kstep(3, 2 * n, [], True)
        a.stamp(14)
    STL = 65536
    def epilogue(nh):
        a(f"""s_barrier
        v_and_b32 v2, 15, v0
        v_lshlrev_b32 v2, 3, v2
        v_add_u32 v2, {STL}, v2""")
        for m in range(8): a(f"ds_read_b64 {vr(64+2*m,2)}, v2 offset:{128*m}")
        a(f"""s_mul_i32 s9, s5, {2*54}
        s_add_u32 s9, s9, s7
        s_lshl_b32 s9, s9, 12
        s_lshl_b32 s10, s8, 3
        s_add_u32 s9, s9, s10
        s_add_u32 s9, s9, {WS['HH']}""")
        add64(a, 14, 12, "s9"); add64(a, 28, 14, 54 * 4096)
        a("s_waitcnt lgkmcnt(0)")
        for m in range(8):
            st_ = vr(64 + 2 * m, 2); o = 96 + 4 * (m & 3)
            for h in range(nh):
                G, U = ACC + 64 * h + 4 * m, ACC + 64 * h + 32 + 4 * m
                c = CB + 16 * h; t = 80 + 8 * h
                for p in range(2):
                    a(f"v_pk_fma_f32 {vr(t+2*p,2)}, {vr(c+2*p,2)}, {st_}, {vr(c+4+2*p,2)} op_sel:[0,1,0] op_sel_hi:[1,1,1]")
                    a(f"v_pk_fma_f32 {vr(t+4+2*p,2)}, {vr(c+8+2*p,2)}, {st_}, {vr(c+12+2*p,2)} op_sel:[0,1,0] op_sel_hi:[1,1,1]")
                for p in range(2):
                    a(f"v_pk_fma_f32 {vr(G+2*p,2)}, {vr(G+2*p,2)}, {st_}, {vr(t+2*p,2)} op_sel_hi:[1,0,1]")
                    a(f"v_pk_fma_f32 {vr(U+2*p,2)}, {vr(U+2*p,2)}, {st_}, {vr(t+4+2*p,2)} op_sel_hi:[1,0,1]")
                for r in range(4): a(f"v_max_f32 v{G+r}, 0, v{G+r}")
                for p in range(2): a(f"v_pk_mul_f32 {vr(G+2*p,2)}, {vr(G+2*p,2)}, {vr(U+2*p,2)}")
                for p in range(2): a(f"v_cvt_pk_bf16_f32 v{o+2*h+p}, v{G+2*p}, v{G+2*p+1}")
            sb_ = 14 if m < 4 else 28
            a(f"global_store_dwordx{2*nh} v9, {vr(o,2*nh)}, s[{sb_}:{sb_+1}] offset:{1024*(m&3)}{SC}")
    a(f"s_cmp_eq_u32 s3, 3\ns_cbranch_scc1 {Lw3}")
    body(4, False)
    epilogue(2)
    a(f"s_branch {Lg2}\n{Lw3}:")
    body(2, True)
    a(f"""v_and_b32 v2, 3, v0
    v_cmp_eq_u32 s[30:31], 1, v2
    v_cmp_eq_u32 s[32:33], 2, v2
    v_cmp_eq_u32 s[34:35], 3, v2
    v_bfe_u32 v2, v0, 2, 2
    v_lshrrev_b32 v3, 4, v0
    v_cmp_eq_u32 vcc, v2, v3
    v_and_b32 v2, 15, v0
    v_lshlrev_b32 v2, 3, v2
    v_add_u32 v2, {STL}, v2
    s_and_saveexec_b64 s[36:37], vcc""")
    for ins in range(10):
        for m in range(8):
            q = ACC + 96 + 4 * m
            a([f"v_cndmask_b32 v{q}, v{q}, v{q+1}, s[30:31]", f"v_cndmask_b32 v{q}, v{q}, v{q+2}, s[32:33]", f"v_cndmask_b32 v{q}, v{q}, v{q+3}, s[34:35]",
               f"v_mul_f32 v{q+1}, {INV640}, v{ACC+64+4*m}", f"v_mul_f32 v{q}, {INV640}, v{q}", f"v_fma_f32 v{q}, -v{q+1}, v{q+1}, v{q}",
               f"v_max_f32 v{q}, 0, v{q}", f"v_add_f32 v{q}, 0x3727c5ac, v{q}", f"v_rsq_f32 v{q}, v{q}",
               f"v_mul_f32 v{q+1}, -v{q+1}, v{q}\nds_write_b64 v2, {vr(q,2)} offset:{128*m}"][ins])
    a(f"""s_mov_b64 exec, s[36:37]
    s_waitcnt lgkmcnt(0)
    s_cmp_lt_u32 s6, 12
    s_cbranch_scc1 {Lepi3}
    s_barrier
    s_branch {Lg2}
    {Lepi3}:""")
    epilogue(1)
    a(f"{Lg2}:")

def phase_g2(a):
    a.stamp(15)
    publish(a, 3, 16)
    n1 = NWD1 // 3 * 3
    for i in range(n1, n1 + NWD2): a(wd_load(i))
    a(f"s_load_dwordx2 s[30:31], s[0:1], {KA['out']}")
    for sg in range(4):
        a(f"""s_add_u32 s7, s3, {sg}
        s_and_b32 s7, s7, 3
        s_lshl_b32 s8, s7, 10
        v_add_u32 v{10+sg}, s8, v9""")
        if sg: a(f"s_mul_i32 s8, s7, {15*1024}\ns_add_u32 s8, s8, {(sg-1)*5*1024}\nv_add_u32 v{13+sg}, s8, v9")
    a(f"s_mul_i32 s8, s44, {54*4096}\ns_add_u32 s8, s8, {WS['HH']}")
    add64(a, 14, 12, "s8"); srd(a, 16, 14, 54 * 4096)
    ACC, XR, GB, SEL, HB = 152, 20, 40, 60, 64
    NB = 5
    a(f"""v_and_b32 v2, 15, v0
    v_lshrrev_b32 v3, 4, v0
    v_lshlrev_b32 v4, 12, v2
    v_lshl_add_u32 v4, v3, 4, v4
    v_lshlrev_b32 v5, 4, v3
    s_mul_i32 s8, s45, {80*4096}
    s_lshl_b32 s9, s44, 7
    s_add_u32 s8, s8, s9
    s_lshr_b32 s9, s3, 1
    s_lshl_b32 s9, s9, 6
    s_add_u32 s8, s8, s9
    s_add_u32 s8, s8, {WS['X1T']}
    s_add_u32 s14, s12, s8
    s_addc_u32 s15, s13, 0
    s_mul_i32 s8, s45, 320
    s_add_u32 s8, s8, {WS['GB']}
    s_add_u32 s26, s12, s8
    s_addc_u32 s27, s13, 0""")
    for d in range(5):
        a(f"global_load_dwordx4 {vr(XR+4*d,4)}, v4, s[14:15]{SC}\ns_add_u32 s14, s14, 0x10000\ns_addc_u32 s15, s15, 0")
        a(f"global_load_dwordx4 {vr(GB+4*d,4)}, v5, s[26:27] offset:{64*d}{SC}")
    a(f"""s_and_b32 s8, s3, 1
    s_lshl_b32 s8, s8, 4
    v_lshlrev_b32 v5, 3, v3
    v_sub_u32 v5, v2, v5
    v_add_u32 v5, s8, v5
    v_mov_b32 v6, 0x3f80
    v_mov_b32 v7, 0x3f800000""")
    for p in range(4):
        a(f"""v_cmp_eq_u32 vcc, {2*p}, v5
        v_cmp_eq_u32 s[28:29], {2*p+1}, v5
        s_nop 1
        v_cndmask_b32 v{SEL+p}, 0, v6, vcc
        v_cndmask_b32 v{SEL+p}, v{SEL+p}, v7, s[28:29]""")
    for i in range(80): a(f"v_mov_b32 v{ACC+i}, 0")
    a(f"""s_lshr_b32 s8, s44, 4
    s_lshl_b32 s8, s8, 2
    s_bfe_u32 s9, s44, 0x30001
    s_lshl_b32 s9, s9, 3
    s_add_u32 s8, s8, s9
    v_bfe_u32 v147, v0, 2, 2
    v_and_b32 v146, 3, v0
    v_lshl_add_u32 v147, v146, 6, v147
    v_add_u32 v147, s8, v147
    s_lshl_b32 s24, s3, 12""")
    a.stamp(16)
    poll(a, 3, None, 16, 144, idxreg=147)
    a.stamp(17)
    def hl(st):
        return [f"buffer_load_dwordx4 {vr(HB+16*(st%NB)+4*sg,4)}, v{10+sg}, s[16:19], s24 offen{SC}" for sg in range(4)] + ["s_add_u32 s24, s24, 16384"]
    issued = []
    def group(st):
        l = hl(st); tags = [st] * 4
        return l, tags
    rest = list(range(n1 + NWD2, 70))
    def nextwd(k):
        out = []
        for _ in range(k):
            if rest:
                i = rest.pop(0); out.append(wd_load(i)); issued.append(i // 5)
        return out
    for st in range(NB - 1):
        l, t = group(st); a("\n".join(l)); issued += t
    for st in range(14):
        last = max(i for i, t in enumerate(issued) if t <= st)
        a(f"s_waitcnt vmcnt({len(issued) - 1 - last})")
        ex = []
        if st + NB - 1 < 14:
            l, t = group(st + NB - 1); ex += l; issued += t
        ex += nextwd(3)
        for sg in range(4):
            for d in range(5):
                t = vr(ACC + 20 * sg + 4 * d, 4)
                a(f"v_mfma_f32_16x16x32_bf16 {t}, {wd_reg(5*st+d)}, {vr(HB+16*(st%NB)+4*sg,4)}, {t}")
                if ex: a(ex.pop(0))
        assert not ex
    assert not rest
    a.stamp(18)
    XD = 64
    for d in range(5): a(f"v_mfma_f32_16x16x32_bf16 {vr(XD+4*d,4)}, {vr(XR+4*d,4)}, {vr(SEL,4)}, 0")
    a(f"""s_mul_i32 s8, s3, {15*1024}
    v_add_u32 v17, s8, v9
    v_mul_u32_u24 v4, 1280, v2
    v_lshl_add_u32 v4, v3, 3, v4""")
    for sg in range(1, 4):
        for d in range(5): a(f"ds_write_b128 v{13+sg}, {vr(ACC+20*sg+4*d,4)} offset:{1024*d}")
    a(f"""s_lshl_b32 s8, s44, 2
    s_add_u32 s8, s8, s3
    s_mul_i32 s8, s8, {16*1280}
    s_mul_i32 s9, s45, 160
    s_add_u32 s8, s8, s9
    s_waitcnt lgkmcnt(0)""")
    add64(a, 30, 30, "s8")
    a("s_barrier")
    for d in range(5):
        for sg in range(1, 4): a(f"ds_read_b128 {vr(ACC+20*sg+4*d,4)}, v17 offset:{1024*(5*(sg-1)+d)}")
    for d in range(5):
        a(f"s_waitcnt lgkmcnt({12-3*d})")
        t = ACC + 4 * d
        for p in range(2):
            a(f"v_pk_add_f32 {vr(t+2*p,2)}, {vr(t+2*p,2)}, {vr(t+20+2*p,2)}")
            a(f"v_pk_add_f32 {vr(t+40+2*p,2)}, {vr(t+40+2*p,2)}, {vr(t+60+2*p,2)}")
        for p in range(2): a(f"v_pk_add_f32 {vr(t+2*p,2)}, {vr(t+2*p,2)}, {vr(t+40+2*p,2)}")
        for p in range(2): a(f"v_pk_fma_f32 {vr(t+2*p,2)}, {vr(t+2*p,2)}, {vr(GB+4*d+2*p,2)}, {vr(XD+4*d+2*p,2)}")
        a(f"v_cvt_pk_bf16_f32 v{t}, v{t}, v{t+1}\nv_cvt_pk_bf16_f32 v{t+1}, v{t+2}, v{t+3}")
        a(f"global_store_dwordx2 v4, {vr(t,2)}, s[30:31] offset:{32*d}")

def build():
    a = A()
    hdr = open("cdna_kernels/" + NAME + ".s.ref").read().split("; Override launch")[0]
    a(f'.amdgcn_target "amdgcn-amd-amdhsa--gfx950"\n.text\n.globl {KNAME}\n.p2align 8\n.type {KNAME},@function\n{KNAME}:')
    Lend, Laux, Lg1, Lnt = a.label("end"), a.label("aux"), a.label("g1"), a.label("notag")
    if DIAG:
        for i in range(NSTAMP): a(f"s_mov_b32 s{48+i}, 0")
    a.stamp(0)
    a(f"""s_cmp_ge_u32 s2, 256
    s_cbranch_scc1 {Lend}
    s_load_dwordx2 s[12:13], s[0:1], {KA['ws']}
    s_load_dwordx2 s[72:73], s[0:1], {KA['dbg']}
    v_lshrrev_b32 v1, 6, v0
    v_and_b32 v0, 63, v0
    v_readfirstlane_b32 s3, v1
    s_mov_b32 s69, 0xffff0000
    s_cmp_lg_u32 s2, 255
    s_cbranch_scc1 {Lnt}
    s_cmp_lg_u32 s3, 0
    s_cbranch_scc1 {Lnt}
    s_memrealtime s[70:71]
    v_mov_b32 v4, 0
    s_waitcnt lgkmcnt(0)
    s_or_b32 s70, s70, 1
    v_mov_b32 v2, s70
    v_mov_b32 v3, s71
    s_mov_b64 exec, 1
    global_store_dwordx2 v4, v[2:3], s[72:73]{SC}
    s_mov_b64 exec, -1
    {Lnt}:
    s_cmp_ge_u32 s2, 160
    s_cbranch_scc1 {Laux}""")
    phase_conv(a, Lg1)
    a(f"{Laux}:")
    phase_aux(a, Lg1)
    a(f"{Lg1}:")
    phase_g1(a)
    phase_g2(a)
    if DIAG:
        a("s_waitcnt vmcnt(0)")
        a.stamp(19)
        a(f"""s_lshl_b32 s4, s2, 2
        s_add_u32 s4, s4, s3
        s_lshl_b32 s4, s4, 7
        s_add_u32 s4, s4, {TS_OFF}
        v_mov_b32 v0, s4
        s_mov_b64 exec, 1""")
        for i in range(NSTAMP): a(f"v_mov_b32 v2, s{48+i}\nglobal_store_dword v0, v2, s[12:13] offset:{4*i}\ns_nop 1")
    a(f"{Lend}:\ns_endpgm")
    kd = f""".section .rodata,"a"
.p2align 6
.amdhsa_kernel {KNAME}
  .amdhsa_next_free_vgpr 512
  .amdhsa_next_free_sgpr 102
  .amdhsa_accum_offset 256
  .amdhsa_group_segment_fixed_size 0
  .amdhsa_kernarg_size 120
  .amdhsa_user_sgpr_count 2
  .amdhsa_user_sgpr_kernarg_segment_ptr 1
  .amdhsa_system_sgpr_workgroup_id_x 1
.end_amdhsa_kernel
"""
    return hdr + f"; @launch grid=(256,1,1) block=(256,1,1) lds={LDS_BYTES}\n" + a.text() + kd

if __name__ == "__main__":
    open(sys.argv[1] if len(sys.argv) > 1 else "p.s", "w").write(build())
```

```python
import sys, os
NAME = "adaLN_cond__ssm_conv_h3__glu_gated_reglu__prompt"
KNAME = NAME + "_kernel"
S, D, F = 2048, 640, 1728
KA = dict(x=0, k=8, v=16, shift=24, ssm=32, ssmD=40, bx=48, wg=56, wu=64, wd=72, c=80, wmod=88, out=96, dbg=104, ws=112)
WS = {}
_off = 0
def alloc(name, n):
    global _off
    WS[name] = _off
    _off += (n + 4095) // 4096 * 4096
alloc("FL", 4 * 256 * 128)
alloc("KVT", 640 * 4096 + 4096)
alloc("XTT", 640 * 4096)
alloc("ST", 2 * 2048 * 4)
alloc("MODP", 4 * 3840 * 4)
alloc("X1T", 640 * 4096)
alloc("WP", 54 * 20 * 4096)
alloc("CSB", 4 * 1728 * 4)
alloc("GB", 640 * 4)
alloc("WD", 54 * 40 * 1024)
alloc("HH", 32 * 54 * 4096)
DIAG = bool(int(os.environ.get("DIAG", "0")))
EXP = os.environ.get("EXP", "").split(",")
TS_OFF = 64 << 20
NSTAMP = 20
NT = " nt"
SC = " sc1"
INV640 = f"{1.0/640:#.9g}"

class A:
    def __init__(self):
        self.l = []; self.n = 0
    def __call__(self, s):
        for x in s.strip("\n").split("\n"):
            x = x.strip()
            if x: self.l.append(("" if x.endswith(":") else "    ") + x)
    def label(self, p="L"):
        self.n += 1
        return f"{p}_{self.n}"
    def stamp(self, i):
        if DIAG: self(f"s_memrealtime s[76:77]\ns_waitcnt lgkmcnt(0)\ns_mov_b32 s{48+i}, s76")
    def text(self): return "\n".join(self.l) + "\n"

def vr(b, n=1, p="v"): return f"{p}{b}" if n == 1 else f"{p}[{b}:{b+n-1}]"
def ar(b, n=1): return vr(b, n, "a")
def srd(a, dst, base, nbytes):
    a(f"s_mov_b32 s{dst}, s{base}\ns_and_b32 s{dst+1}, s{base+1}, 0xffff\ns_mov_b32 s{dst+2}, {nbytes}\ns_mov_b32 s{dst+3}, 0x20000")
def add64(a, dst, base, off):
    a(f"s_add_u32 s{dst}, s{base}, {off}\ns_addc_u32 s{dst+1}, s{base+1}, 0")
def dma(a, voff, sbase, m0, extra=""):
    a(f"s_mov_b32 m0, {m0}\ns_nop 0\nglobal_load_lds_dwordx4 v{voff}, s[{sbase}:{sbase+1}]{extra}")
def rbf16(a, dst, src):
    a(f"v_cvt_pk_bf16_f32 v{dst}, v{src}, v{src}\nv_lshlrev_b32 v{dst}, 16, v{dst}")

def get_tag(a, vt):
    L, Ld = a.label("tag"), a.label("tagd")
    a(f"""s_mov_b32 s74, 0x100000
    v_mov_b32 v{vt+2}, 0
    {L}:
    global_load_dwordx2 {vr(vt,2)}, v{vt+2}, s[72:73]{SC}
    s_waitcnt vmcnt(0)
    v_readfirstlane_b32 s70, v{vt}
    v_readfirstlane_b32 s71, v{vt+1}
    s_sub_u32 s74, s74, 1
    s_cbranch_scc1 {Ld}
    s_cmp_eq_u64 s[70:71], 0
    s_cbranch_scc1 {L}
    {Ld}:""")

def publish(a, phase, vt, vm=0):
    L = a.label("pub")
    a(f"""s_waitcnt vmcnt({vm})
    s_barrier
    s_cmp_lg_u32 s3, 0
    s_cbranch_scc1 {L}
    s_lshl_b32 s74, s2, 7
    s_add_u32 s74, s74, {WS['FL'] + phase*256*128}
    v_mov_b32 v{vt+2}, s74
    v_mov_b32 v{vt}, s70
    v_mov_b32 v{vt+1}, s71
    s_mov_b64 exec, 1
    global_store_dwordx2 v{vt+2}, {vr(vt,2)}, s[12:13]{SC}
    s_mov_b64 exec, -1
    {L}:""")

def poll(a, phase, first, count, vt, idxreg=None):
    L, Ld = a.label("poll"), a.label("polld")
    if idxreg is None:
        a(f"v_add_u32 v{vt+2}, {first}, v0")
        idxreg = vt + 2
    a(f"""v_lshlrev_b32 v{vt+2}, 7, v{idxreg}
    v_add_u32 v{vt+2}, {WS['FL'] + phase*256*128}, v{vt+2}
    s_mov_b32 s74, 0x100000""")
    if count < 64: a(f"s_mov_b64 exec, {(1 << count) - 1:#x}" if count <= 31 else f"s_mov_b32 exec_hi, {(1 << (count - 32)) - 1:#x}")
    a(f"""{L}:
    global_load_dwordx2 {vr(vt,2)}, v{vt+2}, s[12:13]{SC}
    s_waitcnt vmcnt(0)
    v_cmp_ne_u64 vcc, s[70:71], {vr(vt,2)}
    s_and_b64 exec, exec, vcc
    s_cbranch_execz {Ld}
    s_sleep 1
    s_sub_u32 s74, s74, 1
    s_cbranch_scc0 {L}
    {Ld}:
    s_mov_b64 exec, -1""")

def xtile_tr_addrs(a, dst, base_sgpr=None):
    a("""v_lshrrev_b32 v2, 2, v0
    v_and_b32 v3, 7, v2
    v_lshlrev_b32 v3, 1, v3
    v_bfe_u32 v4, v0, 1, 1
    v_or_b32 v3, v3, v4
    v_lshlrev_b32 v2, 8, v2
    v_and_b32 v4, 1, v0
    v_lshl_add_u32 v2, v4, 3, v2""")
    if base_sgpr is not None: a(f"v_add_u32 v2, s{base_sgpr}, v2")
    for m in range(8): a(f"v_xor_b32 v4, {2*m}, v3\nv_lshl_add_u32 v{dst+m}, v4, 4, v2")

def stats_issue(a, R, sx, srow):
    a(f"""s_mul_i32 s14, s3, 12
    s_add_u32 s14, s14, s{srow}
    s_mul_i32 s14, s14, 1280
    v_lshrrev_b32 v{R+60}, 4, v0
    v_mul_u32_u24 v{R+60}, {1280-256}, v{R+60}
    v_lshl_add_u32 v{R+60}, v0, 4, v{R+60}""")
    add64(a, 14, sx, "s14")
    for gq in range(3):
        for i in range(5): a(f"global_load_dwordx4 {vr(R+20*gq+4*i,4)}, v{R+60}, s[14:15] offset:{256*i}")
        if gq < 2: add64(a, 14, 14, 4 * 1280)
def stats_compute(a, R, srow):
    T = R + 60
    a("s_mov_b32 s14, 0x3f803f80")
    for i in range(20):
        for gq in range(3):
            a(f"v_dot2_f32_bf16 v{T+2*gq}, v{R+20*gq+i}, s14, {'0' if i == 0 else f'v{T+2*gq}'}")
            a(f"v_dot2_f32_bf16 v{T+2*gq+1}, v{R+20*gq+i}, v{R+20*gq+i}, {'0' if i == 0 else f'v{T+2*gq+1}'}")
    a("s_nop 2")
    for rot in (8, 4, 2, 1):
        for j in range(6): a(f"v_add_f32_dpp v{T+j}, v{T+j}, v{T+j} row_ror:{rot} row_mask:0xf bank_mask:0xf")
    a(f"""v_and_b32 v{R}, 3, v0
    v_cmp_eq_u32 vcc, 1, v{R}
    v_cmp_eq_u32 s[14:15], 2, v{R}
    v_lshrrev_b32 v{R+1}, 4, v0
    v_lshl_add_u32 v{R}, v{R}, 2, v{R+1}
    v_cndmask_b32 v{T}, v{T}, v{T+2}, vcc
    v_cndmask_b32 v{T+1}, v{T+1}, v{T+3}, vcc
    v_cndmask_b32 v{T}, v{T}, v{T+4}, s[14:15]
    v_cndmask_b32 v{T+1}, v{T+1}, v{T+5}, s[14:15]
    v_mul_f32 v{T}, {INV640}, v{T}
    v_mul_f32 v{T+1}, {INV640}, v{T+1}
    v_fma_f32 v{T+1}, -v{T}, v{T}, v{T+1}
    v_max_f32 v{T+1}, 0, v{T+1}
    v_add_f32 v{T+1}, 0x3727c5ac, v{T+1}
    v_rsq_f32 v{T+1}, v{T+1}
    s_mul_i32 s14, s3, 12
    s_add_u32 s14, s14, s{srow}
    s_lshl_b32 s14, s14, 2
    s_add_u32 s14, s14, {WS['ST']}
    v_mul_f32 v{T}, -v{T}, v{T+1}
    v_lshl_add_u32 v{R}, v{R}, 2, s14
    v_add_u32 v{R+1}, 8192, v{R}
    s_mov_b32 exec_lo, 0x70007
    s_mov_b32 exec_hi, 0x70007
    global_store_dword v{R}, v{T+1}, s[12:13]{SC}
    global_store_dword v{R+1}, v{T}, s[12:13]{SC}
    s_mov_b64 exec, -1""")

NMODLD = 7
def mod_issue(a, R, su, sc, sw):
    a(f"""s_and_b32 s16, s{su}, 3
    s_mul_i32 s17, s16, 320
    s_lshl_b32 s14, s3, 3
    v_lshrrev_b32 v{R+25}, 3, v0
    v_add_u32 v{R+25}, s14, v{R+25}
    v_lshl_add_u32 v{R+26}, v{R+25}, 3, s17
    global_load_dwordx2 {vr(R+20,2)}, v{R+26}, s[{sc}:{sc+1}]
    v_lshl_add_u32 v{R+26}, v{R+25}, 1, s17
    global_load_ushort v{R+22}, v{R+26}, s[{sc}:{sc+1}] offset:256
    v_mul_u32_u24 v{R+25}, 7680, v{R+25}
    v_and_b32 v{R+26}, 7, v0
    v_lshlrev_b32 v{R+26}, 4, v{R+26}
    v_lshl_add_u32 v{R+24}, v{R+25}, 2, v{R+26}
    v_add_u32 v{R+25}, v{R+25}, v{R+26}
    s_mul_i32 s16, s16, {160*7680}
    s_lshr_b32 s17, s{su}, 2
    s_lshl_b32 s17, s17, 7
    s_add_u32 s16, s16, s17""")
    add64(a, 14, sw, "s16")
    for i in range(4):
        a(f"global_load_dwordx4 {vr(R+4*i,4)}, v{R+24}, s[14:15]{NT}")
        add64(a, 14, 14, 7680 if i < 3 else (128 - 3) * 7680)
    a(f"global_load_dwordx4 {vr(R+16,4)}, v{R+25}, s[14:15]{NT}")
def mod_compute(a, R, T, ldsoff):
    SV, ACC, U = T, T + 10, T + 18
    a(f"""v_lshlrev_b32 v{R+24}, 16, v{R+22}
    v_and_b32 v{R+23}, s69, v{R+21}
    v_lshlrev_b32 v{R+22}, 16, v{R+21}
    v_and_b32 v{R+21}, s69, v{R+20}
    v_lshlrev_b32 v{R+20}, 16, v{R+20}""")
    for i in range(5): a(f"v_mul_f32 v{SV+2*i}, 0xbfb8aa3b, v{R+20+i}")
    for i in range(5): a(f"v_exp_f32 v{SV+2*i}, v{SV+2*i}")
    for i in range(5): a(f"v_add_f32 v{SV+2*i}, 1.0, v{SV+2*i}")
    for i in range(5): a(f"v_rcp_f32 v{SV+2*i}, v{SV+2*i}")
    for i in range(5): a(f"v_mul_f32 v{SV+2*i}, v{R+20+i}, v{SV+2*i}")
    for i in range(5): rbf16(a, SV + 2 * i, SV + 2 * i)
    for i in range(5):
        for j in range(4): a(f"v_lshlrev_b32 v{U+2*j}, 16, v{R+4*i+j}\nv_and_b32 v{U+2*j+1}, s69, v{R+4*i+j}")
        for j in range(4):
            if i == 0: a(f"v_pk_mul_f32 {vr(ACC+2*j,2)}, {vr(U+2*j,2)}, {vr(SV,2)} op_sel_hi:[1,0]")
            else: a(f"v_pk_fma_f32 {vr(ACC+2*j,2)}, {vr(U+2*j,2)}, {vr(SV+2*i,2)}, {vr(ACC+2*j,2)} op_sel_hi:[1,0,1]")
    a("s_nop 1")
    for j in range(4): a(f"v_permlane32_swap_b32 v{ACC+j}, v{ACC+4+j}")
    a("s_nop 0")
    for j in range(4): a(f"v_add_f32 v{ACC+j}, v{ACC+j}, v{ACC+4+j}")
    a("s_nop 1")
    for j in range(2): a(f"v_permlane16_swap_b32 v{ACC+j}, v{ACC+2+j}")
    a("s_nop 0")
    for j in range(2): a(f"v_add_f32 v{ACC+j}, v{ACC+j}, v{ACC+2+j}")
    a("s_nop 1")
    for j in range(2): a(f"v_add_f32_dpp v{ACC+j}, v{ACC+j}, v{ACC+j} row_ror:8 row_mask:0xf bank_mask:0xf")
    a(f"""s_lshl_b32 s14, s3, 8
    s_add_u32 s14, s14, {ldsoff}
    v_and_b32 v{U}, 7, v0
    v_lshrrev_b32 v{U+1}, 4, v0
    v_lshlrev_b32 v{U}, 5, v{U}
    v_lshl_add_u32 v{U}, v{U+1}, 3, v{U}
    v_add_u32 v{U}, s14, v{U}
    ds_write_b64 v{U}, {vr(ACC,2)}""")
def mod_final(a, su, T, ldsoff):
    a(f"""v_lshlrev_b32 v{T}, 2, v0
    v_add_u32 v{T+1}, {ldsoff}, v{T}
    ds_read2st64_b32 {vr(T+2,2)}, v{T+1} offset0:0 offset1:1
    ds_read2st64_b32 {vr(T+4,2)}, v{T+1} offset0:2 offset1:3
    s_and_b32 s14, s{su}, 3
    s_mul_i32 s14, s14, {3840*4}
    s_lshr_b32 s15, s{su}, 2
    s_lshl_b32 s15, s15, 8
    s_add_u32 s14, s14, s15
    s_add_u32 s14, s14, {WS['MODP']}
    v_add_u32 v{T}, s14, v{T}
    s_waitcnt lgkmcnt(0)
    v_pk_add_f32 {vr(T+2,2)}, {vr(T+2,2)}, {vr(T+4,2)}
    s_nop 0
    v_add_f32 v{T+2}, v{T+2}, v{T+3}
    global_store_dword v{T}, v{T+2}, s[12:13]{SC}""")

RW = 4608 + 4160 * 2
OF, OE, OO = 512, 4608, 4608 + 4160
KB = 68096; VB = KB + 17 * 1040; XB = VB + 16 * 1040; MRED = XB + 16 * 1040
LDS_BYTES = 122880

def tag_issue(a, vt):
    a(f"v_mov_b32 v{vt+2}, 0\nglobal_load_dwordx2 {vr(vt,2)}, v{vt+2}, s[72:73]{SC}")
def tag_check(a, vt):
    Ld = a.label("tagok")
    a(f"""v_readfirstlane_b32 s70, v{vt}
    v_readfirstlane_b32 s71, v{vt+1}
    s_cmp_lg_u64 s[70:71], 0
    s_cbranch_scc1 {Ld}""")
    get_tag(a, vt)
    a(f"{Ld}:")

def interleave(a, mfmas, fill, per=2, start=0):
    fill = list(fill)
    n = len(mfmas)
    for k, m in enumerate(mfmas):
        a(m)
        if k < start: continue
        take = min(per, -(-len(fill) // (n - k))) if per else 0
        take = max(take, 1) if fill else 0
        if k == n - 1: take = len(fill)
        for _ in range(take): a(fill.pop(0))

HK = int(os.environ.get("HK", "4"))
def phase_conv(a, Lg1):
    a(f"""s_load_dwordx4 s[4:7], s[0:1], {KA['x']}
    s_load_dwordx4 s[8:11], s[0:1], {KA['v']}
    s_load_dwordx4 s[36:39], s[0:1], {KA['ssm']}
    s_load_dwordx4 s[40:43], s[0:1], {KA['c']}
    s_lshr_b32 s44, s2, 4
    s_and_b32 s45, s2, 15
    v_lshrrev_b32 v4, 3, v0
    v_and_b32 v5, 7, v0
    v_mul_u32_u24 v2, 1280, v4
    v_lshl_add_u32 v2, v5, 4, v2
    s_lshl_b32 s14, s45, 4
    s_add_u32 s14, s14, s3
    s_mul_i32 s14, s14, {8*1280}
    s_lshl_b32 s15, s44, 7
    s_add_u32 s14, s14, s15
    v_add_u32 v2, s14, v2
    v_add_u32 v3, {(-8*1280) & 0xffffffff}, v2
    s_lshl_b32 s14, s3, 3
    v_add_u32 v6, s14, v4
    s_lshl_b32 s14, s44, 9
    v_lshl_add_u32 v7, v6, 4, s14
    s_mul_i32 s28, s3, 1040
    s_mov_b32 s29, {32*1280}
    s_mov_b32 s30, {64*1280}
    s_mov_b32 s31, {96*1280}
    s_waitcnt lgkmcnt(0)""")
    srd(a, 16, 6, S * D * 2); srd(a, 20, 8, S * D * 2); srd(a, 24, 4, S * D * 2)
    Lh = a.label("nohalo")
    a(f"""s_cmp_lg_u32 s3, 0
    s_cbranch_scc1 {Lh}
    s_mov_b32 m0, {KB}
    s_nop 0
    buffer_load_dwordx4 v3, s[16:19], 0 offen{NT} lds
    {Lh}:""")
    SH = 8
    so = ["0", "s29", "s30", "s31"]
    def tile_dma(base, srdb):
        for i in range(4):
            a(f"s_add_u32 m0, s28, {base + 4*1040*i}\ns_nop 0\nbuffer_load_dwordx4 v2, s[{srdb}:{srdb+3}], {so[i]} offen{NT} lds")
    tile_dma(KB + 1040, 16); tile_dma(VB, 20)
    a(f"global_load_dwordx4 {vr(SH,4)}, v7, s[10:11]")
    code_prefetch(a)
    tile_dma(XB, 24)
    a(f"""s_lshr_b32 s14, s45, 2
    s_cmp_eq_u32 s14, 3
    s_cselect_b32 s14, 5, s14
    s_mul_i32 s14, s14, 10
    s_add_u32 s14, s14, s44
    s_lshl_b32 s14, s14, 2
    s_and_b32 s46, s45, 3
    s_add_u32 s46, s46, s14
    v_mul_u32_u24 v12, 1040, v5
    v_lshl_add_u32 v12, v6, 2, v12
    v_add_u32 v12, {KB}, v12
    v_lshlrev_b32 v13, 13, v6
    v_lshl_add_u32 v14, v5, 4, v13
    v_xor_b32 v3, 7, v5
    v_lshl_add_u32 v13, v3, 4, v13
    s_lshl_b32 s14, s44, 18
    s_lshl_b32 s15, s45, 8
    s_sub_u32 s32, s14, s15
    s_add_u32 s32, s32, {WS['KVT'] + 4096 + 240*16}
    s_add_u32 s34, s14, s15
    s_add_u32 s34, s34, {WS['XTT'] + 4096}""")
    add64(a, 32, 12, "s32"); add64(a, 34, 12, "s34")
    a(f"""s_lshl_b32 s8, s2, 2
    s_add_u32 s8, s8, s3
    s_mul_i32 s9, s3, {RW}
    s_add_u32 s9, s9, 16384
    s_lshl_b32 s10, s8, 12
    v_lshlrev_b32 v2, 4, v0
    v_and_b32 v4, 15, v0
    v_lshrrev_b32 v5, 4, v0
    v_mov_b32 v216, 0
    v_mov_b32 v217, 0
    v_lshl_add_u32 v6, v0, 3, s9
    ds_write_b64 v6, v[216:217]
    v_lshl_add_u32 v6, v4, 2, s9
    ds_write_b32 v6, v216 offset:{OE+4096}
    ds_write_b32 v6, v216 offset:{OO+4096}""")
    add64(a, 36, 36, "s10")
    a.stamp(1)
    a(f"s_waitcnt vmcnt(5) lgkmcnt(0)\ns_barrier")
    a.stamp(2)
    SP, KR, VR_, KP, VP, KV, OUT = 16, 24, 46, 62, 84, 100, 116
    MR = 160
    def rdk(h, lo, hi):
        for i in range(lo, hi):
            off = 8320 * h + (640 + 128 * i if i < 3 else 1040 + 128 * (i - 3))
            a(f"ds_read_b32 v{KR+11*h+i}, v12 offset:{off}")
    def rdv(h, lo, hi, base=VB, dst=VR_):
        for i in range(lo, hi): a(f"ds_read_b32 v{dst+8*h+i}, v12 offset:{base-KB + 8320*h + 128*i}")
    rdk(0, 0, 11); rdv(0, 0, 4)
    mod_issue(a, MR, 46, 40, 42)
    tag_issue(a, 212)
    a(f"""s_lshl_b32 s17, s8, 1
    v_mov_b32 v218, s17
    global_load_ushort v218, v218, s[38:39]
    v_lshlrev_b32 v{SP+0}, 16, v{SH+0}
    v_lshlrev_b32 v{SP+1}, 16, v{SH+2}
    v_and_b32 v{SP+2}, s69, v{SH+0}
    v_and_b32 v{SP+3}, s69, v{SH+2}
    v_lshlrev_b32 v{SP+4}, 16, v{SH+1}
    v_lshlrev_b32 v{SP+5}, 16, v{SH+3}
    v_and_b32 v{SP+6}, s69, v{SH+1}
    v_and_b32 v{SP+7}, s69, v{SH+3}""")
    def ks(h):
        for i in range(11): a(f"v_lshlrev_b32 v{KP+2*i}, 16, v{KR+11*h+i}\nv_and_b32 v{KP+2*i+1}, s69, v{KR+11*h+i}")
        for r in range(8): a(f"v_pk_mul_f32 {vr(KV+2*r,2)}, {vr(KP+2*r,2)}, {vr(SP+6,2)}")
        for j in (2, 1, 0):
            for r in range(8): a(f"v_pk_fma_f32 {vr(KV+2*r,2)}, {vr(KP+2*(r+3-j),2)}, {vr(SP+2*j,2)}, {vr(KV+2*r,2)}")
    def kvs(h):
        for i in range(8): a(f"v_lshlrev_b32 v{VP+2*i}, 16, v{VR_+8*h+i}\nv_and_b32 v{VP+2*i+1}, s69, v{VR_+8*h+i}")
        for r in range(8): a(f"v_pk_mul_f32 {vr(KV+2*r,2)}, {vr(KV+2*r,2)}, {vr(VP+2*r,2)}")
        for ch in range(2):
            o = OUT + 8 * h + 4 * ch
            for j in range(4): a(f"v_cvt_pk_bf16_f32 v{o+j}, v{KV+2*(7-2*j)+ch}, v{KV+2*(6-2*j)+ch}")
            a(f"global_store_dwordx4 v13, {vr(o,4)}, s[32:33] offset:{-4096*(1-ch) + 128*(1-h)}{SC}")
    a("s_waitcnt lgkmcnt(4)"); rdv(0, 4, 8); rdk(1, 0, 7)
    ks(0)
    a("s_waitcnt lgkmcnt(7)"); rdk(1, 7, 11); rdv(1, 0, 4)
    kvs(0)
    a("s_waitcnt lgkmcnt(4)"); rdv(1, 4, 8)
    ks(1)
    a("s_waitcnt lgkmcnt(0)")
    kvs(1)
    a.stamp(3)
    a(f"s_add_u32 s11, s9, {OF}")
    for i in range(4): dma(a, 2, 36, "s11", f" offset:{1024*i}{NT}")
    RA, RB = 220, 224
    a(f"""v_and_b32 v6, 1, v4
    v_xor_b32 v6, 1, v6
    v_mul_u32_u24 v6, {4160-2}, v6
    v_lshl_add_u32 v6, v5, 4, v6
    v_lshlrev_b32 v7, 1, v4
    v_sub_u32 v6, v6, v7
    v_add_u32 v6, s9, v6""")
    for q2 in range(4): a(f"v_add_u32 v{RA+q2}, {OE + 2*2031 - 512*(2*q2+1) - 64*7}, v6")
    a(f"""v_lshlrev_b32 v6, 5, v4
    v_lshl_add_u32 v15, v5, 3, v6
    v_lshl_add_u32 v6, v5, 4, v6
    v_add_u32 v6, s9, v6
    v_add_u32 v{RB}, {OF - 32 - 64*7}, v6
    v_add_u32 v3, s9, v2""")
    a("s_waitcnt vmcnt(8)")
    tag_check(a, 212)
    publish(a, 0, 212, vm=4)
    a.stamp(4)
    mod_compute(a, MR, 60, MRED)
    rdv(0, 0, 8, XB, 24); rdv(1, 0, 6, XB, 24)
    a("s_mov_b32 s14, 0x05040100\ns_mov_b32 s15, 0x07060302")
    for h in range(2):
        a(f"s_waitcnt lgkmcnt({6 if h == 0 else 0})")
        if h == 0: rdv(1, 6, 8, XB, 24); a("s_barrier")
        for ch in range(2):
            o = 40 + 8 * h + 4 * ch
            for j in range(4): a(f"v_perm_b32 v{o+j}, v{24+8*h+2*j+1}, v{24+8*h+2*j}, s{14+ch}")
            a(f"global_store_dwordx4 v14, {vr(o,4)}, s[34:35] offset:{-4096*(1-ch) + 128*h}{SC}")
    Lnf = a.label("nofin")
    a(f"s_cmp_lg_u32 s3, 3\ns_cbranch_scc1 {Lnf}")
    mod_final(a, 46, 60, MRED)
    a(f"{Lnf}:")
    a(f"s_add_u32 s10, s10, {WS['KVT']}\ns_add_u32 s11, s9, {OE}")
    add64(a, 16, 12, "s10")
    a.stamp(5)
    a("s_and_b32 s14, s2, 0xf0")
    poll(a, 0, "s14", 16, 212)
    a.stamp(6)
    KO = 176
    for i in range(4):
        a(f"global_load_dwordx4 {vr(KO+6*i,4)}, v2, s[16:17] offset:{1024*i}{SC}")
        a(f"global_load_dword v{KO+6*i+4}, v2, s[16:17] offset:{1024*i+16}{SC}")
    for i in range(4): dma(a, 2, 16, "s11", f" offset:{1024*i}{SC}")
    publish(a, 1, 212, vm=12)
    ACC, KD, HG, SBv, XF, XR, KVR = 16, 48, 80, 112, 144, 176, 192
    FA, FB = 0, 64
    def bread(t, q): return f"ds_read_b128 {ar(FB+32*(t&1)+4*q,4)}, v{RB} offset:{512*q + 64*(7-t)}"
    def areads(t, q):
        o = 16 * (7 - t) + (0 if q & 1 else 128)
        return [f"ds_read2_b32 {ar(FA+32*(t&1)+4*q+2*h,2)}, v{RA+q//2} offset0:{o+2*h} offset1:{o+2*h+1}" for h in range(2)]
    def reads(t):
        r = []
        for q in range(8): r += [bread(t, q)] + areads(t, q)
        return r
    for q in range(8): a(bread(0, q))
    a(f"""v_cmp_eq_u32 vcc, 63, v0
    v_lshlrev_b32 v218, 16, v218
    v_sub_u32 v11, s9, v15
    v_add_u32 v11, {OE + 4088 - 512*7}, v11
    v_lshlrev_b32 v12, 1, v15
    v_and_b32 v210, 15, v0
    s_and_b32 s14, s2, 0xf0
    v_add_u32 v210, s14, v210
    v_lshlrev_b32 v210, 7, v210
    v_add_u32 v210, {WS['FL'] + 256*128}, v210
    v_min_u32 v211, 42, v0
    v_lshlrev_b32 v211, 7, v211
    v_add_u32 v211, {WS['FL'] + (256+160)*128}, v211""")
    for i in range(4):
        a(f"s_waitcnt vmcnt({10-2*i})")
        if i == 3: a(f"v_cndmask_b32 v{KO+6*i+4}, v{KO+6*i+4}, v216, vcc")
        for j in range(4): a(f"v_alignbit_b32 v{KO+6*i+j}, v{KO+6*i+j+1}, v{KO+6*i+j}, 16")
        a(f"ds_write_b128 v3, {vr(KO+6*i,4)} offset:{OO+1024*i}")
    a("s_waitcnt vmcnt(0) lgkmcnt(0)")
    for q in range(8):
        for r in areads(0, q): a(r)
    a.stamp(7)
    P, Q = 226, 228
    unk = []
    for n in range(8):
        unk += [f"v_and_b32 v{KD+4*n}, s69, v{KVR+2*n+1}", f"v_lshlrev_b32 v{KD+4*n+1}, 16, v{KVR+2*n+1}",
                f"v_and_b32 v{KD+4*n+2}, s69, v{KVR+2*n}", f"v_lshlrev_b32 v{KD+4*n+3}, 16, v{KVR+2*n}"]
    mulk = [f"v_mul_f32 v{KD+i}, v218, v{KD+i}" for i in range(32)]
    unx = []
    for n in range(16): unx += [f"v_lshlrev_b32 v{XF+2*n}, 16, v{XR+n}", f"v_and_b32 v{XF+2*n+1}, s69, v{XR+n}"]
    flagld = [f"global_load_dwordx2 v[212:213], v210, s[12:13]{SC}", f"global_load_dwordx2 v[214:215], v211, s[12:13]{SC}"]
    eld = [f"s_lshl_b32 s16, s3, 12\ns_add_u32 s17, s16, {WS['ST']}\ns_add_u32 s14, s12, s17\ns_addc_u32 s15, s13, 0\ns_mov_b32 m0, s16"]
    eld += [f"global_load_lds_dwordx4 v2, s[14:15] offset:{1024*i}{SC}" for i in range(4)]
    eld += [f"s_lshl_b32 s17, s8, 12\ns_add_u32 s17, s17, {WS['XTT']}\ns_add_u32 s14, s12, s17\ns_addc_u32 s15, s13, 0"]
    eld += [f"global_load_dwordx2 {vr(XR+2*n,2)}, v15, s[14:15] offset:{512*n}{SC}" for n in range(8)]
    eld += ["v_and_b32 v212, 3, v0", "v_bfe_u32 v213, v0, 2, 2", "v_mul_u32_u24 v212, 15360, v212", "v_mul_u32_u24 v213, 2560, v213",
            f"s_lshl_b32 s17, s8, 2\ns_add_u32 s17, s17, {WS['MODP']}\nv_add3_u32 v212, v212, v213, s17", f"global_load_dword v219, v212, s[12:13]{SC}"]
    strd = []
    for n in range(8): strd += [f"ds_read_b128 {vr(HG+4*n,4)}, v12 offset:{1024*n}", f"ds_read_b128 {vr(SBv+4*n,4)}, v12 offset:{8192+1024*n}"]
    scal = ["v_add_f32_dpp v219, v219, v219 quad_perm:[1,0,3,2] row_mask:0xf bank_mask:0xf\ns_nop 1",
            "v_add_f32_dpp v219, v219, v219 quad_perm:[2,3,0,1] row_mask:0xf bank_mask:0xf",
            "v_cvt_pk_bf16_f32 v219, v219, v219", "v_lshlrev_b32 v219, 16, v219\ns_nop 0",
            "v_readlane_b32 s20, v219, 0", "v_readlane_b32 s21, v219, 4", "v_readlane_b32 s22, v219, 8\ns_nop 1",
            "v_add_f32 v219, s21, 1.0", "v_cvt_pk_bf16_f32 v219, v219, v219", "v_lshlrev_b32 v219, 16, v219",
            f"v_mul_f32 v{P}, s22, v219", f"v_mov_b32 v{Q}, s22", f"v_mul_f32 v{Q}, s20, v{Q}"]
    hg1 = [f"v_fma_f32 v{HG+i}, v{XF+i}, v{HG+i}, v{SBv+i}" for i in range(32)]
    hg2 = [f"v_fma_f32 v{HG+i}, v{HG+i}, v{P}, v{Q}" for i in range(32)]
    oadr = [f"s_lshl_b32 s17, s8, 12\ns_add_u32 s17, s17, {WS['X1T']}\ns_add_u32 s14, s12, s17\ns_addc_u32 s15, s13, 0",
            "v_lshlrev_b32 v10, 5, v4", "v_lshrrev_b32 v13, 1, v5", "v_lshl_add_u32 v10, v13, 4, v10", "v_and_b32 v13, 1, v5", "v_lshl_add_u32 v10, v13, 9, v10"]
    def merge(x, y):
        out = []; x = list(x); y = list(y)
        while x or y:
            if x: out.append(x.pop(0))
            if y: out.append(y.pop(0))
        return out
    post = []
    for t in range(8):
        a("s_waitcnt lgkmcnt(0)")
        extra = []
        if t == 0: extra = [f"ds_read_b64 {vr(KVR+2*n,2)}, v11 offset:{512*(7-n)}" for n in range(8)]
        if t == 1: extra = unk + mulk[:12]
        if t == 2: extra = mulk[12:]
        if t == HK - 1: extra = flagld + extra
        if t == HK:
            Lok, Lsl = a.label("hk_ok"), a.label("hk_slow")
            a(f"""s_mov_b32 s74, 0x100000
            {Lsl}:
            s_waitcnt vmcnt(0)
            v_cmp_ne_u64 vcc, s[70:71], v[212:213]
            v_cmp_ne_u64 s[18:19], s[70:71], v[214:215]
            s_or_b64 vcc, vcc, s[18:19]
            s_cbranch_scc0 {Lok}
            {flagld[0]}
            {flagld[1]}
            s_sub_u32 s74, s74, 1
            s_cbranch_scc0 {Lsl}
            {Lok}:""")
            extra = eld
        if t == HK + 2 or (t == 7 and HK + 2 > 7):
            a("s_waitcnt vmcnt(0)\ns_barrier")
            extra = strd + scal + (unx[:18] if t < 7 else unx)
            if t == 7: post = hg1 + hg2 + oadr
        if t == HK + 3: extra = unx[18:] + hg1 + oadr + hg2
        mf = []
        for q in range(8):
            for n in range(q, 8):
                c = "0" if (t == 0 and q == 0) else vr(ACC + 4 * n, 4)
                mf.append(f"v_mfma_f32_16x16x32_bf16 {vr(ACC+4*n,4)}, {ar(FA+32*(t&1)+4*q,4)}, {ar(FB+32*(t&1)+4*(n-q),4)}, {c}")
        interleave(a, mf, merge(reads(t + 1) if t < 7 else [], extra))
    a.stamp(8)
    a("s_waitcnt lgkmcnt(0)")
    for x in post: a(x)
    a("s_nop 3")
    for n in range(0, 8, 2):
        for m in (n, n + 1):
            for h in range(2): a(f"v_pk_add_f32 {vr(ACC+4*m+2*h,2)}, {vr(ACC+4*m+2*h,2)}, {vr(KD+4*m+2*h,2)}")
        for m in (n, n + 1):
            for h in range(2): a(f"v_pk_fma_f32 {vr(ACC+4*m+2*h,2)}, {vr(HG+4*m+2*h,2)}, {vr(ACC+4*m+2*h,2)}, {vr(XF+4*m+2*h,2)}")
        o = SBv + 2 * n
        for m in (n, n + 1):
            for h in range(2): a(f"v_cvt_pk_bf16_f32 v{o+2*(m-n)+h}, v{ACC+4*m+2*h}, v{ACC+4*m+2*h+1}")
        a(f"""s_nop 1
        v_permlane16_swap_b32 v{o}, v{o+2}
        v_permlane16_swap_b32 v{o+1}, v{o+3}
        global_store_dwordx4 v10, {vr(o,4)}, s[14:15] offset:{512*n}{SC}""")
    a.stamp(9)
    a(f"s_branch {Lg1}")

def code_prefetch(a):
    a(f"""s_getpc_b64 s[14:15]
    s_sub_u32 s14, s14, . - {KNAME}
    s_subb_u32 s15, s15, 0
    s_lshr_b32 s17, s2, 3
    s_lshl_b32 s17, s17, 2
    s_add_u32 s17, s17, s3
    s_min_u32 s17, s17, (code_end - {KNAME}) / 1024 - 1
    s_lshl_b32 s17, s17, 10
    v_lshl_add_u32 v250, v0, 4, s17
    global_load_dwordx4 v[252:255], v250, s[14:15]""")

def phase_aux(a, Lg1):
    Lwd = a.label("aux_wd")
    a(f"""s_load_dwordx2 s[4:5], s[0:1], {KA['x']}
    s_load_dwordx4 s[36:39], s[0:1], {KA['wg']}
    s_load_dwordx2 s[6:7], s[0:1], {KA['wd']}
    s_load_dwordx4 s[40:43], s[0:1], {KA['c']}
    s_sub_u32 s8, s2, 160
    s_cmp_ge_u32 s8, 54
    s_cbranch_scc1 {Lwd}
    s_cmp_ge_u32 s8, 27
    s_cselect_b32 s9, 1, 0
    s_mul_i32 s10, s9, 27
    s_sub_u32 s10, s8, s10""")
    C1, SBT, RED = 81920, 84480, 85760
    SR = 140
    a("s_mul_i32 s45, s8, 48\ns_min_u32 s45, s45, 2000")
    a(f"""v_lshrrev_b32 v2, 3, v0
    v_bfe_u32 v3, v0, 4, 2
    v_lshlrev_b32 v3, 1, v3
    v_and_b32 v4, 7, v0
    v_xor_b32 v3, v3, v4
    v_mul_u32_u24 v2, 3456, v2
    v_lshl_add_u32 v2, v3, 4, v2
    s_lshl_b32 s11, s10, 7
    s_mul_i32 s16, s3, {32*3456}
    s_add_u32 s11, s11, s16
    s_waitcnt lgkmcnt(0)
    s_cmp_eq_u32 s9, 1
    s_cselect_b32 s36, s38, s36
    s_cselect_b32 s37, s39, s37""")
    add64(a, 36, 36, "s11")
    Lns = a.label("aux_nostat")
    a(f"s_cmp_ge_u32 s8, 43\ns_cbranch_scc1 {Lns}")
    stats_issue(a, SR, 4, 45)
    a("s_waitcnt vmcnt(0)")
    stats_compute(a, SR, 45)
    a(f"{Lns}:")
    tag_issue(a, 212)
    a(f"s_mul_i32 s16, s3, {5*4096}")
    for io in range(5):
        for u in range(4):
            dma(a, 2, 36, "s16", NT)
            a("s_add_u32 s16, s16, 1024")
            if io < 4 or u < 3: add64(a, 36, 36, 8 * 3456 if u < 3 else (128 - 24) * 3456)
            if io == 1 and u == 3:
                a.stamp(3)
                a("s_waitcnt vmcnt(8)")
                tag_check(a, 212)
                publish(a, 1, 16, vm=8)
    a.stamp(4)
    poll(a, 1, 214, 40, 16)
    a.stamp(6)
    a(f"""s_lshl_b32 s14, s3, 6
    v_add_u32 v5, s14, v0
    v_min_u32 v5, 159, v5
    v_lshlrev_b32 v6, 4, v5""")
    add64(a, 14, 12, WS['MODP'] + 3 * 2560)
    MP = 16
    for p in range(4):
        for idx in range(2): a(f"global_load_dwordx4 {vr(MP+16*idx+4*p,4)}, v6, s[14:15] offset:{2560*idx}{SC}")
        if p < 3: add64(a, 14, 14, 15360)
    TA = 10
    a(f"""v_lshrrev_b32 v2, 2, v0
    v_bfe_u32 v3, v0, 3, 2
    v_and_b32 v4, 3, v0
    v_lshlrev_b32 v2, 7, v2
    v_lshl_add_u32 v2, v4, 3, v2
    s_mul_i32 s16, s3, {5*4096}
    v_add_u32 v2, s16, v2""")
    for T_ in range(4): a(f"v_xor_b32 v4, {T_}, v3\nv_lshl_add_u32 v{TA+T_}, v4, 5, v2")
    a(f"""v_lshrrev_b32 v2, 4, v0
    s_lshl_b32 s16, s3, 7
    s_add_u32 s16, s16, {C1}
    v_lshl_add_u32 v14, v2, 4, s16
    s_lshl_b32 s16, s3, 6
    s_add_u32 s16, s16, {SBT}
    v_lshl_add_u32 v15, v2, 3, s16
    v_lshlrev_b32 v9, 4, v0
    s_mul_i32 s16, s10, {2*20*4096}
    s_lshl_b32 s17, s3, 12
    s_add_u32 s16, s16, s17
    s_lshl_b32 s17, s9, 10
    s_add_u32 s16, s16, s17
    s_add_u32 s16, s16, {WS['WP']}""")
    add64(a, 14, 12, "s16"); add64(a, 18, 14, 20 * 4096)
    a("s_waitcnt vmcnt(0)")
    for idx in range(2):
        b = MP + 16 * idx
        for h in range(2):
            a(f"v_pk_add_f32 {vr(b+2*h,2)}, {vr(b+2*h,2)}, {vr(b+4+2*h,2)}")
            a(f"v_pk_add_f32 {vr(b+8+2*h,2)}, {vr(b+8+2*h,2)}, {vr(b+12+2*h,2)}")
        for h in range(2): a(f"v_pk_add_f32 {vr(b+2*h,2)}, {vr(b+2*h,2)}, {vr(b+8+2*h,2)}")
    a(f"""v_cvt_pk_bf16_f32 v{MP+4}, v{MP}, v{MP+1}
    v_cvt_pk_bf16_f32 v{MP+5}, v{MP+2}, v{MP+3}
    v_lshlrev_b32 v7, 3, v5
    v_add_u32 v8, {SBT}, v7
    ds_write_b64 v8, {vr(MP+4,2)}""")
    for i in range(4):
        rbf16(a, MP + 16 + i, MP + 16 + i)
        a(f"v_add_f32 v{MP+16+i}, 1.0, v{MP+16+i}")
        rbf16(a, MP + 16 + i, MP + 16 + i)
    a(f"v_add_u32 v8, {C1}, v6\nds_write_b128 v8, {vr(MP+16,4)}")
    CS, BI, CC, SS, RAW, U = 136, 140, 24, 16, 36, 52
    for i in range(8): a(f"v_mov_b32 v{CS+i}, 0")
    a("s_mov_b32 s35, 0x3f803f80\ns_waitcnt lgkmcnt(0)\ns_barrier")
    for io in range(5):
        for hf in range(2):
            a(f"ds_read_b128 {vr(CC+4*hf,4)}, v14 offset:{512*io+64*hf}")
            a(f"ds_read_b64 {vr(SS+2*hf,2)}, v15 offset:{256*io+32*hf}")
        for T_ in range(4):
            for hf in range(2): a(f"ds_read_b64_tr_b16 {vr(RAW+4*T_+2*hf,2)}, v{TA+T_} offset:{4096*io+2048*hf}")
        for T_ in range(4):
            a(f"s_waitcnt lgkmcnt({6-2*T_})")
            u = U + 12 * (T_ & 1)
            for j in range(4):
                a(f"v_lshlrev_b32 v{u+2*j}, 16, v{RAW+4*T_+j}\nv_and_b32 v{u+2*j+1}, s69, v{RAW+4*T_+j}")
                a(f"v_dot2_f32_bf16 v{BI+T_}, v{RAW+4*T_+j}, v{SS+j}, v{BI+T_}")
            for j in range(4): a(f"v_pk_mul_f32 {vr(u+2*j,2)}, {vr(u+2*j,2)}, {vr(CC+2*j,2)}")
            o = 100 + 4 * T_ + 16 * (io & 1)
            for j in range(4): a(f"v_cvt_pk_bf16_f32 v{o+j}, v{u+2*j}, v{u+2*j+1}")
            for j in range(4): a(f"v_dot2_f32_bf16 v{CS+T_}, v{o+j}, s35, v{CS+T_}")
            sb_ = 14 if T_ < 2 else 18
            a(f"global_store_dwordx4 v9, {vr(o,4)}, s[{sb_}:{sb_+1}] offset:{2048*(T_&1)}{SC}")
        if io < 4: add64(a, 14, 14, 4 * 4096); add64(a, 18, 18, 4 * 4096)
    a("s_nop 2")
    for T_ in range(4): a(f"v_permlane32_swap_b32 v{CS+T_}, v{BI+T_}")
    a("s_nop 0")
    for T_ in range(4): a(f"v_add_f32 v{CS+T_}, v{CS+T_}, v{BI+T_}")
    a("s_nop 1")
    for T_ in range(2): a(f"v_permlane16_swap_b32 v{CS+T_}, v{CS+2+T_}")
    a("s_nop 0")
    for T_ in range(2): a(f"v_add_f32 v{CS+T_}, v{CS+T_}, v{CS+2+T_}")
    Lsk = a.label("aux_sk")
    a(f"""v_lshrrev_b32 v2, 4, v0
    v_and_b32 v3, 15, v0
    v_lshlrev_b32 v2, 7, v2
    v_lshl_add_u32 v2, v3, 2, v2
    s_lshl_b32 s16, s3, 9
    s_add_u32 s16, s16, {RED}
    v_add_u32 v2, s16, v2
    ds_write2_b32 v2, v{CS}, v{CS+1} offset0:0 offset1:16
    s_waitcnt lgkmcnt(0)
    s_barrier
    s_cmp_ge_u32 s3, 2
    s_cbranch_scc1 {Lsk}
    s_lshl_b32 s16, s3, 8
    s_add_u32 s16, s16, {RED}
    v_lshlrev_b32 v3, 2, v0
    v_add_u32 v2, s16, v3
    ds_read2st64_b32 v[4:5], v2 offset0:0 offset1:2
    ds_read2st64_b32 v[6:7], v2 offset0:4 offset1:6
    s_lshl_b32 s16, s9, 1
    s_add_u32 s16, s16, s3
    s_mul_i32 s16, s16, {1728*4}
    s_lshl_b32 s17, s10, 8
    s_add_u32 s16, s16, s17
    s_add_u32 s16, s16, {WS['CSB']}""")
    add64(a, 14, 12, "s16")
    a(f"""s_waitcnt lgkmcnt(0)
    v_add_f32 v4, v4, v5
    v_add_f32 v6, v6, v7
    v_add_f32 v4, v4, v6
    global_store_dword v3, v4, s[14:15]{SC}
    {Lsk}:""")
    a.stamp(9)
    a(f"s_branch {Lg1}")

    a(f"""{Lwd}:
    s_sub_u32 s8, s8, 54
    s_min_u32 s46, s8, 39
    s_lshl_b32 s46, s46, 1
    s_add_u32 s46, s46, 120
    s_add_u32 s47, s46, 1
    s_waitcnt lgkmcnt(0)""")
    M0, M1, SR = 100, 128, 160
    mod_issue(a, M0, 46, 40, 42); mod_issue(a, M1, 47, 40, 42)
    tag_issue(a, 212)
    a(f"s_waitcnt vmcnt({NMODLD+1})")
    mod_compute(a, M0, 60, 65536)
    a("s_waitcnt vmcnt(0)")
    mod_compute(a, M1, 60, 65536 + 1024)
    L0, L1 = a.label("aux_f0"), a.label("aux_f1")
    a(f"""s_waitcnt lgkmcnt(0)
    s_barrier
    s_cmp_ge_u32 s8, 40
    s_cbranch_scc1 {L1}
    s_cmp_lg_u32 s3, 0
    s_cbranch_scc1 {L0}""")
    mod_final(a, 46, 60, 65536)
    a(f"{L0}:\ns_cmp_lg_u32 s3, 1\ns_cbranch_scc1 {L1}")
    mod_final(a, 47, 60, 65536 + 1024)
    a(f"{L1}:")
    a.stamp(3)
    tag_check(a, 212)
    publish(a, 1, 16)
    a.stamp(4)
    Lgb, Ldone = a.label("aux_gb"), a.label("aux_done")
    a(f"""s_cmp_eq_u32 s8, 41
    s_cbranch_scc1 {Lgb}
    s_lshl_b32 s8, s8, 2
    s_add_u32 s8, s8, s3
    s_cmp_ge_u32 s8, 135
    s_cbranch_scc1 {Ldone}
    s_lshl_b32 s8, s8, 1
    v_lshrrev_b32 v2, 4, v0
    v_and_b32 v3, 15, v0
    v_lshlrev_b32 v4, 1, v2
    v_xor_b32 v4, v4, v3
    v_mul_u32_u24 v2, 1280, v2
    v_lshl_add_u32 v5, v4, 4, v2
    v_xor_b32 v4, 8, v4
    v_lshl_add_u32 v6, v4, 4, v2
    v_add_u32 v6, {4*1280}, v6
    s_lshl_b32 s16, s3, 14""")
    for un in range(2):
        a(f"""s_add_u32 s9, s8, {un}
        s_mul_i32 s10, s9, 52429
        s_lshr_b32 s10, s10, 18
        s_mul_i32 s11, s10, 5
        s_sub_u32 s11, s9, s11
        s_mul_i32 s17, s10, {32*1280}
        s_lshl_b32 s18, s11, 8
        s_add_u32 s17, s17, s18""")
        add64(a, 4, 6, "s17")
        a(f"s_lshl_b32 s17, s9, 13\ns_add_u32 s17, s17, {WS['WD']}")
        add64(a, 20 + 2 * un, 12, "s17")
        for u in range(8):
            dma(a, 5 + (u & 1), 4, "s16", NT)
            a("s_add_u32 s16, s16, 1024")
            if u & 1 and u < 7: add64(a, 4, 4, 8 * 1280)
    a("s_lshl_b32 s16, s3, 14")
    xtile_tr_addrs(a, 10, 16)
    a("v_lshlrev_b32 v9, 4, v0")
    for un in range(2):
        a("s_waitcnt vmcnt(8)")
        for dt in range(8):
            for hf in range(2): a(f"ds_read_b64_tr_b16 {vr(32+32*un+4*dt+2*hf,2)}, v{10+dt} offset:{8192*un+4096*hf}")
            if dt == 3: a("s_waitcnt lgkmcnt(0)")
        add64(a, 24, 20 + 2 * un, 4096)
        for dt in range(8):
            if dt == 4: a("s_waitcnt lgkmcnt(0)")
            sb_ = 20 + 2 * un if dt < 4 else 24
            a(f"global_store_dwordx4 v9, {vr(32+32*un+4*dt,4)}, s[{sb_}:{sb_+1}] offset:{1024*(dt&3)}{SC}")
    a(f"s_branch {Ldone}\n{Lgb}:")
    a("v_lshrrev_b32 v19, 2, v0\nv_lshlrev_b32 v19, 4, v19\nv_and_or_b32 v19, v0, 3, v19\nv_add_u32 v19, 12, v19")
    poll(a, 1, None, 40, 16, idxreg=19)
    a(f"""s_lshl_b32 s14, s3, 6
    v_add_u32 v5, s14, v0
    v_min_u32 v5, 159, v5
    v_lshlrev_b32 v6, 4, v5""")
    add64(a, 14, 12, WS['MODP'] + 5 * 2560)
    for p in range(4):
        a(f"global_load_dwordx4 {vr(16+4*p,4)}, v6, s[14:15]{SC}")
        if p < 3: add64(a, 14, 14, 15360)
    add64(a, 14, 12, WS['GB'])
    a("s_waitcnt vmcnt(0)")
    for h in range(2):
        a(f"v_pk_add_f32 {vr(16+2*h,2)}, {vr(16+2*h,2)}, {vr(20+2*h,2)}")
        a(f"v_pk_add_f32 {vr(24+2*h,2)}, {vr(24+2*h,2)}, {vr(28+2*h,2)}")
    for h in range(2): a(f"v_pk_add_f32 {vr(16+2*h,2)}, {vr(16+2*h,2)}, {vr(24+2*h,2)}")
    for i in range(4): rbf16(a, 16 + i, 16 + i)
    a(f"global_store_dwordx4 v6, v[16:19], s[14:15]{SC}\n{Ldone}:")
    a.stamp(9)

NWD0 = int(os.environ.get("NWD0", "16"))
NWD1 = int(os.environ.get("NWD1", "32"))
WD_FIRST = int(os.environ.get("WD_FIRST", "2")); WD_LAST = int(os.environ.get("WD_LAST", "18"))
NWD2 = int(os.environ.get("NWD2", "12"))
G2MAP = int(os.environ.get("G2MAP", "4"))
def wd_reg(i):
    order = list(range(64, 256, 4)) + list(range(0, 64, 4))
    return ar(order[i], 4) if i < 64 else vr(232 + 4 * (i - 64), 4)
def wd_load(i):
    st, d = divmod(i, 5)
    return f"s_add_u32 s47, s46, {st*4*40960}\nbuffer_load_dwordx4 {wd_reg(i)}, v{9 if d < 4 else 8}, s[40:43], s47 offen offset:{1024*(d&3)}{SC}"

class VM:
    def __init__(self): self.q = []
    def add(self, tag): self.q.append(tag)
    def wait(self, tags):
        idx = [i for i, t in enumerate(self.q) if t in tags]
        if not idx: return None
        n = len(self.q) - 1 - max(idx)
        self.q = self.q[max(idx) + 1:]
        assert n <= 63
        return f"s_waitcnt vmcnt({n})"

def phase_g1(a):
    Lw3, Lepi3, Lg2 = a.label("g1_w3"), a.label("g1_epi3"), a.label("g2")
    a(f"""s_lshr_b32 s4, s2, 3
    s_bfe_u32 s5, s2, 0x10002
    s_lshl_b32 s5, s5, 3
    s_and_b32 s6, s4, 7
    s_add_u32 s5, s5, s6
    s_and_b32 s6, s2, 3
    s_lshl_b32 s6, s6, 2
    s_lshr_b32 s4, s4, 3
    s_add_u32 s6, s6, s4
    s_mul_i32 s7, s6, 3
    s_add_u32 s7, s7, s3
    s_min_u32 s8, s6, 11
    s_lshr_b32 s9, s8, 1
    s_add_u32 s9, s9, 48
    s_and_b32 s8, s8, 1
    s_cmp_eq_u32 s3, 3
    s_cselect_b32 s7, s9, s7
    s_cselect_b32 s8, s8, 0
    v_lshrrev_b32 v2, 4, v0
    v_and_b32 v3, 15, v0
    v_lshlrev_b32 v4, 1, v2
    v_xor_b32 v4, v4, v3
    v_lshlrev_b32 v2, 12, v2
    s_lshl_b32 s9, s3, 15
    s_lshl_b32 s10, s5, 8
    s_add_u32 s9, s9, s10
    v_add_u32 v2, s9, v2
    v_lshl_add_u32 v5, v4, 4, v2
    v_xor_b32 v4, 8, v4
    v_lshl_add_u32 v6, v4, 4, v2
    v_add_u32 v6, {4*4096}, v6
    v_lshlrev_b32 v9, 4, v0
    v_add_u32 v8, 4096, v9
    s_mul_i32 s9, s7, {20*4096}
    s_add_u32 s9, s9, {WS['WP']}""")
    add64(a, 14, 12, WS['X1T']); srd(a, 16, 14, 640 * 4096)
    add64(a, 14, 12, "s9"); srd(a, 20, 14, 20 * 4096)
    if G2MAP == 4:
        a("""s_lshr_b32 s4, s2, 3
        s_bfe_u32 s44, s2, 0x20001
        s_lshl_b32 s44, s44, 3
        s_and_b32 s45, s4, 7
        s_add_u32 s44, s44, s45
        s_and_b32 s45, s2, 1
        s_lshl_b32 s45, s45, 2
        s_lshr_b32 s4, s4, 3
        s_add_u32 s45, s45, s4""")
    else:
        a("""s_and_b32 s44, s2, 7
        s_lshl_b32 s44, s44, 2
        s_bfe_u32 s45, s2, 0x20003
        s_add_u32 s44, s44, s45
        s_lshr_b32 s45, s2, 5""")
    a(f"s_mul_i32 s9, s45, 5120\ns_add_u32 s10, s9, {WS['WD']}")
    add64(a, 14, 12, "s10"); srd(a, 40, 14, 0)
    a(f"""s_sub_u32 s42, {54*40960}, s9
    s_mul_i32 s46, s3, 40960
    s_lshl_b32 s24, s8, 11
    s_lshl_b32 s26, s3, 11""")
    ACC, XF, TA, CB = 128, 64, 10, 20
    xtile_tr_addrs(a, TA)
    for i in range(4): a(f"v_mov_b32 v{56+i}, 0x3f803f80")
    a(f"""v_lshrrev_b32 v2, 4, v0
    v_lshlrev_b32 v2, 4, v2
    s_lshl_b32 s9, s7, 7
    s_lshl_b32 s10, s8, 6
    s_add_u32 s9, s9, s10
    s_add_u32 s9, s9, {WS['CSB']}""")
    add64(a, 14, 12, "s9")
    a(f"""s_lshr_b32 s9, s7, 1
    s_add_u32 s9, s9, 160
    v_mul_u32_u24 v60, 27, v0
    v_add_u32 v60, s9, v60
    v_add_u32 v61, 212, v0
    v_cmp_gt_u32 vcc, 2, v0
    s_nop 1
    v_cndmask_b32 v60, v61, v60, vcc""")
    publish(a, 2, 52)
    a.stamp(10)
    poll(a, 2, None, 36, 52, idxreg=60)
    a.stamp(11)
    def xd(k):
        free = (k & 7) * 8192
        return [(None, f"s_add_u32 m0, s26, {free}\ns_mov_b32 s25, {k*0x20000}"), (("X", k), f"buffer_load_dwordx4 v5, s[16:19], s25 offen{SC} lds"),
                (None, f"s_add_u32 m0, s26, {free+1024}"), (("X", k), f"buffer_load_dwordx4 v6, s[16:19], s25 offen{SC} lds")]
    def wl(k, nfr):
        return [(("W", k), (f"s_add_u32 s27, s24, {4096*k}\n" if f == 0 else "") + f"buffer_load_dwordx4 {ar(16*(k&3)+4*f,4)}, v9, s[20:23], s27 offen offset:{1024*f}{SC}") for f in range(nfr)]
    def trreads(k):
        return [(None, f"ds_read_b64_tr_b16 {vr(XF+32*(k&1)+4*m+2*hf,2)}, v{TA+m} offset:{8192*(k&7)+4096*hf}") for m in range(8) for hf in range(2)]
    def body(nfr, w3):
        vm = VM()
        def emit(items, nop=False):
            for t, x in items:
                a(x)
                if t: vm.add(t)
                elif nop: a("s_nop 0")
        for mt_ in range(4):
            for h in range(nfr // 2): a(f"global_load_dwordx4 {vr(CB+16*h+4*mt_,4)}, v2, s[14:15] offset:{64*h}{SC}")
            if mt_ < 3: add64(a, 14, 14, 1728 * 4)
        for j in range(3): emit(wl(j, nfr))
        for i in range(NWD0): a(wd_load(i))
        a("s_lshl_b32 s9, s3, 6")
        poll(a, 2, "s9", 64, 52)
        vm.q = []
        a("s_barrier")
        a.stamp(12)
        for j in range(4): emit(xd(j), True)
        a(vm.wait([("X", 0)]) + "\ns_barrier")
        emit(trreads(0))
        a.stamp(13)
        wdi = NWD0
        for k in range(20):
            w = vm.wait([("W", k), ("X", k + 1)])
            a("s_waitcnt lgkmcnt(0)")
            if w: a(w)
            if k < 19: a("s_barrier")
            slots = [[] for _ in range(32)]
            if k < 19:
                for i, e in enumerate(trreads(k + 1)): slots[i].append(e)
            mem = []
            if k + 3 < 20: mem += wl(k + 3, nfr)
            if k + 4 < 20: mem += xd(k + 4)
            if WD_FIRST <= k < WD_LAST:
                n = (NWD1 * (k + 1 - WD_FIRST)) // (WD_LAST - WD_FIRST) - (NWD1 * (k - WD_FIRST)) // (WD_LAST - WD_FIRST)
                for _ in range(n): mem.append((("D", wdi), wd_load(wdi))); wdi += 1
            for i, e in enumerate(mem): slots[16 + i].append(e)
            j = 0
            for m in range(8):
                for f in range(4):
                    xb = vr(XF + 32 * (k & 1) + 4 * m, 4)
                    A_ = vr(56, 4) if (w3 and f == 2) else xb if (w3 and f == 3) else ar(16 * (k & 3) + 4 * f, 4)
                    d = vr(ACC + 32 * f + 4 * m, 4)
                    a(f"v_mfma_f32_16x16x32_bf16 {d}, {A_}, {xb}, {d if k else '0'}")
                    emit(slots[j]); j += 1
        assert wdi == NWD0 + NWD1
        a.stamp(14)
    STL = 65536
    def epilogue(nh):
        a(f"""v_and_b32 v2, 15, v0
        v_lshlrev_b32 v2, 3, v2
        v_add_u32 v2, {STL}, v2
        s_mul_i32 s9, s5, {2*54}
        s_add_u32 s9, s9, s7
        s_lshl_b32 s9, s9, 12
        s_lshl_b32 s10, s8, 3
        s_add_u32 s9, s9, s10
        s_add_u32 s9, s9, {WS['HH']}""")
        add64(a, 14, 12, "s9"); add64(a, 28, 14, 54 * 4096)
        a("s_barrier")
        for m in range(8): a(f"ds_read_b64 {vr(64+2*m,2)}, v2 offset:{128*m}")
        for m in range(8):
            a(f"s_waitcnt lgkmcnt({7-m})")
            st_ = vr(64 + 2 * m, 2); o = 96 + 4 * (m & 3)
            for h in range(nh):
                G, U = ACC + 64 * h + 4 * m, ACC + 64 * h + 32 + 4 * m
                c = CB + 16 * h; t = 80 + 8 * h
                for p in range(2):
                    a(f"v_pk_fma_f32 {vr(t+2*p,2)}, {vr(c+2*p,2)}, {st_}, {vr(c+4+2*p,2)} op_sel:[0,1,0] op_sel_hi:[1,1,1]")
                    a(f"v_pk_fma_f32 {vr(t+4+2*p,2)}, {vr(c+8+2*p,2)}, {st_}, {vr(c+12+2*p,2)} op_sel:[0,1,0] op_sel_hi:[1,1,1]")
                for p in range(2):
                    a(f"v_pk_fma_f32 {vr(G+2*p,2)}, {vr(G+2*p,2)}, {st_}, {vr(t+2*p,2)} op_sel_hi:[1,0,1]")
                    a(f"v_pk_fma_f32 {vr(U+2*p,2)}, {vr(U+2*p,2)}, {st_}, {vr(t+4+2*p,2)} op_sel_hi:[1,0,1]")
                for r in range(4): a(f"v_max_f32 v{G+r}, 0, v{G+r}")
                for p in range(2): a(f"v_pk_mul_f32 {vr(G+2*p,2)}, {vr(G+2*p,2)}, {vr(U+2*p,2)}")
                for p in range(2): a(f"v_cvt_pk_bf16_f32 v{o+2*h+p}, v{G+2*p}, v{G+2*p+1}")
            sb_ = 14 if m < 4 else 28
            a(f"global_store_dwordx{2*nh} v9, {vr(o,2*nh)}, s[{sb_}:{sb_+1}] offset:{1024*(m&3)}{SC}")
    a(f"s_cmp_eq_u32 s3, 3\ns_cbranch_scc1 {Lw3}")
    body(4, False)
    epilogue(2)
    a(f"s_branch {Lg2}\n{Lw3}:")
    a(f"""v_and_b32 v3, 3, v0
    v_cmp_eq_u32 s[30:31], 1, v3
    v_cmp_eq_u32 s[32:33], 2, v3
    v_cmp_eq_u32 s[34:35], 3, v3
    v_bfe_u32 v3, v0, 2, 2
    v_lshrrev_b32 v4, 4, v0
    v_cmp_eq_u32 s[36:37], v3, v4
    v_and_b32 v7, 15, v0
    v_lshlrev_b32 v7, 3, v7
    v_add_u32 v7, {STL}, v7""")
    body(2, True)
    a("s_mov_b64 exec, s[36:37]")
    for ins in range(10):
        for m in range(8):
            q = ACC + 96 + 4 * m
            a([f"v_mul_f32 v{ACC+64+4*m}, {INV640}, v{ACC+64+4*m}", f"v_cndmask_b32 v{q}, v{q}, v{q+1}, s[30:31]", f"v_cndmask_b32 v{q}, v{q}, v{q+2}, s[32:33]", f"v_cndmask_b32 v{q}, v{q}, v{q+3}, s[34:35]",
               f"v_mul_f32 v{q}, {INV640}, v{q}", f"v_fma_f32 v{q}, -v{ACC+64+4*m}, v{ACC+64+4*m}, v{q}",
               f"v_max_f32 v{q}, 0, v{q}", f"v_add_f32 v{q}, 0x3727c5ac, v{q}", f"v_rsq_f32 v{q}, v{q}",
               f"v_mul_f32 v{q+1}, -v{ACC+64+4*m}, v{q}\nds_write_b64 v7, {vr(q,2)} offset:{128*m}"][ins])
    a(f"""s_mov_b64 exec, -1
    s_waitcnt lgkmcnt(0)
    s_cmp_lt_u32 s6, 12
    s_cbranch_scc1 {Lepi3}
    s_barrier
    s_branch {Lg2}
    {Lepi3}:""")
    epilogue(1)
    a(f"{Lg2}:")

def phase_g2(a):
    a.stamp(15)
    n1 = NWD0 + NWD1
    for i in range(n1, n1 + NWD2): a(wd_load(i))
    a(f"s_load_dwordx2 s[30:31], s[0:1], {KA['out']}")
    for sg in range(4):
        a(f"""s_add_u32 s7, s3, {sg}
        s_and_b32 s7, s7, 3
        s_lshl_b32 s8, s7, 10
        v_add_u32 v{10+sg}, s8, v9""")
        if sg: a(f"s_mul_i32 s8, s7, {15*1024}\ns_add_u32 s8, s8, {(sg-1)*5*1024}\nv_add_u32 v{13+sg}, s8, v9")
    a(f"s_mul_i32 s8, s44, {54*4096}\ns_add_u32 s8, s8, {WS['HH']}")
    add64(a, 14, 12, "s8"); srd(a, 16, 14, 54 * 4096)
    ACC, XR, GB, SEL, HB = 152, 20, 40, 60, 64
    NB = 5
    a(f"""v_and_b32 v2, 15, v0
    v_lshrrev_b32 v3, 4, v0
    v_lshlrev_b32 v4, 12, v2
    v_lshl_add_u32 v4, v3, 4, v4
    v_lshlrev_b32 v18, 4, v3
    s_mul_i32 s8, s45, {80*4096}
    s_lshl_b32 s9, s44, 7
    s_add_u32 s8, s8, s9
    s_lshr_b32 s9, s3, 1
    s_lshl_b32 s9, s9, 6
    s_add_u32 s8, s8, s9
    s_add_u32 s8, s8, {WS['X1T']}
    s_add_u32 s14, s12, s8
    s_addc_u32 s15, s13, 0
    s_mul_i32 s8, s45, 320
    s_add_u32 s8, s8, {WS['GB']}
    s_add_u32 s26, s12, s8
    s_addc_u32 s27, s13, 0
    s_and_b32 s8, s3, 1
    s_lshl_b32 s8, s8, 4
    v_lshlrev_b32 v5, 3, v3
    v_sub_u32 v5, v2, v5
    v_add_u32 v5, s8, v5
    v_mov_b32 v6, 0x3f80
    v_mov_b32 v7, 0x3f800000""")
    for p in range(4):
        a(f"""v_cmp_eq_u32 vcc, {2*p}, v5
        v_cmp_eq_u32 s[28:29], {2*p+1}, v5
        s_nop 1
        v_cndmask_b32 v{SEL+p}, 0, v6, vcc
        v_cndmask_b32 v{SEL+p}, v{SEL+p}, v7, s[28:29]""")
    a(f"""s_lshr_b32 s8, s44, 4
    s_lshl_b32 s8, s8, 2
    s_bfe_u32 s9, s44, 0x30001
    s_lshl_b32 s9, s9, 3
    s_add_u32 s8, s8, s9
    v_bfe_u32 v147, v0, 2, 2
    v_and_b32 v146, 3, v0
    v_lshl_add_u32 v147, v146, 6, v147
    v_add_u32 v147, s8, v147
    s_lshl_b32 s24, s3, 12""")
    publish(a, 3, 148, vm=NWD2)
    a.stamp(16)
    poll(a, 3, None, 16, 144, idxreg=147)
    a.stamp(17)
    vm = VM()
    def hl(st):
        return [(st, (f"s_add_u32 s25, s24, {st*16384}\n" if sg == 0 else "") + f"buffer_load_dwordx4 {vr(HB+16*(st%NB)+4*sg,4)}, v{10+sg}, s[16:19], s25 offen{SC}") for sg in range(4)]
    rest = [(i // 5, wd_load(i)) for i in range(n1 + NWD2, 70)]
    for d in range(5):
        rest.append((99, f"global_load_dwordx4 {vr(XR+4*d,4)}, v4, s[14:15]{SC}\ns_add_u32 s14, s14, 0x10000\ns_addc_u32 s15, s15, 0"))
        rest.append((99, f"global_load_dwordx4 {vr(GB+4*d,4)}, v18, s[26:27] offset:{64*d}{SC}"))
    def emit(e): a(e[1]); vm.add(e[0])
    for st in range(NB - 1):
        for e in hl(st): emit(e)
    per = -(-len(rest) // 10)
    for st in range(14):
        a(vm.wait(list(range(st + 1))))
        ex = hl(st + NB - 1) if st + NB - 1 < 14 else []
        for _ in range(per):
            if rest: ex.append(rest.pop(0))
        for sg in ((0, 1, 2, 3) if st < 13 else (1, 2, 3, 0)):
            for d in range(5):
                t = vr(ACC + 20 * sg + 4 * d, 4)
                a(f"v_mfma_f32_16x16x32_bf16 {t}, {wd_reg(5*st+d)}, {vr(HB+16*(st%NB)+4*sg,4)}, {t if st else '0'}")
                if ex: emit(ex.pop(0))
                if st == 13 and sg in (3, 0): a(f"ds_write_b128 v{14 if sg == 3 else 15}, {vr(ACC+20*(1 if sg == 3 else 2)+4*d,4)} offset:{1024*d}")
        assert not ex
    assert not rest
    a.stamp(18)
    XD = 64
    a("s_waitcnt vmcnt(0)")
    for d in range(5):
        a(f"v_mfma_f32_16x16x32_bf16 {vr(XD+4*d,4)}, {vr(XR+4*d,4)}, {vr(SEL,4)}, 0")
        a(f"ds_write_b128 v16, {vr(ACC+60+4*d,4)} offset:{1024*d}")
    a(f"""s_mul_i32 s8, s3, {15*1024}
    v_add_u32 v17, s8, v9
    v_mul_u32_u24 v4, 1280, v2
    v_lshl_add_u32 v4, v3, 3, v4
    s_lshl_b32 s8, s44, 2
    s_add_u32 s8, s8, s3
    s_mul_i32 s8, s8, {16*1280}
    s_mul_i32 s9, s45, 160
    s_add_u32 s8, s8, s9
    s_waitcnt lgkmcnt(0)""")
    add64(a, 30, 30, "s8")
    a("s_barrier")
    for d in range(5):
        for sg in range(1, 4): a(f"ds_read_b128 {vr(ACC+20*sg+4*d,4)}, v17 offset:{1024*(5*(sg-1)+d)}")
    for d in range(5):
        a(f"s_waitcnt lgkmcnt({12-3*d})")
        t = ACC + 4 * d
        for p in range(2):
            a(f"v_pk_add_f32 {vr(t+2*p,2)}, {vr(t+2*p,2)}, {vr(t+20+2*p,2)}")
            a(f"v_pk_add_f32 {vr(t+40+2*p,2)}, {vr(t+40+2*p,2)}, {vr(t+60+2*p,2)}")
        for p in range(2): a(f"v_pk_add_f32 {vr(t+2*p,2)}, {vr(t+2*p,2)}, {vr(t+40+2*p,2)}")
        for p in range(2): a(f"v_pk_fma_f32 {vr(t+2*p,2)}, {vr(t+2*p,2)}, {vr(GB+4*d+2*p,2)}, {vr(XD+4*d+2*p,2)}")
        a(f"v_cvt_pk_bf16_f32 v{t}, v{t}, v{t+1}\nv_cvt_pk_bf16_f32 v{t+1}, v{t+2}, v{t+3}")
        a(f"global_store_dwordx2 v4, {vr(t,2)}, s[30:31] offset:{32*d}")

def build():
    a = A()
    hdr = open("cdna_kernels/" + NAME + ".s.ref").read().split("; Override launch")[0]
    a(f'.amdgcn_target "amdgcn-amd-amdhsa--gfx950"\n.text\n.globl {KNAME}\n.p2align 8\n.type {KNAME},@function\n{KNAME}:')
    Lend, Laux, Lg1, Lnt = a.label("end"), a.label("aux"), a.label("g1"), a.label("notag")
    if DIAG:
        for i in range(NSTAMP): a(f"s_mov_b32 s{48+i}, 0")
    a.stamp(0)
    a(f"""s_cmp_ge_u32 s2, 256
    s_cbranch_scc1 {Lend}
    s_load_dwordx2 s[12:13], s[0:1], {KA['ws']}
    s_load_dwordx2 s[72:73], s[0:1], {KA['dbg']}
    v_lshrrev_b32 v1, 6, v0
    v_and_b32 v0, 63, v0
    v_readfirstlane_b32 s3, v1
    s_mov_b32 s69, 0xffff0000
    s_cmp_lg_u32 s2, 255
    s_cbranch_scc1 {Lnt}
    s_cmp_lg_u32 s3, 0
    s_cbranch_scc1 {Lnt}
    s_memrealtime s[70:71]
    v_mov_b32 v4, 0
    s_waitcnt lgkmcnt(0)
    s_or_b32 s70, s70, 1
    v_mov_b32 v2, s70
    v_mov_b32 v3, s71
    s_mov_b64 exec, 1
    global_store_dwordx2 v4, v[2:3], s[72:73]{SC}
    s_mov_b64 exec, -1
    {Lnt}:
    s_cmp_ge_u32 s2, 160
    s_cbranch_scc1 {Laux}""")
    phase_conv(a, Lg1)
    a(f"{Laux}:")
    phase_aux(a, Lg1)
    a(f"{Lg1}:")
    phase_g1(a)
    phase_g2(a)
    if DIAG:
        a("s_waitcnt vmcnt(0)")
        a.stamp(19)
        AMP = os.environ.get("AMP", "")
        if AMP:
            i, wgsel = (int(x) for x in AMP.split(":"))
            Lsp, Lsk = a.label("spin"), a.label("nospin")
            a(f"""s_cmp_lg_u32 s2, {wgsel}
            s_cbranch_scc1 {Lsk}
            s_sub_u32 s4, s{48+i}, s48
            s_lshl_b32 s4, s4, 3
            {Lsp}:
            s_memrealtime s[76:77]
            s_waitcnt lgkmcnt(0)
            s_sub_u32 s5, s76, s67
            s_cmp_lt_u32 s5, s4
            s_cbranch_scc1 {Lsp}
            {Lsk}:""")
        a(f"""s_lshl_b32 s4, s2, 2
        s_add_u32 s4, s4, s3
        s_lshl_b32 s4, s4, 7
        s_add_u32 s4, s4, {TS_OFF}
        v_mov_b32 v0, s4
        s_mov_b64 exec, 1""")
        for i in range(NSTAMP): a(f"v_mov_b32 v2, s{48+i}\nglobal_store_dword v0, v2, s[12:13] offset:{4*i}\ns_nop 1")
    a(f"{Lend}:\ns_endpgm\ncode_end:")
    kd = f""".section .rodata,"a"
.p2align 6
.amdhsa_kernel {KNAME}
  .amdhsa_next_free_vgpr 512
  .amdhsa_next_free_sgpr 102
  .amdhsa_accum_offset 256
  .amdhsa_group_segment_fixed_size 0
  .amdhsa_kernarg_size 120
  .amdhsa_user_sgpr_count 2
  .amdhsa_user_sgpr_kernarg_segment_ptr 1
  .amdhsa_system_sgpr_workgroup_id_x 1
.end_amdhsa_kernel
"""
    return hdr + f"; @launch grid=(256,1,1) block=(256,1,1) lds={LDS_BYTES}\n" + a.text() + kd

if __name__ == "__main__":
    open(sys.argv[1] if len(sys.argv) > 1 else "p.s", "w").write(build())
```

```python
import sys, os
NAME = "adaLN_cond__ssm_conv_h3__glu_gated_reglu__prompt"
KNAME = NAME + "_kernel"
S, D, F = 2048, 640, 1728
KA = dict(x=0, k=8, v=16, shift=24, ssm=32, ssmD=40, bx=48, wg=56, wu=64, wd=72, c=80, wmod=88, out=96, dbg=104, ws=112)
WS = {}
_off = 0
def alloc(name, n):
    global _off
    WS[name] = _off
    _off += (n + 4095) // 4096 * 4096
alloc("FL", 6 * 256 * 128)
alloc("KVT", 640 * 4096 + 4096)
alloc("XTT", 640 * 4096)
alloc("ST", 2 * 2048 * 4)
alloc("MOD", 3840 * 4)
alloc("X1T", 640 * 4096)
alloc("X1S", 640 * 4096)
alloc("ST2", 2048 * 8)
alloc("CSB", 4 * 1728 * 4)
alloc("WD", 54 * 40 * 1024)
alloc("HH", 32 * 54 * 4096)
DIAG = bool(int(os.environ.get("DIAG", "0")))
EXP = os.environ.get("EXP", "").split(",")
TS_OFF = 64 << 20
NSTAMP = 20
SLEEP = int(os.environ.get("SLEEP", "1"))
FLMASK = os.environ.get("FLMASK", "0xffff")
NT = " nt"
SC = " sc1"
INV640 = f"{1.0/640:#.9g}"

class A:
    def __init__(self):
        self.l = []; self.n = 0
    def __call__(self, s):
        for x in s.strip("\n").split("\n"):
            x = x.strip()
            if x: self.l.append(("" if x.endswith(":") else "    ") + x)
    def label(self, p="L"):
        self.n += 1
        return f"{p}_{self.n}"
    def stamp(self, i):
        if DIAG: self(f"{'s_memtime' if 'cyc' in EXP else 's_memrealtime'} s[76:77]\ns_waitcnt lgkmcnt(0)\ns_mov_b32 s{48+i}, s76")
    def text(self): return "\n".join(self.l) + "\n"

def vr(b, n=1, p="v"): return f"{p}{b}" if n == 1 else f"{p}[{b}:{b+n-1}]"
def ar(b, n=1): return vr(b, n, "a")
def srd(a, dst, base, nbytes):
    a(f"s_mov_b32 s{dst}, s{base}\ns_and_b32 s{dst+1}, s{base+1}, 0xffff\ns_mov_b32 s{dst+2}, {nbytes}\ns_mov_b32 s{dst+3}, 0x20000")
def add64(a, dst, base, off):
    a(f"s_add_u32 s{dst}, s{base}, {off}\ns_addc_u32 s{dst+1}, s{base+1}, 0")
def dma(a, voff, sbase, m0, extra=""):
    a(f"s_mov_b32 m0, {m0}\ns_nop 0\nglobal_load_lds_dwordx4 v{voff}, s[{sbase}:{sbase+1}]{extra}")
def rbf16(a, dst, src):
    a(f"v_cvt_pk_bf16_f32 v{dst}, v{src}, v{src}\nv_lshlrev_b32 v{dst}, 16, v{dst}")

def get_tag(a, vt):
    L, Ld = a.label("tag"), a.label("tagd")
    a(f"""s_mov_b32 s74, 0x100000
    v_mov_b32 v{vt+2}, 0
    {L}:
    global_load_dwordx2 {vr(vt,2)}, v{vt+2}, s[72:73]{SC}
    s_waitcnt vmcnt(0)
    v_readfirstlane_b32 s70, v{vt}
    v_readfirstlane_b32 s71, v{vt+1}
    s_sub_u32 s74, s74, 1
    s_cbranch_scc1 {Ld}
    s_cmp_eq_u64 s[70:71], 0
    s_cbranch_scc1 {L}
    {Ld}:""")

def publish(a, phase, vt, vm=0, nosync=False):
    L = a.label("pub")
    if not nosync: a(f"s_waitcnt vmcnt({vm})\ns_barrier")
    a(f"""s_cmp_lg_u32 s3, 0
    s_cbranch_scc1 {L}
    s_lshl_b32 s74, s2, 7
    s_add_u32 s74, s74, {WS['FL'] + phase*256*128}
    v_lshl_add_u32 v{vt+2}, v0, 3, s74
    v_mov_b32 v{vt}, s70
    v_mov_b32 v{vt+1}, s71
    s_mov_b64 exec, {FLMASK}
    global_store_dwordx2 v{vt+2}, {vr(vt,2)}, s[12:13]{SC}
    s_mov_b64 exec, -1
    {L}:""")

def poll(a, phase, first, count, vt, idxreg=None):
    L, Ld = a.label("poll"), a.label("polld")
    if idxreg is None:
        a(f"v_add_u32 v{vt+2}, {first}, v0")
        idxreg = vt + 2
    a(f"""v_lshlrev_b32 v{vt+2}, 7, v{idxreg}
    v_add_u32 v{vt+2}, {WS['FL'] + phase*256*128}, v{vt+2}
    s_mov_b32 s74, 0x100000""")
    if count < 64: a(f"s_mov_b64 exec, {(1 << count) - 1:#x}" if count <= 31 else f"s_mov_b32 exec_hi, {(1 << (count - 32)) - 1:#x}")
    a(f"""{L}:
    global_load_dwordx2 {vr(vt,2)}, v{vt+2}, s[12:13]{SC}
    s_waitcnt vmcnt(0)
    v_cmp_ne_u64 vcc, s[70:71], {vr(vt,2)}
    s_and_b64 exec, exec, vcc
    s_cbranch_execz {Ld}
    s_sleep {SLEEP}
    s_sub_u32 s74, s74, 1
    s_cbranch_scc0 {L}
    {Ld}:
    s_mov_b64 exec, -1""")

def poll_multi(a, phase, count, vt):
    L, Ld = a.label("pollm"), a.label("pollmd")
    a(f"""v_lshlrev_b32 v{vt+6}, 7, v0
    v_add_u32 v{vt+6}, {WS['FL'] + phase*256*128}, v{vt+6}
    v_add_u32 v{vt+7}, {64*128}, v{vt+6}
    v_add_u32 v{vt+8}, {128*128}, v{vt+6}
    s_mov_b64 s[38:39], -1
    s_mov_b64 s[10:11], -1
    s_mov_b32 s28, {(1 << (count - 128)) - 1:#x}
    s_mov_b32 s29, 0
    s_mov_b32 s74, 0x100000
    {L}:""")
    for i, m in enumerate(("s[38:39]", "s[10:11]", "s[28:29]")):
        Ls = a.label("pm")
        a(f"s_mov_b64 exec, {m}\ns_cbranch_execz {Ls}\nglobal_load_dwordx2 {vr(vt+2*i,2)}, v{vt+6+i}, s[12:13]{SC}\n{Ls}:")
    a("s_mov_b64 exec, -1\ns_waitcnt vmcnt(0)")
    for i, m in enumerate(("s[38:39]", "s[10:11]", "s[28:29]")):
        a(f"v_cmp_ne_u64 vcc, s[70:71], {vr(vt+2*i,2)}\ns_and_b64 {m}, {m}, vcc")
    a(f"""s_or_b64 vcc, s[38:39], s[10:11]
    s_or_b64 vcc, vcc, s[28:29]
    s_cbranch_scc0 {Ld}
    s_sleep {SLEEP}
    s_sub_u32 s74, s74, 1
    s_cbranch_scc0 {L}
    {Ld}:""")

def xtile_tr_addrs(a, dst, base_sgpr=None):
    a("""v_lshrrev_b32 v2, 2, v0
    v_and_b32 v3, 7, v2
    v_lshlrev_b32 v3, 1, v3
    v_bfe_u32 v4, v0, 1, 1
    v_or_b32 v3, v3, v4
    v_lshlrev_b32 v2, 8, v2
    v_and_b32 v4, 1, v0
    v_lshl_add_u32 v2, v4, 3, v2""")
    if base_sgpr is not None: a(f"v_add_u32 v2, s{base_sgpr}, v2")
    for m in range(8): a(f"v_xor_b32 v4, {2*m}, v3\nv_lshl_add_u32 v{dst+m}, v4, 4, v2")

def stats_issue(a, R, sx, srow):
    a(f"""s_lshl_b32 s14, s3, 4
    s_add_u32 s14, s14, s{srow}
    s_mul_i32 s14, s14, 1280
    v_lshrrev_b32 v{R+80}, 4, v0
    v_mul_u32_u24 v{R+80}, {1280-256}, v{R+80}
    v_lshl_add_u32 v{R+80}, v0, 4, v{R+80}""")
    add64(a, 14, sx, "s14")
    for gq in range(4):
        for i in range(5): a(f"global_load_dwordx4 {vr(R+20*gq+4*i,4)}, v{R+80}, s[14:15] offset:{256*i}{NT}")
        if gq < 3: add64(a, 14, 14, 4 * 1280)
def stats_compute(a, R, srow):
    T = R + 80
    a("s_mov_b32 s14, 0x3f803f80")
    for half in range(2):
        a(f"s_waitcnt vmcnt({11 if half == 0 else 1})")
        for i in range(20):
            for gq in (2 * half, 2 * half + 1):
                a(f"v_dot2_f32_bf16 v{T+2*gq}, v{R+20*gq+i}, s14, {'0' if i == 0 else f'v{T+2*gq}'}")
                a(f"v_dot2_f32_bf16 v{T+2*gq+1}, v{R+20*gq+i}, v{R+20*gq+i}, {'0' if i == 0 else f'v{T+2*gq+1}'}")
    a("s_nop 2")
    for rot in (8, 4, 2, 1):
        for j in range(8): a(f"v_add_f32_dpp v{T+j}, v{T+j}, v{T+j} row_ror:{rot} row_mask:0xf bank_mask:0xf")
    a(f"""v_and_b32 v{R}, 3, v0
    v_cmp_eq_u32 vcc, 1, v{R}
    v_cmp_eq_u32 s[14:15], 2, v{R}
    v_cmp_eq_u32 s[16:17], 3, v{R}
    v_lshrrev_b32 v{R+1}, 4, v0
    v_lshl_add_u32 v{R}, v{R}, 2, v{R+1}
    v_cndmask_b32 v{T}, v{T}, v{T+2}, vcc
    v_cndmask_b32 v{T+1}, v{T+1}, v{T+3}, vcc
    v_cndmask_b32 v{T}, v{T}, v{T+4}, s[14:15]
    v_cndmask_b32 v{T+1}, v{T+1}, v{T+5}, s[14:15]
    v_cndmask_b32 v{T}, v{T}, v{T+6}, s[16:17]
    v_cndmask_b32 v{T+1}, v{T+1}, v{T+7}, s[16:17]
    v_mul_f32 v{T}, {INV640}, v{T}
    v_mul_f32 v{T+1}, {INV640}, v{T+1}
    v_fma_f32 v{T+1}, -v{T}, v{T}, v{T+1}
    v_max_f32 v{T+1}, 0, v{T+1}
    v_add_f32 v{T+1}, 0x3727c5ac, v{T+1}
    v_rsq_f32 v{T+1}, v{T+1}
    s_lshl_b32 s14, s3, 4
    s_add_u32 s14, s14, s{srow}
    s_lshl_b32 s14, s14, 3
    s_add_u32 s14, s14, {WS['ST']}
    v_mul_f32 v{T}, -v{T}, v{T+1}
    v_and_b32 v{R+1}, 4, v0
    v_cmp_eq_u32 vcc, 0, v{R+1}
    v_lshl_add_u32 v{R}, v{R}, 2, s14
    v_lshl_add_u32 v{R}, v{R+1}, 4, v{R}
    v_cndmask_b32 v{T}, v{T}, v{T+1}, vcc
    s_mov_b32 exec_lo, 0xff00ff
    s_mov_b32 exec_hi, 0xff00ff
    global_store_dword v{R}, v{T}, s[12:13]{SC}
    s_mov_b64 exec, -1""")

def mod_slab(a, sslab, sc, sw, ldsoff):
    R, CR, SV, ACC, U = 100, 180, 16, 56, 64
    a(f"""s_lshl_b32 s14, s3, 3
    v_lshrrev_b32 v2, 3, v0
    v_add_u32 v2, s14, v2
    v_mul_u32_u24 v3, 40, v2
    global_load_dwordx4 {vr(CR,4)}, v3, s[{sc}:{sc+1}]
    global_load_dwordx4 {vr(CR+4,4)}, v3, s[{sc}:{sc+1}] offset:16
    global_load_dwordx2 {vr(CR+8,2)}, v3, s[{sc}:{sc+1}] offset:32
    v_mul_u32_u24 v2, {20*7680}, v2
    v_and_b32 v3, 7, v0
    v_lshl_add_u32 v2, v3, 4, v2
    s_lshl_b32 s16, s{sslab}, 7""")
    add64(a, 14, sw, "s16")
    for i in range(20):
        a(f"global_load_dwordx4 {vr(R+4*i,4)}, v2, s[14:15]{NT}")
        if i < 19: add64(a, 14, 14, 7680)
        if i == 9:
            a("s_waitcnt vmcnt(10)")
            for j in range(10): a(f"v_lshlrev_b32 v{SV+4*j+1}, 16, v{CR+j}\nv_and_b32 v{SV+4*j+3}, s69, v{CR+j}")
            for j in range(20): a(f"v_mul_f32 v{SV+2*j}, 0xbfb8aa3b, v{SV+2*j+1}")
            for j in range(20): a(f"v_exp_f32 v{SV+2*j}, v{SV+2*j}")
            for j in range(20): a(f"v_add_f32 v{SV+2*j}, 1.0, v{SV+2*j}")
            for j in range(20): a(f"v_rcp_f32 v{SV+2*j}, v{SV+2*j}")
            for j in range(20): a(f"v_mul_f32 v{SV+2*j}, v{SV+2*j+1}, v{SV+2*j}")
            for j in range(10): a(f"v_cvt_pk_bf16_f32 v{SV+4*j+1}, v{SV+4*j}, v{SV+4*j+2}")
            for j in range(10): a(f"v_lshlrev_b32 v{SV+4*j}, 16, v{SV+4*j+1}\nv_and_b32 v{SV+4*j+2}, s69, v{SV+4*j+1}")
    tag_issue(a, 212)
    for i in range(20):
        a(f"s_waitcnt vmcnt({20-i if i < 19 else 0})")
        u = U + 8 * (i & 1)
        for j in range(4): a(f"v_lshlrev_b32 v{u+2*j}, 16, v{R+4*i+j}\nv_and_b32 v{u+2*j+1}, s69, v{R+4*i+j}")
        for j in range(4):
            if i == 0: a(f"v_pk_mul_f32 {vr(ACC+2*j,2)}, {vr(u+2*j,2)}, {vr(SV,2)} op_sel_hi:[1,0]")
            else: a(f"v_pk_fma_f32 {vr(ACC+2*j,2)}, {vr(u+2*j,2)}, {vr(SV+2*i,2)}, {vr(ACC+2*j,2)} op_sel_hi:[1,0,1]")
    a("s_nop 1")
    for j in range(4): a(f"v_permlane32_swap_b32 v{ACC+j}, v{ACC+4+j}")
    a("s_nop 0")
    for j in range(4): a(f"v_add_f32 v{ACC+j}, v{ACC+j}, v{ACC+4+j}")
    a("s_nop 1")
    for j in range(2): a(f"v_permlane16_swap_b32 v{ACC+j}, v{ACC+2+j}")
    a("s_nop 0")
    for j in range(2): a(f"v_add_f32 v{ACC+j}, v{ACC+j}, v{ACC+2+j}")
    a("s_nop 1")
    for j in range(2): a(f"v_add_f32_dpp v{ACC+j}, v{ACC+j}, v{ACC+j} row_ror:8 row_mask:0xf bank_mask:0xf")
    L = a.label("modfin")
    a(f"""s_lshl_b32 s14, s3, 8
    s_add_u32 s14, s14, {ldsoff}
    v_lshrrev_b32 v4, 4, v0
    v_lshlrev_b32 v3, 5, v3
    v_lshl_add_u32 v3, v4, 3, v3
    v_add_u32 v3, s14, v3
    ds_write_b64 v3, {vr(ACC,2)}
    s_waitcnt lgkmcnt(0)
    s_barrier
    s_cmp_lg_u32 s3, 0
    s_cbranch_scc1 {L}
    v_lshlrev_b32 v2, 2, v0
    v_add_u32 v3, {ldsoff}, v2
    ds_read2st64_b32 v[4:5], v3 offset0:0 offset1:1
    ds_read2st64_b32 v[6:7], v3 offset0:2 offset1:3
    s_lshl_b32 s14, s{sslab}, 8
    s_add_u32 s14, s14, {WS['MOD']}
    v_add_u32 v2, s14, v2
    s_waitcnt lgkmcnt(0)
    v_pk_add_f32 v[4:5], v[4:5], v[6:7]
    s_nop 0
    v_add_f32 v4, v4, v5""")
    rbf16(a, 4, 4)
    a(f"global_store_dword v2, v4, s[12:13]{SC}\n{L}:")

RW = 4608 + 4160 * 2
OF, OE, OO = 512, 4608, 4608 + 4160
KB = 68096; VB = KB + 17 * 1040; XB = VB + 16 * 1040; MRED = XB + 16 * 1040
WRING = 69632; STL = WRING + 65536; CSL = STL + 4096
LDS_BYTES = CSL + 2048

def tag_issue(a, vt):
    a(f"v_mov_b32 v{vt+2}, 0\nglobal_load_dwordx2 {vr(vt,2)}, v{vt+2}, s[72:73]{SC}")
def tag_check(a, vt):
    Ld = a.label("tagok")
    a(f"""v_readfirstlane_b32 s70, v{vt}
    v_readfirstlane_b32 s71, v{vt+1}
    s_cmp_lg_u64 s[70:71], 0
    s_cbranch_scc1 {Ld}""")
    get_tag(a, vt)
    a(f"{Ld}:")

def interleave(a, mfmas, fill, per=2, start=0):
    fill = list(fill)
    n = len(mfmas)
    for k, m in enumerate(mfmas):
        a(m)
        if k < start: continue
        take = min(per, -(-len(fill) // (n - k))) if per else 0
        take = max(take, 1) if fill else 0
        if k == n - 1: take = len(fill)
        for _ in range(take): a(fill.pop(0))

FLAG2 = f"s_mov_b64 exec, 1\nglobal_load_dwordx2 v[236:237], v240, s[12:13]{SC}\ns_mov_b64 exec, -1"
def flag2_setup(a):
    a(f"""s_and_b32 s74, s2, 63
    s_lshl_b32 s74, s74, 7
    s_add_u32 s74, s74, {WS['FL'] + 5*256*128}
    v_mov_b32 v240, s74
    v_mov_b32 v236, s70
    v_mov_b32 v237, s71""")
def flag2_check(a, first=False):
    Lok, Lsl, Lld = a.label("f2_ok"), a.label("f2_slow"), a.label("f2_ld")
    a("s_mov_b32 s74, 0x100000")
    if first: a(f"s_branch {Lld}")
    a(f"""{Lsl}:
    v_cmp_ne_u64 vcc, s[70:71], v[236:237]
    s_cbranch_vccz {Lok}
    s_sleep 4
    {Lld}:
    {FLAG2}
    s_waitcnt vmcnt(0)
    s_sub_u32 s74, s74, 1
    s_cbranch_scc0 {Lsl}
    {Lok}:""")
NWE = int(os.environ.get("NWE", "4"))
AORD = int(os.environ.get("AORD", "0"))
HK = int(os.environ.get("HK", "4")); HKF = int(os.environ.get("HKF", "3"))
def phase_conv(a, Lg1):
    a(f"""s_load_dwordx4 s[4:7], s[0:1], {KA['x']}
    s_load_dwordx4 s[8:11], s[0:1], {KA['v']}
    s_load_dwordx4 s[36:39], s[0:1], {KA['ssm']}
    s_load_dwordx4 s[40:43], s[0:1], {KA['c']}
    s_lshr_b32 s44, s2, 4
    s_and_b32 s45, s2, 15
    v_lshrrev_b32 v4, 3, v0
    v_and_b32 v5, 7, v0
    v_mul_u32_u24 v2, 1280, v4
    v_lshl_add_u32 v2, v5, 4, v2
    s_lshl_b32 s14, s45, 4
    s_add_u32 s14, s14, s3
    s_mul_i32 s14, s14, {8*1280}
    s_lshl_b32 s15, s44, 7
    s_add_u32 s14, s14, s15
    v_add_u32 v2, s14, v2
    v_add_u32 v3, {(-8*1280) & 0xffffffff}, v2
    s_lshl_b32 s14, s3, 3
    v_add_u32 v6, s14, v4
    s_lshl_b32 s14, s44, 9
    v_lshl_add_u32 v7, v6, 4, s14
    s_mul_i32 s28, s3, 1040
    s_mov_b32 s29, {32*1280}
    s_mov_b32 s30, {64*1280}
    s_mov_b32 s31, {96*1280}
    s_waitcnt lgkmcnt(0)""")
    srd(a, 16, 6, S * D * 2); srd(a, 20, 8, S * D * 2); srd(a, 24, 4, S * D * 2)
    Lh = a.label("nohalo")
    a(f"""s_cmp_lg_u32 s3, 0
    s_cbranch_scc1 {Lh}
    s_mov_b32 m0, {KB}
    s_nop 0
    buffer_load_dwordx4 v3, s[16:19], 0 offen{NT} lds
    {Lh}:""")
    SH = 8
    so = ["0", "s29", "s30", "s31"]
    def tile_dma(base, srdb):
        for i in range(4):
            a(f"s_add_u32 m0, s28, {base + 4*1040*i}\ns_nop 0\nbuffer_load_dwordx4 v2, s[{srdb}:{srdb+3}], {so[i]} offen{NT} lds")
    tile_dma(KB + 1040, 16); tile_dma(VB, 20)
    a(f"global_load_dwordx4 {vr(SH,4)}, v7, s[10:11]")
    code_prefetch(a)
    if AORD == 0: tile_dma(XB, 24)
    else: a("v_mov_b32 v243, v2")
    a(f"""    v_mul_u32_u24 v12, 1040, v5
    v_lshl_add_u32 v12, v6, 2, v12
    v_add_u32 v12, {KB}, v12
    v_lshlrev_b32 v13, 13, v6
    v_lshl_add_u32 v14, v5, 4, v13
    v_xor_b32 v3, 7, v5
    v_lshl_add_u32 v13, v3, 4, v13
    s_lshl_b32 s14, s44, 18
    s_lshl_b32 s15, s45, 8
    s_sub_u32 s32, s14, s15
    s_add_u32 s32, s32, {WS['KVT'] + 4096 + 240*16}
    s_add_u32 s34, s14, s15
    s_add_u32 s34, s34, {WS['XTT'] + 4096}""")
    add64(a, 32, 12, "s32"); add64(a, 34, 12, "s34")
    a(f"""s_lshl_b32 s8, s2, 2
    s_add_u32 s8, s8, s3
    s_mul_i32 s9, s3, {RW}
    s_add_u32 s9, s9, 16384
    s_lshl_b32 s10, s8, 12
    v_lshlrev_b32 v2, 4, v0
    v_and_b32 v4, 15, v0
    v_lshrrev_b32 v5, 4, v0
    v_mov_b32 v216, 0
    v_mov_b32 v217, 0
    v_lshl_add_u32 v6, v0, 3, s9
    ds_write_b64 v6, v[216:217]
    v_lshl_add_u32 v6, v4, 2, s9
    ds_write_b32 v6, v216 offset:{OE+4096}
    ds_write_b32 v6, v216 offset:{OO+4096}""")
    add64(a, 36, 36, "s10")
    a(f"s_add_u32 s11, s9, {OF}")
    if AORD < 2:
        for i in range(4): dma(a, 2, 36, "s11", f" offset:{1024*i}{NT}")
    a.stamp(1)
    a(f"s_waitcnt vmcnt({9 - 4*AORD}) lgkmcnt(0)\ns_barrier")
    a.stamp(2)
    SP, KR, VR_, KP, VP, KV, OUT = 16, 24, 46, 62, 84, 100, 116
    def rdk(h, lo, hi):
        for i in range(lo, hi):
            off = 8320 * h + (640 + 128 * i if i < 3 else 1040 + 128 * (i - 3))
            a(f"ds_read_b32 v{KR+11*h+i}, v12 offset:{off}")
    def rdv(h, lo, hi, base=VB, dst=VR_):
        for i in range(lo, hi): a(f"ds_read_b32 v{dst+8*h+i}, v12 offset:{base-KB + 8320*h + 128*i}")
    rdk(0, 0, 11); rdv(0, 0, 4)
    tag_issue(a, 212)
    a(f"""s_lshl_b32 s17, s8, 1
    v_mov_b32 v218, s17
    global_load_ushort v218, v218, s[38:39]
    v_lshlrev_b32 v{SP+0}, 16, v{SH+0}
    v_lshlrev_b32 v{SP+1}, 16, v{SH+2}
    v_and_b32 v{SP+2}, s69, v{SH+0}
    v_and_b32 v{SP+3}, s69, v{SH+2}
    v_lshlrev_b32 v{SP+4}, 16, v{SH+1}
    v_lshlrev_b32 v{SP+5}, 16, v{SH+3}
    v_and_b32 v{SP+6}, s69, v{SH+1}
    v_and_b32 v{SP+7}, s69, v{SH+3}""")
    def ks(h):
        for i in range(11): a(f"v_lshlrev_b32 v{KP+2*i}, 16, v{KR+11*h+i}\nv_and_b32 v{KP+2*i+1}, s69, v{KR+11*h+i}")
        for r in range(8): a(f"v_pk_mul_f32 {vr(KV+2*r,2)}, {vr(KP+2*r,2)}, {vr(SP+6,2)}")
        for j in (2, 1, 0):
            for r in range(8): a(f"v_pk_fma_f32 {vr(KV+2*r,2)}, {vr(KP+2*(r+3-j),2)}, {vr(SP+2*j,2)}, {vr(KV+2*r,2)}")
    def kvs(h):
        for i in range(8): a(f"v_lshlrev_b32 v{VP+2*i}, 16, v{VR_+8*h+i}\nv_and_b32 v{VP+2*i+1}, s69, v{VR_+8*h+i}")
        for r in range(8): a(f"v_pk_mul_f32 {vr(KV+2*r,2)}, {vr(KV+2*r,2)}, {vr(VP+2*r,2)}")
        for ch in range(2):
            o = OUT + 8 * h + 4 * ch
            for j in range(4): a(f"v_cvt_pk_bf16_f32 v{o+j}, v{KV+2*(7-2*j)+ch}, v{KV+2*(6-2*j)+ch}")
            a(f"global_store_dwordx4 v13, {vr(o,4)}, s[32:33] offset:{-4096*(1-ch) + 128*(1-h)}{SC}")
    a("s_waitcnt lgkmcnt(4)"); rdv(0, 4, 8); rdk(1, 0, 7)
    ks(0)
    a("s_waitcnt lgkmcnt(7)"); rdk(1, 7, 11); rdv(1, 0, 4)
    kvs(0)
    a("s_waitcnt lgkmcnt(4)"); rdv(1, 4, 8)
    ks(1)
    a("s_waitcnt lgkmcnt(0)")
    kvs(1)
    a.stamp(3)
    if AORD == 2:
        for i in range(4): dma(a, 2, 36, "s11", f" offset:{1024*i}{NT}")
    if AORD:
        for i in range(4):
            a(f"s_add_u32 m0, s28, {XB + 4*1040*i}\ns_nop 0\nbuffer_load_dwordx4 v243, s[24:27], {so[i]} offen{NT} lds")
    RA, RB = 220, 224
    a(f"""v_and_b32 v6, 1, v4
    v_xor_b32 v6, 1, v6
    v_mul_u32_u24 v6, {4160-2}, v6
    v_lshl_add_u32 v6, v5, 4, v6
    v_lshlrev_b32 v7, 1, v4
    v_sub_u32 v6, v6, v7
    v_add_u32 v6, s9, v6""")
    for q2 in range(4): a(f"v_add_u32 v{RA+q2}, {OE + 2*2031 - 512*(2*q2+1) - 64*7}, v6")
    a(f"""v_lshlrev_b32 v6, 5, v4
    v_lshl_add_u32 v15, v5, 3, v6
    v_lshl_add_u32 v6, v5, 4, v6
    v_add_u32 v6, s9, v6
    v_add_u32 v{RB}, {OF - 32 - 64*7}, v6
    v_add_u32 v3, s9, v2""")
    a(f"s_waitcnt vmcnt({4 + 4*AORD})")
    tag_check(a, 212)
    publish(a, 0, 212, vm=4*AORD)
    a.stamp(4)
    a("v_mov_b32 v242, v12")
    def xtrans():
        for h in range(2):
            for i in range(8): a(f"ds_read_b32 v{24+8*h+i}, v242 offset:{XB-KB + 8320*h + 128*i}")
            if h == 0: a("s_waitcnt lgkmcnt(6)")
        a("s_mov_b32 s14, 0x05040100\ns_mov_b32 s15, 0x07060302")
        for h in range(2):
            a(f"s_waitcnt lgkmcnt({8 if h == 0 else 0})")
            for ch in range(2):
                o = 40 + 8 * h + 4 * ch
                for j in range(4): a(f"v_perm_b32 v{o+j}, v{24+8*h+2*j+1}, v{24+8*h+2*j}, s{14+ch}")
                a(f"global_store_dwordx4 v14, {vr(o,4)}, s[34:35] offset:{-4096*(1-ch) + 128*h}{SC}")
    if AORD == 0: xtrans()
    a(f"s_add_u32 s10, s10, {WS['KVT']}\ns_add_u32 s11, s9, {OE}")
    add64(a, 16, 12, "s10")
    KO = 176
    ACC, KD, HG, SBv, XF, XR, KVR = 16, 48, 80, 112, 144, 176, 192
    FA, FB = 0, 64
    def bread(t, q): return f"ds_read_b128 {ar(FB+32*(t&1)+4*q,4)}, v{RB} offset:{512*q + 64*(7-t)}"
    def areads(t, q):
        o = 16 * (7 - t) + (0 if q & 1 else 128)
        return [f"ds_read2_b32 {ar(FA+32*(t&1)+4*q+2*h,2)}, v{RA+q//2} offset0:{o+2*h} offset1:{o+2*h+1}" for h in range(2)]
    def reads(t):
        r = []
        for q in range(8): r += [bread(t, q)] + areads(t, q)
        return r
    a(f"""v_lshlrev_b32 v218, 16, v218
    v_sub_u32 v11, s9, v15
    v_add_u32 v11, {OE + 4088 - 512*7}, v11
    v_lshlrev_b32 v12, 1, v15
    v_lshlrev_b32 v209, 7, v4
    v_lshl_add_u32 v209, v5, 4, v209
    v_lshlrev_b32 v10, 5, v4
    v_lshrrev_b32 v13, 1, v5
    v_lshl_add_u32 v10, v13, 4, v10
    v_and_b32 v13, 1, v5
    v_lshl_add_u32 v10, v13, 9, v10
    s_and_b32 s14, s2, 0xf0
    v_add_u32 v210, s14, v0
    v_add_u32 v211, {220-16}, v0
    v_cmp_gt_u32 s[18:19], 16, v0
    v_mov_b32 v212, s70
    v_mov_b32 v213, s71
    v_cndmask_b32 v210, v211, v210, s[18:19]
    v_mul_u32_u24 v211, 10, v0
    v_cmp_gt_u32 s[18:19], 48, v0
    s_sub_u32 s14, s44, {480-160}
    v_add_u32 v211, s14, v211
    v_cndmask_b32 v210, v211, v210, s[18:19]
    v_lshlrev_b32 v210, 7, v210
    v_add_u32 v210, {WS['FL'] + 256*128}, v210
    s_lshl_b32 s14, s3, 4
    s_lshl_b64 s[28:29], 0xffff, s14
    s_and_b32 s29, s29, 0x1fffff
    """)
    flag2_setup(a)
    w_setup(a)
    a.stamp(5)
    a("s_and_b32 s14, s2, 0xf0")
    poll(a, 0, "s14", 16, 232)
    a.stamp(6)
    for i in range(4): a(f"global_load_dwordx4 {vr(KO+6*i,4)}, v2, s[16:17] offset:{1024*i}{SC}")
    ny = 0
    if AORD == 0: publish(a, 1, 232, vm=4)
    else:
        a("s_barrier"); xtrans(); ny = 4
    w_early(a, 0, NWE); ny += 2 * NWE
    for q in range(8): a(bread(0, q))
    for i in range(4):
        a(f"s_waitcnt vmcnt({max(2-i,0)+ny})")
        a(f"ds_write_b128 v3, {vr(KO+6*i,4)} offset:{OE+1024*i}")
        if i < 3: a(f"v_readlane_b32 s14, v{KO+6*i+6}, 0")
        a(f"v_mov_b32_dpp v{KO+6*i+4}, v{KO+6*i} wave_shl:1 row_mask:0xf bank_mask:0xf bound_ctrl:0")
        if i < 3: a(f"s_nop 0\nv_writelane_b32 v{KO+6*i+4}, s14, 63")
        for j in range(4): a(f"v_alignbit_b32 v{200+4*(i&1)+j}, v{KO+6*i+j+1}, v{KO+6*i+j}, 16")
        a(f"ds_write_b128 v3, {vr(200+4*(i&1),4)} offset:{OO+1024*i}")
        if i == 1: a("s_waitcnt lgkmcnt(2)")
    a("s_waitcnt lgkmcnt(0)")
    for q in range(8):
        for r in areads(0, q): a(r)
    a.stamp(7)
    P, Q, C1 = 226, 228, 230
    unk = []
    for n in range(8):
        unk += [f"v_and_b32 v{KD+4*n}, s69, v{KVR+2*n+1}", f"v_lshlrev_b32 v{KD+4*n+1}, 16, v{KVR+2*n+1}",
                f"v_and_b32 v{KD+4*n+2}, s69, v{KVR+2*n}", f"v_lshlrev_b32 v{KD+4*n+3}, 16, v{KVR+2*n}"]
    mulk = [f"v_mul_f32 v{KD+i}, v218, v{KD+i}" for i in range(32)]
    unx = []
    for n in range(4): unx += [f"v_permlane16_swap_b32 v{XR+4*n}, v{XR+4*n+2}", f"v_permlane16_swap_b32 v{XR+4*n+1}, v{XR+4*n+3}"]
    for n in range(16): unx += [f"v_lshlrev_b32 v{XF+2*n}, 16, v{XR+n}", f"v_and_b32 v{XF+2*n+1}, s69, v{XR+n}"]
    flagld = [f"s_mov_b64 exec, s[28:29]\nglobal_load_dwordx2 v[212:213], v210, s[12:13]{SC}\ns_mov_b64 exec, -1"]
    eld = [f"s_and_b32 s16, s3, 1\ns_lshl_b32 s16, s16, 13\ns_lshr_b32 s17, s3, 1\ns_lshl_b32 s17, s17, 6\ns_add_u32 s17, s17, s16\ns_add_u32 s17, s17, {WS['ST']}\ns_add_u32 s14, s12, s17\ns_addc_u32 s15, s13, 0\ns_lshl_b32 m0, s3, 12"]
    eld += [f"global_load_lds_dwordx4 v209, s[14:15] offset:{1024*i}{SC}" + ("\ns_add_u32 s14, s14, 1024\ns_addc_u32 s15, s15, 0" if i < 3 else "") for i in range(4)]
    eld += [f"s_lshl_b32 s17, s8, 12\ns_add_u32 s17, s17, {WS['XTT']}\ns_add_u32 s14, s12, s17\ns_addc_u32 s15, s13, 0"]
    eld += [f"global_load_dwordx4 {vr(XR+4*n,4)}, v10, s[14:15] offset:{1024*n}{SC}" for n in range(4)]
    eld += ["v_min_u32 v212, 4, v0", "v_mul_u32_u24 v212, 2560, v212",
            f"s_lshl_b32 s17, s8, 2\ns_add_u32 s17, s17, {WS['MOD']}\nv_add_u32 v212, s17, v212", f"global_load_dword v219, v212, s[12:13]{SC}"]
    strd = []
    for n in range(8): strd += [f"ds_read_b128 {vr(HG+4*n,4)}, v2 offset:{1024*n}", f"ds_read_b128 {vr(SBv+4*n,4)}, v2 offset:{8192+1024*n}"]
    scal = ["v_add_f32 v214, 1.0, v219", "v_readlane_b32 s20, v219, 0", "v_cvt_pk_bf16_f32 v214, v214, v214", "v_readlane_b32 s22, v219, 2",
            "v_lshlrev_b32 v214, 16, v214\ns_nop 0", "v_readlane_b32 s21, v214, 1", "v_readlane_b32 s23, v214, 4", f"v_mov_b32 v{Q}, s22\ns_nop 0",
            f"v_mul_f32 v{P}, s21, v{Q}", f"v_mul_f32 v{Q}, s20, v{Q}", f"v_mov_b32 v{C1}, s23"]
    hg1 = [f"v_fma_f32 v{HG+i}, v{XF+i}, v{HG+i}, v{SBv+i}" for i in range(32)]
    hg2 = [f"v_fma_f32 v{HG+i}, v{HG+i}, v{P}, v{Q}" for i in range(32)]
    oadr = [f"s_lshl_b32 s17, s8, 12\ns_add_u32 s17, s17, {WS['X1T']}\ns_add_u32 s14, s12, s17\ns_addc_u32 s15, s13, 0\ns_add_u32 s16, s14, {WS['X1S']-WS['X1T']}\ns_addc_u32 s17, s15, 0"]
    def merge(x, y):
        out = []; x = list(x); y = list(y)
        while x or y:
            if x: out.append(x.pop(0))
            if y: out.append(y.pop(0))
        return out
    post = []
    for t in range(8):
        a("s_waitcnt lgkmcnt(0)")
        if "cstamp" in EXP and 2 <= t <= 7: a.stamp(t - 1)
        extra = []
        if t == 0: extra = [f"ds_read_b64 {vr(KVR+2*n,2)}, v11 offset:{512*(7-n)}" for n in range(8)]
        if t == 1: extra = unk + mulk[:12]
        if t == 2: extra = mulk[12:]
        if t == 1 and AORD: publish(a, 1, 232)
        if t == HKF: extra = extra + flagld
        if t == HK:
            Lok, Lsl = a.label("hk_ok"), a.label("hk_slow")
            a(f"""s_mov_b32 s74, 0x100000
            {Lsl}:
            s_waitcnt vmcnt(0)
            v_cmp_ne_u64 vcc, s[70:71], v[212:213]
            s_cbranch_vccz {Lok}
            {flagld[0]}
            s_sub_u32 s74, s74, 1
            s_cbranch_scc0 {Lsl}
            {Lok}:
            s_barrier""")
            extra = eld
        if t == HK + 2 or (t == 7 and HK + 2 > 7):
            a("s_waitcnt vmcnt(0)\ns_barrier")
            extra = strd + scal + (unx[:18] if t < 7 else unx)
            if t == 7:
                post = [f"v_pk_fma_f32 {vr(HG+2*i,2)}, {vr(XF+2*i,2)}, {vr(HG+2*i,2)}, {vr(SBv+2*i,2)}" for i in range(16)]
                post += [f"v_pk_fma_f32 {vr(HG+2*i,2)}, {vr(HG+2*i,2)}, {vr(P,2)}, {vr(Q,2)} op_sel_hi:[1,0,0]" for i in range(16)]
                extra = extra + oadr
        if t == HK + 3: extra = unx[18:] + hg1 + oadr + hg2
        if t == 7: extra = [FLAG2] + extra
        mf = []
        for q in range(8):
            for n in range(q, 8):
                c = "0" if (t == 0 and q == 0) else vr(ACC + 4 * n, 4)
                mf.append(f"v_mfma_f32_16x16x32_bf16 {vr(ACC+4*n,4)}, {ar(FA+32*(t&1)+4*q,4)}, {ar(FB+32*(t&1)+4*(n-q),4)}, {c}")
        interleave(a, mf, merge(reads(t + 1) if t < 7 else [], extra))
    a.stamp(8)
    a("s_waitcnt lgkmcnt(0)")
    for x in post: a(x)
    a("s_nop 3")
    for n in range(0, 8, 2):
        for m in (n, n + 1):
            for h in range(2): a(f"v_pk_add_f32 {vr(ACC+4*m+2*h,2)}, {vr(ACC+4*m+2*h,2)}, {vr(KD+4*m+2*h,2)}")
        for m in (n, n + 1):
            for h in range(2): a(f"v_pk_fma_f32 {vr(ACC+4*m+2*h,2)}, {vr(HG+4*m+2*h,2)}, {vr(ACC+4*m+2*h,2)}, {vr(XF+4*m+2*h,2)}")
        for m in (n, n + 1):
            for h in range(2): a(f"v_pk_mul_f32 {vr(KD+4*m+2*h,2)}, {vr(ACC+4*m+2*h,2)}, {vr(C1,2)} op_sel_hi:[1,0]")
        o = SBv + 2 * n
        for m in (n, n + 1):
            for h in range(2): a(f"v_cvt_pk_bf16_f32 v{o+2*(m-n)+h}, v{KD+4*m+2*h}, v{KD+4*m+2*h+1}")
        a(f"""s_nop 1
        v_permlane16_swap_b32 v{o}, v{o+2}
        v_permlane16_swap_b32 v{o+1}, v{o+3}
        global_store_dwordx4 v10, {vr(o,4)}, s[16:17] offset:{512*n}{SC}""")
    for i in range(16): a(f"v_cvt_pk_bf16_f32 v{SBv+16+i}, v{ACC+2*i}, v{ACC+2*i+1}")
    for n in range(0, 8, 2):
        o = SBv + 16 + 2 * n
        a(f"""v_permlane16_swap_b32 v{o}, v{o+2}
        v_permlane16_swap_b32 v{o+1}, v{o+3}
        global_store_dwordx4 v10, {vr(o,4)}, s[14:15] offset:{512*n}{SC}""")
    a.stamp(9)
    a(f"s_branch {Lg1}")

def code_prefetch(a):
    a(f"""s_getpc_b64 s[14:15]
    s_sub_u32 s14, s14, . - {KNAME}
    s_subb_u32 s15, s15, 0
    s_lshr_b32 s17, s2, 3
    s_lshl_b32 s17, s17, 2
    s_add_u32 s17, s17, s3
    s_min_u32 s17, s17, (code_end - {KNAME}) / 1024 - 1
    s_lshl_b32 s17, s17, 10
    v_lshl_add_u32 v250, v0, 4, s17
    global_load_dwordx4 v[252:255], v250, s[14:15]""")

def phase_aux(a, Lg1):
    Lst, L2, Lnd, Lnw, Lnd2, Lnw3 = (a.label(x) for x in ("aux_st", "aux2", "aux_nod", "aux_now", "aux_nod2", "aux_now3"))
    RED, MRD = STL, 90112
    a(f"""s_load_dwordx2 s[4:5], s[0:1], {KA['x']}
    s_load_dwordx4 s[36:39], s[0:1], {KA['wg']}
    s_load_dwordx2 s[6:7], s[0:1], {KA['wd']}
    s_load_dwordx4 s[40:43], s[0:1], {KA['c']}
    s_sub_u32 s8, s2, 160
    s_waitcnt lgkmcnt(0)
    s_cmp_ge_u32 s8, 60
    s_cbranch_scc1 {Lst}""")
    mod_slab(a, 8, 40, 42, MRD)
    Lsp = a.label("aux_spare")
    a(f"""s_branch {L2}
    {Lst}:
    s_cmp_ge_u32 s8, 92
    s_cbranch_scc1 {Lsp}
    s_sub_u32 s45, s8, 60
    s_lshl_b32 s45, s45, 6""")
    stats_issue(a, 100, 4, 45)
    tag_issue(a, 212)
    stats_compute(a, 100, 45)
    a(f"s_branch {L2}\n{Lsp}:")
    tag_issue(a, 212)
    a(f"s_waitcnt vmcnt(0)\n{L2}:")
    a.stamp(3)
    LwE, Lwd = a.label("aux_we"), a.label("aux_wd")
    a("v_lshlrev_b32 v9, 4, v0\ns_waitcnt vmcnt(1)")
    tag_check(a, 212)
    flag2_setup(a)
    a(f"""s_mov_b64 exec, 1
    v_mov_b32 v236, 0
    s_mov_b64 exec, -1
    s_cmp_ge_u32 s8, 56
    s_cbranch_scc1 {Lwd}""")
    TA, RAW, MV, PK, RES = 10, 128, 16, 96, 208
    a(f"""s_and_b32 s10, s8, 3
    s_mul_i32 s10, s10, 7
    s_lshr_b32 s11, s8, 3
    s_add_u32 s10, s10, s11
    s_min_u32 s10, s10, 26
    s_bfe_u32 s9, s8, 0x10002
    s_cmp_eq_u32 s9, 1
    s_cselect_b32 s36, s38, s36
    s_cselect_b32 s37, s39, s37
    v_lshrrev_b32 v2, 3, v0
    v_bfe_u32 v3, v0, 4, 2
    v_lshlrev_b32 v3, 1, v3
    v_and_b32 v4, 7, v0
    v_xor_b32 v3, v3, v4
    v_mul_u32_u24 v2, 3456, v2
    v_lshl_add_u32 v2, v3, 4, v2
    s_lshl_b32 s11, s10, 7
    s_mul_i32 s16, s3, {32*3456}
    s_add_u32 s11, s11, s16
    v_add_u32 v2, s11, v2
    s_mul_i32 s16, s3, {5*4096}""")
    srd(a, 20, 36, 640 * 3456)
    for io in range(5):
        for u in range(4):
            if io * 4 + u == 6:
                publish(a, 1, 16, vm=6)
                a.stamp(4)
            a(f"s_add_u32 m0, s16, {4096*io + 1024*u}\ns_mov_b32 s17, {(128*io + 8*u)*3456}\nbuffer_load_dwordx4 v2, s[20:23], s17 offen{WPOL} lds")
    a(f"""v_lshrrev_b32 v2, 2, v0
    v_bfe_u32 v3, v0, 3, 2
    v_and_b32 v4, 3, v0
    v_lshlrev_b32 v2, 7, v2
    v_lshl_add_u32 v2, v4, 3, v2
    v_add_u32 v2, s16, v2""")
    for T_ in range(4): a(f"v_xor_b32 v4, {T_}, v3\nv_lshl_add_u32 v{TA+T_}, v4, 5, v2")
    a(f"""v_lshrrev_b32 v14, 4, v0
    v_lshlrev_b32 v14, 4, v14
    s_lshl_b32 s16, s3, 7
    s_add_u32 s16, s16, {WS['MOD'] + 3*2560}
    v_add_u32 v14, s16, v14
    v_add_u32 v15, 2560, v14""")
    poll(a, 1, 190, 20, 16)
    a.stamp(6)
    for io in range(5):
        for hf in range(2):
            a(f"global_load_dwordx4 {vr(MV+16*io+4*hf,4)}, v14, s[12:13] offset:{512*io+64*hf}{SC}")
            a(f"global_load_dwordx4 {vr(MV+16*io+8+4*hf,4)}, v15, s[12:13] offset:{512*io+64*hf}{SC}")
    for io in range(5):
        for T_ in range(4):
            for hf in range(2): a(f"ds_read_b64_tr_b16 {vr(RAW+16*io+4*T_+2*hf,2)}, v{TA+T_} offset:{4096*io+2048*hf}")
        a("s_waitcnt lgkmcnt(4)")
    a("s_waitcnt lgkmcnt(0)")
    for io in range(5):
        a(f"s_waitcnt vmcnt({16-4*io})")
        b = MV + 16 * io; p = PK + 8 * (io & 1)
        for i in range(4): a(f"v_cvt_pk_bf16_f32 v{p+i}, v{b+2*i}, v{b+2*i+1}")
        for i in range(8): a(f"v_add_f32 v{b+8+i}, 1.0, v{b+8+i}")
        for i in range(4): a(f"v_cvt_pk_bf16_f32 v{p+4+i}, v{b+8+2*i}, v{b+8+2*i+1}")
        for T_ in range(4): a(f"v_mfma_f32_16x16x32_bf16 {vr(112+4*T_,4)}, {vr(RAW+16*io+4*T_,4)}, {vr(p,4)}, {vr(112+4*T_,4) if io else '0'}")
        for T_ in range(4): a(f"v_mfma_f32_16x16x32_bf16 {vr(RES+4*T_,4)}, {vr(RAW+16*io+4*T_,4)}, {vr(p+4,4)}, {vr(RES+4*T_,4) if io else '0'}")
    a(f"""s_lshl_b32 s16, s3, 9
    s_add_u32 s16, s16, {RED}
    v_add_u32 v2, s16, v0
    s_mov_b32 exec_lo, 0x10001
    s_mov_b32 exec_hi, 0x10001
    s_nop 2""")
    for T_ in range(4): a(f"ds_write_b128 v2, {vr(112+4*T_,4)} offset:{256+64*T_}")
    for T_ in range(4): a(f"ds_write_b128 v2, {vr(RES+4*T_,4)} offset:{64*T_}")
    a(f"""s_mov_b64 exec, -1
    s_waitcnt lgkmcnt(0)
    s_barrier
    s_cmp_ge_u32 s3, 2
    s_cbranch_scc1 {LwE}
    s_lshl_b32 s16, s3, 8
    s_add_u32 s16, s16, {RED}
    v_lshlrev_b32 v3, 2, v0
    v_add_u32 v2, s16, v3
    ds_read2st64_b32 v[4:5], v2 offset0:0 offset1:2
    ds_read2st64_b32 v[6:7], v2 offset0:4 offset1:6
    s_lshl_b32 s16, s9, 1
    s_add_u32 s16, s16, s3
    s_mul_i32 s16, s16, {1728*4}
    s_lshl_b32 s17, s10, 8
    s_add_u32 s16, s16, s17
    s_add_u32 s16, s16, {WS['CSB']}""")
    add64(a, 14, 12, "s16")
    a(f"""s_waitcnt lgkmcnt(0)
    v_add_f32 v4, v4, v5
    v_add_f32 v6, v6, v7
    v_add_f32 v4, v4, v6
    global_store_dword v3, v4, s[14:15]{SC}
    {LwE}:""")
    w_setup(a)
    w_early(a, 0, NWE)
    a(f"s_waitcnt vmcnt({2*NWE})")
    a.stamp(9)
    a(f"s_branch {Lg1}")
    a(f"""{Lwd}:
    s_lshl_b32 s46, s8, 2
    s_add_u32 s46, s46, s3
    s_sub_u32 s46, {159+224}, s46
    v_lshrrev_b32 v2, 4, v0
    v_and_b32 v3, 15, v0
    v_lshlrev_b32 v4, 1, v2
    v_xor_b32 v4, v4, v3
    v_mul_u32_u24 v2, 1280, v2
    v_lshl_add_u32 v5, v4, 4, v2
    v_xor_b32 v4, 8, v4
    v_lshl_add_u32 v6, v4, 4, v2
    v_add_u32 v6, {4*1280}, v6
    s_lshl_b32 s16, s3, 14
    s_mul_i32 s17, s46, 52429
    s_lshr_b32 s17, s17, 18
    s_mul_i32 s11, s17, 5
    s_sub_u32 s11, s46, s11
    s_mul_i32 s17, s17, {32*1280}
    s_lshl_b32 s11, s11, 8
    s_add_u32 s17, s17, s11
    v_add_u32 v5, s17, v5
    v_add_u32 v6, s17, v6""")
    srd(a, 20, 6, 1728 * 1280)
    add64(a, 14, 12, WS['WD']); srd(a, 24, 14, 54 * 40 * 1024)
    for un in range(2):
        for u in range(8):
            if un * 8 + u == 6:
                publish(a, 1, 16, vm=6)
                a.stamp(4)
            a(f"s_add_u32 m0, s16, {8192*un + 1024*u}\ns_mov_b32 s17, {(1024*un + 8*(u>>1))*1280}\nbuffer_load_dwordx4 v{5+(u&1)}, s[20:23], s17 offen{NT} lds")
    xtile_tr_addrs(a, 48, 16)
    a("s_lshl_b32 s17, s46, 13\nv_add_u32 v7, s17, v9")
    for un in range(2):
        a("s_waitcnt vmcnt(8)")
        for q in range(3):
            if q < 2:
                for dt in range(4):
                    for hf in range(2): a(f"ds_read_b64_tr_b16 {vr(128+32*un+16*q+4*dt+2*hf,2)}, v{48+4*q+dt} offset:{8192*un+4096*hf}")
            if q:
                a(f"s_waitcnt lgkmcnt({8 if q < 2 else 0})\ns_mov_b32 s17, {160*8192*un + 4096*(q-1)}")
                for dt in range(4): a(f"buffer_store_dwordx4 {vr(128+32*un+16*(q-1)+4*dt,4)}, v7, s[24:27], s17 offen offset:{1024*dt}{SC}")
    publish(a, 0, 16)
    a.stamp(6)
    a(f"""s_cmp_lg_u32 s8, 95
    s_cbranch_scc1 {Lnw3}
    s_cmp_lg_u32 s3, 0
    s_cbranch_scc1 {Lnw3}""")
    a("v_add_u32 v23, 216, v0\nv_cmp_gt_u32 vcc, 40, v0\nv_add_u32 v22, 426, v0\ns_nop 0\nv_cndmask_b32 v23, v22, v23, vcc")
    poll(a, 0, None, 50, 20, idxreg=23)
    a(f"v_mov_b32 v16, s70\nv_mov_b32 v17, s71\nv_mov_b32 v18, s70\nv_mov_b32 v19, s71")
    add64(a, 14, 12, WS['FL'] + 5 * 256 * 128 + 4096)
    for i in range(8): a(f"global_store_dwordx4 v9, v[16:19], s[14:15] offset:{1024*i-4096}{SC}")
    a(f"{Lnw3}:")
    a.stamp(9)
    a("s_branch g1_idle")

def w_setup(a):
    a(f"""s_load_dwordx4 s[84:87], s[0:1], {KA['wg']}
    s_lshr_b32 s6, s2, 3
    s_and_b32 s5, s2, 3
    s_mul_i32 s5, s5, 27
    s_add_u32 s5, s5, s6
    s_lshr_b32 s6, s5, 2
    s_and_b32 s5, s5, 3
    s_and_b32 s89, s2, 4
    s_add_u32 s5, s5, s89
    v_lshrrev_b32 v244, 3, v0
    v_bfe_u32 v245, v0, 4, 2
    v_lshlrev_b32 v245, 1, v245
    v_and_b32 v246, 7, v0
    v_xor_b32 v245, v245, v246
    v_mul_u32_u24 v244, 3456, v244
    v_lshl_add_u32 v7, v245, 4, v244
    s_mul_i32 s88, s3, {8*3456}
    s_lshl_b32 s89, s6, 7
    s_add_u32 s88, s88, s89
    v_add_u32 v7, s88, v7
    s_lshl_b32 s88, s3, 10
    s_add_u32 s88, s88, {WRING}
    s_waitcnt lgkmcnt(0)""")
    srd(a, 80, 84, 640 * 3456); srd(a, 84, 86, 640 * 3456)
def wd_(k):
    out = []
    for m in range(2):
        pre = f"s_add_u32 m0, s88, {(k&7)*8192 + m*4096}" + (f"\ns_mov_b32 s89, {k*32*3456}" if not out else "")
        out += [(None, pre), (("W", k), f"buffer_load_dwordx4 v7, s[{80+4*m}:{83+4*m}], s89 offen lds")]
    return out
def w_early(a, lo, hi):
    for k in range(lo, hi):
        for t, x in wd_(k): a(x + ("" if t else "\ns_nop 0"))

def g2_setup(a):
    a(f"""s_lshr_b32 s4, s2, 3
    s_bfe_u32 s44, s2, 0x20001
    s_lshl_b32 s44, s44, 3
    s_lshr_b32 s45, s4, 2
    s_add_u32 s44, s44, s45
    s_and_b32 s45, s2, 1
    s_lshl_b32 s45, s45, 2
    s_and_b32 s9, s4, 3
    s_add_u32 s45, s45, s9
    s_mul_i32 s9, s45, 5120
    s_add_u32 s10, s9, {WS['WD']}
    v_lshlrev_b32 v9, 4, v0
    v_add_u32 v8, 4096, v9""")
    add64(a, 14, 12, "s10"); srd(a, 40, 14, 0)
    a(f"s_sub_u32 s42, {54*40960}, s9\ns_mul_i32 s46, s3, 40960")

X1LATE = int(os.environ.get("X1LATE", "4"))
WPOL = os.environ.get("WPOL", "")
NWA = int(os.environ.get("NWA", "7"))
NWD0 = int(os.environ.get("NWD0", "26"))
NWD1 = int(os.environ.get("NWD1", "62"))
NW0 = int(os.environ.get("NW0", "8"))
WD_FIRST = int(os.environ.get("WD_FIRST", "10")); WD_LAST = int(os.environ.get("WD_LAST", "20"))
NWD2 = int(os.environ.get("NWD2", "6"))
HK3F = int(os.environ.get("HK3F", "14")); HK3 = int(os.environ.get("HK3", "16"))
def wd_reg(i):
    return ar(4 * i, 4) if i < 64 else vr(232 + 4 * (i - 64), 4)
def wd_load(i):
    st, d = divmod(i, 5)
    return f"s_add_u32 s47, s46, {st*4*40960}\nbuffer_load_dwordx4 {wd_reg(i)}, v{9 if d < 4 else 8}, s[40:43], s47 offen offset:{1024*(d&3)}{SC}"

class VM:
    def __init__(self): self.q = []
    def add(self, tag): self.q.append(tag)
    def wait(self, tags):
        idx = [i for i, t in enumerate(self.q) if t in tags]
        if not idx: return None
        n = len(self.q) - 1 - max(idx)
        self.q = self.q[max(idx) + 1:]
        assert n <= 63
        return f"s_waitcnt vmcnt({n})"

def phase_idle(a, Lg2):
    Lpub = a.label("idle_pub")
    g2_setup(a)
    flag2_check(a)
    for i in range(NWD1):
        a(wd_load(i))
        if i == 50: a("s_waitcnt vmcnt(30)")
    a("s_sub_u32 s8, s2, 216\ns_mul_i32 s9, s3, 40")
    poll(a, 4, "s9", 40, 52)
    R, ACC, U = 100, 16, 32
    a(f"""s_barrier
    s_cmp_ge_u32 s8, 32
    s_cbranch_scc1 {Lg2}
    v_lshrrev_b32 v2, 3, v0
    v_lshlrev_b32 v2, 12, v2
    v_and_b32 v3, 7, v0
    v_lshl_add_u32 v2, v3, 4, v2
    s_lshl_b32 s9, s3, 15
    s_lshl_b32 s10, s8, 7
    s_add_u32 s9, s9, s10
    s_add_u32 s9, s9, {WS['X1T']}""")
    add64(a, 14, 12, "s9")
    for i in range(20):
        a(f"global_load_dwordx4 {vr(R+4*i,4)}, v2, s[14:15]{SC}")
        if i < 19: add64(a, 14, 14, 32 * 4096)
    for i in range(20):
        a(f"s_waitcnt vmcnt({19-i})")
        u = (U + 8 * (i & 1)) if i else ACC
        for j in range(4): a(f"v_lshlrev_b32 v{u+2*j}, 16, v{R+4*i+j}\nv_and_b32 v{u+2*j+1}, s69, v{R+4*i+j}")
        for j in range(4):
            if i == 0: a(f"v_pk_mul_f32 {vr(ACC+8+2*j,2)}, {vr(u+2*j,2)}, {vr(u+2*j,2)}")
            else:
                a(f"v_pk_add_f32 {vr(ACC+2*j,2)}, {vr(ACC+2*j,2)}, {vr(u+2*j,2)}")
                a(f"v_pk_fma_f32 {vr(ACC+8+2*j,2)}, {vr(u+2*j,2)}, {vr(u+2*j,2)}, {vr(ACC+8+2*j,2)}")
    a("s_nop 1")
    for b in (ACC, ACC + 8):
        for j in range(4): a(f"v_permlane32_swap_b32 v{b+j}, v{b+4+j}")
    for b in (ACC, ACC + 8):
        for j in range(4): a(f"v_add_f32 v{b+j}, v{b+j}, v{b+4+j}")
    a("s_nop 1")
    for b in (ACC, ACC + 8):
        for j in range(2): a(f"v_permlane16_swap_b32 v{b+j}, v{b+2+j}")
    for b in (ACC, ACC + 8):
        for j in range(2): a(f"v_add_f32 v{b+j}, v{b+j}, v{b+2+j}")
    a("s_nop 1")
    for b in (ACC, ACC + 8):
        for j in range(2): a(f"v_add_f32_dpp v{b+j}, v{b+j}, v{b+j} row_ror:8 row_mask:0xf bank_mask:0xf")
    a(f"""s_lshl_b32 s14, s3, 9
    v_lshrrev_b32 v4, 4, v0
    v_lshlrev_b32 v3, 5, v3
    v_lshl_add_u32 v3, v4, 3, v3
    v_add_u32 v3, s14, v3
    ds_write_b64 v3, {vr(ACC,2)}
    ds_write_b64 v3, {vr(ACC+8,2)} offset:256
    s_waitcnt lgkmcnt(0)
    s_barrier
    s_cmp_lg_u32 s3, 0
    s_cbranch_scc1 {Lpub}
    v_lshlrev_b32 v2, 2, v0""")
    for w in range(4): a(f"ds_read2st64_b32 {vr(16+2*w,2)}, v2 offset0:{2*w} offset1:{2*w+1}")
    a(f"""s_lshl_b32 s14, s8, 9
    s_add_u32 s14, s14, {WS['ST2']}
    v_lshl_add_u32 v2, v0, 3, s14
    s_waitcnt lgkmcnt(0)
    v_pk_add_f32 v[16:17], v[16:17], v[18:19]
    v_pk_add_f32 v[20:21], v[20:21], v[22:23]
    v_pk_add_f32 v[16:17], v[16:17], v[20:21]
    v_mul_f32 v16, {INV640}, v16
    v_mul_f32 v17, {INV640}, v17
    v_fma_f32 v17, -v16, v16, v17
    v_max_f32 v17, 0, v17
    v_add_f32 v17, 0x3727c5ac, v17
    v_rsq_f32 v18, v17
    s_nop 0
    v_mul_f32 v19, -v16, v18
    global_store_dwordx2 v2, v[18:19], s[12:13]{SC}
    {Lpub}:""")
    publish(a, 4, 52)
    a(f"s_branch {Lg2}")

def phase_g1(a):
    Lidle, Lg2 = "g1_idle", a.label("g2")
    g2_setup(a)
    a(f"""s_and_b32 s8, s3, 1
    s_lshl_b32 s7, s6, 1
    s_add_u32 s7, s7, s8
    s_lshr_b32 s4, s3, 1""")
    a(f"""v_lshrrev_b32 v2, 4, v0
    v_and_b32 v3, 15, v0
    v_lshlrev_b32 v4, 1, v2
    v_xor_b32 v4, v4, v3
    v_lshlrev_b32 v2, 12, v2
    s_lshl_b32 s9, s3, 15
    s_lshl_b32 s10, s5, 9
    s_add_u32 s9, s9, s10
    v_add_u32 v2, s9, v2
    v_lshl_add_u32 v5, v4, 4, v2
    v_xor_b32 v4, 8, v4
    v_lshl_add_u32 v6, v4, 4, v2
    v_add_u32 v6, {4*4096}, v6
    s_lshl_b32 s26, s3, 11
    s_lshl_b32 s9, s4, 13""")
    ACC, XF, WF, TA, TW = 128, 64, 32, 10, 18
    xtile_tr_addrs(a, TA, 9)
    a(f"""v_lshrrev_b32 v2, 2, v0
    v_bfe_u32 v3, v0, 3, 2
    v_and_b32 v4, 3, v0
    v_lshlrev_b32 v2, 7, v2
    v_lshl_add_u32 v2, v4, 3, v2
    v_add_u32 v2, {WRING}, v2
    s_lshl_b32 s9, s8, 1
    v_xor_b32 v3, s9, v3
    v_lshl_add_u32 v{TW}, v3, 5, v2
    v_xor_b32 v3, 1, v3
    v_lshl_add_u32 v{TW+1}, v3, 5, v2""")
    add64(a, 14, 12, WS['X1S']); srd(a, 16, 14, 640 * 4096)
    vm = VM()
    def emit(items, nop=False):
        for t, x in items:
            a(x)
            if t: vm.add(t)
            elif nop: a("s_nop 0")
    def xd(k):
        out = []
        for rh in range(2):
            for u in range(2):
                pre = f"s_add_u32 m0, s26, {(k&3)*16384 + rh*(8192-256) + u*1024}" + (f"\ns_mov_b32 s25, {k*0x20000}" if not out else "")
                out += [(None, pre), (("X", k), f"buffer_load_dwordx4 v{5+u}, s[16:19], s25 offen offset:{256*rh}{SC} lds")]
        return out
    def trreads(k):
        x = [(None, f"ds_read_b64_tr_b16 {vr(XF+32*(k&1)+4*m+2*hf,2)}, v{TA+m} offset:{16384*(k&3)+4096*hf}") for m in range(8) for hf in range(2)]
        w = [(None, f"ds_read_b64_tr_b16 {vr(WF+16*(k&1)+4*f+2*hf,2)}, v{TW+(f>>1)} offset:{8192*(k&7)+4096*(f&1)+2048*hf}") for f in range(4) for hf in range(2)]
        return w + x
    for j in range(NWE, NWA): emit(wd_(j), True)
    publish(a, 2, 52, vm=2*(NWA-NWE) + X1LATE)
    a.stamp(10)
    for j in range(NWA, NW0): emit(wd_(j), True)
    flag2_check(a)
    for i in range(NWD0): a(wd_load(i))
    a(f"""s_lshl_b32 s9, s5, 2
    s_lshl_b32 s10, s4, 1
    s_add_u32 s9, s9, s10
    v_add_u32 v20, s9, v0
    s_mul_i32 s10, s6, 37
    s_lshr_b32 s10, s10, 8
    s_mul_i32 s10, s10, 55
    s_lshl_b32 s11, s6, 3
    s_sub_u32 s10, s11, s10
    s_add_u32 s10, s10, {(512 + 160 - 8 - 1024 - 216) & 0xffffffff}
    v_lshl_add_u32 v21, v0, 2, s10
    v_cmp_gt_u32 vcc, 2, v0
    s_lshl_b32 s9, s9, 9
    s_add_u32 s9, s9, {WS['ST2']}
    v_cndmask_b32 v20, v21, v20, vcc
    v_lshlrev_b32 v20, 7, v20
    v_add_u32 v20, {WS['FL'] + (4*256+216)*128}, v20
    v_add_u32 v21, s9, v9
    v_bfe_u32 v22, v0, 3, 2
    v_mul_u32_u24 v22, {1728*4}, v22
    v_and_b32 v23, 7, v0
    v_lshl_add_u32 v22, v23, 4, v22
    s_lshl_b32 s9, s7, 7
    s_add_u32 s9, s9, {WS['CSB']}
    v_add_u32 v22, s9, v22
    v_mov_b32 v24, s70
    v_mov_b32 v25, s71
    s_lshl_b32 s30, s3, 10
    s_add_u32 s30, s30, {STL}
    s_lshl_b32 s31, s3, 9
    s_add_u32 s31, s31, {CSL}
    v_and_b32 v26, 15, v0
    v_lshl_add_u32 v26, v26, 3, s30
    v_lshrrev_b32 v27, 4, v0
    v_lshl_add_u32 v27, v27, 4, s31
    s_mul_i32 s9, s3, 40""")
    a.stamp(11)
    poll(a, 2, "s9", 40, 52)
    vm.q = []
    a("s_barrier")
    a.stamp(12)
    for j in range(2): emit(xd(j), True)
    emit(trreads(0)[:8])
    publish(a, 4, 28, nosync=True)
    a(vm.wait([("X", 0)]) + "\ns_barrier")
    emit(trreads(0)[8:])
    for j in range(2, 4): emit(xd(j), True)
    a.stamp(13)
    wdi = NWD0; wnext = NW0
    fl = f"s_mov_b64 exec, 0xf\nglobal_load_dwordx2 v[24:25], v20, s[12:13]{SC}\ns_mov_b64 exec, -1"
    STV, CB = 32, 64
    for k in range(20):
        w = vm.wait([("W", k + 1), ("X", k + 1)] + (["S"] if k == 19 else []) + (["G"] if k == HK3 else []))
        a("s_waitcnt lgkmcnt(0)")
        if w: a(w)
        if k < 19: a("s_barrier")
        mem = []
        if k == HK3:
            Lok, Lsl = a.label("h3_ok"), a.label("h3_slow")
            a(f"""s_mov_b32 s74, 0x100000
            {Lsl}:
            v_cmp_ne_u64 vcc, s[70:71], v[24:25]
            s_cbranch_vccz {Lok}
            {fl}
            s_waitcnt vmcnt(0)
            s_sub_u32 s74, s74, 1
            s_cbranch_scc0 {Lsl}
            {Lok}:""")
            mem += [(None, "s_mov_b32 m0, s30"), ("S", f"global_load_lds_dwordx4 v21, s[12:13]{SC}"),
                    (None, "s_mov_b32 m0, s31"), ("S", f"s_mov_b32 exec_hi, 0\nglobal_load_lds_dwordx4 v22, s[12:13]{SC}\ns_mov_b64 exec, -1")]
        if k == HK3F: mem.append(("G", fl))
        if k < 19: rd = trreads(k + 1)
        else:
            rd = [(None, f"ds_read_b64 {vr(STV+2*m,2)}, v26 offset:{128*m}") for m in range(8)]
            rd += [(None, f"ds_read_b128 {vr(CB+16*h+4*mt_,4)}, v27 offset:{128*mt_+64*h}") for h in range(2) for mt_ in range(4)]
        if k + 4 < 20: mem += xd(k + 4)
        if wnext < 20: mem += wd_(wnext); wnext += 1
        if WD_FIRST <= k < WD_LAST:
            tot = NWD1 - NWD0
            n = (tot * (k + 1 - WD_FIRST)) // (WD_LAST - WD_FIRST) - (tot * (k - WD_FIRST)) // (WD_LAST - WD_FIRST)
            for _ in range(n): mem.append((("D", wdi), wd_load(wdi))); wdi += 1
        slots = [[] for _ in range(32)]
        for i, e in enumerate(rd): slots[i].append(e)
        for i, e in enumerate(mem): slots[(32 - len(mem) + i) if len(mem) <= 20 else None].append(e)
        j = 0
        for m in range(8):
            for f in range(4):
                d = vr(ACC + 32 * f + 4 * m, 4)
                if "g1nomfma" in EXP: a("s_nop 0")
                else: a(f"v_mfma_f32_16x16x32_bf16 {d}, {vr(WF+16*(k&1)+4*f,4)}, {vr(XF+32*(k&1)+4*m,4)}, {d if k else '0'}")
                if "g1noload" in EXP: slots[j] = [e for e in slots[j] if "buffer_load" not in e[1]]
                if "g1notr" in EXP: slots[j] = [e for e in slots[j] if "_tr_" not in e[1]]
                emit(slots[j]); j += 1
    assert wdi == NWD1
    a.stamp(14)
    a(f"""s_lshl_b32 s9, s5, 1
    s_add_u32 s9, s9, s4
    s_mul_i32 s9, s9, {2*54}
    s_add_u32 s9, s9, s7
    s_lshl_b32 s9, s9, 12
    s_add_u32 s9, s9, {WS['HH']}""")
    add64(a, 14, 12, "s9"); add64(a, 28, 14, 54 * 4096)
    a("s_waitcnt lgkmcnt(0)")
    for m in range(8):
        st_ = vr(STV + 2 * m, 2); o = 96 + 4 * (m & 3)
        for h in range(2):
            G, U = ACC + 64 * h + 4 * m, ACC + 64 * h + 32 + 4 * m
            c = CB + 16 * h; t = 112 + 8 * h
            for p in range(2):
                a(f"v_pk_fma_f32 {vr(t+2*p,2)}, {vr(c+2*p,2)}, {st_}, {vr(c+4+2*p,2)} op_sel:[0,1,0] op_sel_hi:[1,1,1]")
                a(f"v_pk_fma_f32 {vr(t+4+2*p,2)}, {vr(c+8+2*p,2)}, {st_}, {vr(c+12+2*p,2)} op_sel:[0,1,0] op_sel_hi:[1,1,1]")
            for p in range(2):
                a(f"v_pk_fma_f32 {vr(G+2*p,2)}, {vr(G+2*p,2)}, {st_}, {vr(t+2*p,2)} op_sel_hi:[1,0,1]")
                a(f"v_pk_fma_f32 {vr(U+2*p,2)}, {vr(U+2*p,2)}, {st_}, {vr(t+4+2*p,2)} op_sel_hi:[1,0,1]")
            for r in range(4): a(f"v_max_f32 v{G+r}, 0, v{G+r}")
            for p in range(2): a(f"v_pk_mul_f32 {vr(G+2*p,2)}, {vr(G+2*p,2)}, {vr(U+2*p,2)}")
            for p in range(2): a(f"v_cvt_pk_bf16_f32 v{o+2*h+p}, v{G+2*p}, v{G+2*p+1}")
        sb_ = 14 if m < 4 else 28
        a(f"global_store_dwordx4 v9, {vr(o,4)}, s[{sb_}:{sb_+1}] offset:{1024*(m&3)}{SC}")
    a(f"s_branch {Lg2}\n{Lidle}:")
    phase_idle(a, Lg2)
    a(f"{Lg2}:")

def phase_g2(a):
    a.stamp(15)
    n1 = NWD1
    for i in range(n1, n1 + NWD2): a(wd_load(i))
    a(f"s_load_dwordx2 s[30:31], s[0:1], {KA['out']}")
    for sg in range(4):
        a(f"""s_add_u32 s7, s3, {sg}
        s_and_b32 s7, s7, 3
        s_lshl_b32 s8, s7, 10
        v_add_u32 v{10+sg}, s8, v9""")
        if sg: a(f"s_mul_i32 s8, s7, {15*1024}\ns_add_u32 s8, s8, {(sg-1)*5*1024}\nv_add_u32 v{13+sg}, s8, v9")
    a(f"s_mul_i32 s8, s44, {54*4096}\ns_add_u32 s8, s8, {WS['HH']}")
    add64(a, 14, 12, "s8"); srd(a, 16, 14, 54 * 4096)
    ACC, XR, GB, SEL, HB = 152, 20, 40, 60, 64
    NB = 5
    a(f"""v_and_b32 v2, 15, v0
    v_lshrrev_b32 v3, 4, v0
    v_lshlrev_b32 v4, 12, v2
    v_lshl_add_u32 v4, v3, 4, v4
    v_lshlrev_b32 v18, 4, v3
    s_mul_i32 s8, s45, {80*4096}
    s_lshl_b32 s9, s44, 7
    s_add_u32 s8, s8, s9
    s_lshr_b32 s9, s3, 1
    s_lshl_b32 s9, s9, 6
    s_add_u32 s8, s8, s9
    s_add_u32 s8, s8, {WS['X1T']}
    s_add_u32 s14, s12, s8
    s_addc_u32 s15, s13, 0
    s_mul_i32 s8, s45, 320
    s_add_u32 s8, s8, {WS['MOD'] + 5*2560}
    s_add_u32 s26, s12, s8
    s_addc_u32 s27, s13, 0
    s_and_b32 s8, s3, 1
    s_lshl_b32 s8, s8, 4
    v_lshlrev_b32 v5, 3, v3
    v_sub_u32 v5, v2, v5
    v_add_u32 v5, s8, v5
    v_mov_b32 v6, 0x3f80
    v_mov_b32 v7, 0x3f800000""")
    for p in range(4):
        a(f"""v_cmp_eq_u32 vcc, {2*p}, v5
        v_cmp_eq_u32 s[28:29], {2*p+1}, v5
        s_nop 1
        v_cndmask_b32 v{SEL+p}, 0, v6, vcc
        v_cndmask_b32 v{SEL+p}, v{SEL+p}, v7, s[28:29]""")
    a(f"""s_bfe_u32 s8, s44, 0x20002
    v_lshl_add_u32 v147, v0, 2, s8
    v_mul_u32_u24 v146, 2428, v147
    v_lshrrev_b32 v146, 16, v146
    v_lshlrev_b32 v147, 3, v147
    v_mul_u32_u24 v145, {8*27-1}, v146
    v_sub_u32 v147, v147, v145
    s_lshr_b32 s8, s44, 4
    s_lshl_b32 s8, s8, 2
    v_add_u32 v147, s8, v147
    s_lshl_b32 s24, s3, 12""")
    publish(a, 3, 148, vm=NWD2)
    a.stamp(16)
    for i in range(n1 + NWD2, 70): a(wd_load(i))
    for d in range(5): a(f"global_load_dwordx4 {vr(XR+4*d,4)}, v4, s[14:15]{SC}\ns_add_u32 s14, s14, 0x10000\ns_addc_u32 s15, s15, 0")
    for d in range(5): a(f"global_load_dwordx4 {vr(GB+4*d,4)}, v18, s[26:27] offset:{64*d}{SC}")
    poll(a, 3, None, 27, 144, idxreg=147)
    a.stamp(17)
    vm = VM()
    def hl(st):
        return [(st, (f"s_add_u32 s25, s24, {st*16384}\n" if sg == 0 else "") + f"buffer_load_dwordx4 {vr(HB+16*(st%NB)+4*sg,4)}, v{10+sg}, s[16:19], s25 offen{SC}") for sg in range(4)]
    rest = []
    def emit(e):
        if "g2noload" in EXP and "s[16:19]" in e[1] and e[0] >= 4: return
        if "g2norest" in EXP and "s[16:19]" not in e[1]: return
        a(e[1]); vm.add(e[0])
    for st in range(NB - 1):
        for e in hl(st): emit(e)
    per = -(-len(rest) // 10)
    for st in range(14):
        a(vm.wait(list(range(st + 1))) or "s_nop 0")
        if "g2stamp" in EXP and st in (0, 1, 2, 4, 6, 8, 10, 12): a.stamp({0: 1, 1: 2, 2: 3, 4: 4, 6: 5, 8: 6, 10: 7, 12: 8}[st])
        ex = hl(st + NB - 1) if st + NB - 1 < 14 else []
        if st == 10: ex += rest; rest = []
        for sg in ((0, 1, 2, 3) if st < 13 else (1, 2, 3, 0)):
            for d in range(5):
                t = vr(ACC + 20 * sg + 4 * d, 4)
                if "g2nomfma" not in EXP: a(f"v_mfma_f32_16x16x32_bf16 {t}, {wd_reg(5*st+d)}, {vr(HB+16*(st%NB)+4*sg,4)}, {t if st else '0'}")
                if ex: emit(ex.pop(0))
                if st == 13 and sg in (3, 0): a(f"ds_write_b128 v{14 if sg == 3 else 15}, {vr(ACC+20*(1 if sg == 3 else 2)+4*d,4)} offset:{1024*d}")
        assert not ex
    assert not rest
    a.stamp(18)
    XD = 64
    a("s_waitcnt vmcnt(0)")
    for d in range(5):
        a(f"v_mfma_f32_16x16x32_bf16 {vr(XD+4*d,4)}, {vr(XR+4*d,4)}, {vr(SEL,4)}, 0")
        a(f"ds_write_b128 v16, {vr(ACC+60+4*d,4)} offset:{1024*d}")
    a(f"""s_mul_i32 s8, s3, {15*1024}
    v_add_u32 v17, s8, v9
    v_mul_u32_u24 v4, 1280, v2
    v_lshl_add_u32 v4, v3, 3, v4
    s_lshl_b32 s8, s44, 2
    s_add_u32 s8, s8, s3
    s_mul_i32 s8, s8, {16*1280}
    s_mul_i32 s9, s45, 160
    s_add_u32 s8, s8, s9
    s_waitcnt lgkmcnt(0)""")
    add64(a, 30, 30, "s8")
    a("s_barrier")
    for d in range(5):
        for sg in range(1, 4): a(f"ds_read_b128 {vr(ACC+20*sg+4*d,4)}, v17 offset:{1024*(5*(sg-1)+d)}")
    for d in range(5):
        a(f"s_waitcnt lgkmcnt({12-3*d})")
        t = ACC + 4 * d
        for p in range(2):
            a(f"v_pk_add_f32 {vr(t+2*p,2)}, {vr(t+2*p,2)}, {vr(t+20+2*p,2)}")
            a(f"v_pk_add_f32 {vr(t+40+2*p,2)}, {vr(t+40+2*p,2)}, {vr(t+60+2*p,2)}")
        for p in range(2): a(f"v_pk_add_f32 {vr(t+2*p,2)}, {vr(t+2*p,2)}, {vr(t+40+2*p,2)}")
        for p in range(2): a(f"v_pk_fma_f32 {vr(t+2*p,2)}, {vr(t+2*p,2)}, {vr(GB+4*d+2*p,2)}, {vr(XD+4*d+2*p,2)}")
        a(f"v_cvt_pk_bf16_f32 v{t}, v{t}, v{t+1}\nv_cvt_pk_bf16_f32 v{t+1}, v{t+2}, v{t+3}")
        a(f"global_store_dwordx2 v4, {vr(t,2)}, s[30:31] offset:{32*d}")

def build():
    a = A()
    hdr = open("cdna_kernels/" + NAME + ".s.ref").read().split("; Override launch")[0]
    a(f'.amdgcn_target "amdgcn-amd-amdhsa--gfx950"\n.text\n.globl {KNAME}\n.p2align 8\n.type {KNAME},@function\n{KNAME}:')
    Lend, Laux, Lg1, Lnt = a.label("end"), a.label("aux"), a.label("g1"), a.label("notag")
    if DIAG:
        for i in range(NSTAMP): a(f"s_mov_b32 s{48+i}, 0")
    a.stamp(0)
    a(f"""s_cmp_ge_u32 s2, 256
    s_cbranch_scc1 {Lend}
    s_load_dwordx2 s[12:13], s[0:1], {KA['ws']}
    s_load_dwordx2 s[72:73], s[0:1], {KA['dbg']}
    v_lshrrev_b32 v1, 6, v0
    v_and_b32 v0, 63, v0
    v_readfirstlane_b32 s3, v1
    s_mov_b32 s69, 0xffff0000
    s_cmp_lg_u32 s2, 255
    s_cbranch_scc1 {Lnt}
    s_cmp_lg_u32 s3, 0
    s_cbranch_scc1 {Lnt}
    s_memrealtime s[70:71]
    v_mov_b32 v4, 0
    s_waitcnt lgkmcnt(0)
    s_or_b32 s70, s70, 1
    v_mov_b32 v2, s70
    v_mov_b32 v3, s71
    s_mov_b64 exec, 1
    global_store_dwordx2 v4, v[2:3], s[72:73]{SC}
    s_mov_b64 exec, -1
    {Lnt}:""")
    if "tlb" in EXP:
        TSH = int(os.environ.get("TSH", "20"))
        Ltl = a.label("notouch")
        npg = (_off >> TSH) + 1
        assert npg <= 64
        a(f"""s_cmp_lg_u32 s3, 1
        s_cbranch_scc1 {Ltl}
        s_load_dwordx4 s[4:7], s[0:1], {KA['wg']}
        s_load_dwordx2 s[8:9], s[0:1], {KA['wd']}
        s_load_dwordx2 s[10:11], s[0:1], {KA['out']}
        v_min_u32 v2, {npg-1}, v0
        v_lshlrev_b32 v2, {TSH}, v2
        v_min_u32 v3, 0x200000, v2
        s_waitcnt lgkmcnt(0)
        global_load_dword v251, v2, s[12:13]{NT}
        global_load_dword v251, v3, s[4:5]{NT}
        global_load_dword v251, v3, s[6:7]{NT}
        global_load_dword v251, v3, s[8:9]{NT}
        global_load_dword v251, v3, s[10:11]{NT}
        {Ltl}:""")
    a(f"""s_cmp_ge_u32 s2, 160
    s_cbranch_scc1 {Laux}""")
    phase_conv(a, Lg1)
    a(f"{Laux}:")
    phase_aux(a, Lg1)
    a(f"{Lg1}:")
    phase_g1(a)
    phase_g2(a)
    if DIAG:
        a("s_waitcnt vmcnt(0)")
        a.stamp(19)
        AMP = os.environ.get("AMP", "")
        if AMP:
            i, wgsel = (int(x) for x in AMP.split(":"))
            Lsp, Lsk = a.label("spin"), a.label("nospin")
            a(f"""s_cmp_lg_u32 s2, {wgsel}
            s_cbranch_scc1 {Lsk}
            s_sub_u32 s4, s{48+i}, s48
            s_lshl_b32 s4, s4, 3
            {Lsp}:
            s_memrealtime s[76:77]
            s_waitcnt lgkmcnt(0)
            s_sub_u32 s5, s76, s67
            s_cmp_lt_u32 s5, s4
            s_cbranch_scc1 {Lsp}
            {Lsk}:""")
        a(f"""s_lshl_b32 s4, s2, 2
        s_add_u32 s4, s4, s3
        s_lshl_b32 s4, s4, 7
        s_add_u32 s4, s4, {TS_OFF}
        v_mov_b32 v0, s4
        s_mov_b64 exec, 1""")
        for i in range(NSTAMP): a(f"v_mov_b32 v2, s{48+i}\nglobal_store_dword v0, v2, s[12:13] offset:{4*i}\ns_nop 1")
    a(f"{Lend}:\ns_endpgm\ncode_end:")
    kd = f""".section .rodata,"a"
.p2align 6
.amdhsa_kernel {KNAME}
  .amdhsa_next_free_vgpr 512
  .amdhsa_next_free_sgpr 102
  .amdhsa_accum_offset 256
  .amdhsa_group_segment_fixed_size 0
  .amdhsa_kernarg_size 120
  .amdhsa_user_sgpr_count 2
  .amdhsa_user_sgpr_kernarg_segment_ptr 1
  .amdhsa_system_sgpr_workgroup_id_x 1
.end_amdhsa_kernel
"""
    return hdr + f"; @launch grid=(256,1,1) block=(256,1,1) lds={LDS_BYTES}\n" + a.text() + kd

if __name__ == "__main__":
    open(sys.argv[1] if len(sys.argv) > 1 else "p.s", "w").write(build())
```

```python
import sys, os
NAME = "adaLN_cond__ssm_conv_h3__glu_gated_reglu__prompt"
KNAME = NAME + "_kernel"
S, D, F = 2048, 640, 1728
KA = dict(x=0, k=8, v=16, shift=24, ssm=32, ssmD=40, bx=48, wg=56, wu=64, wd=72, c=80, wmod=88, out=96, dbg=104, ws=112)
WS = {}
_off = 0
def alloc(name, n):
    global _off
    WS[name] = _off
    _off += (n + 4095) // 4096 * 4096
alloc("FL", 6 * 256 * 128)
alloc("KVT", 640 * 4096 + 4096)
alloc("XTT", 640 * 4096)
alloc("ST", 2 * 2048 * 4)
alloc("MOD", 3840 * 4)
alloc("X1T", 640 * 4096)
alloc("X1S", 640 * 4096)
alloc("ST2", 2048 * 8)
alloc("CSB", 4 * 1728 * 4)
alloc("WD", 54 * 40 * 1024)
alloc("HH", 32 * 54 * 4096)
DIAG = bool(int(os.environ.get("DIAG", "0")))
EXP = os.environ.get("EXP", "").split(",")
TS_OFF = 64 << 20
NSTAMP = 20
SLEEP = int(os.environ.get("SLEEP", "1"))
FLMASK = os.environ.get("FLMASK", "0xffff")
NT = " nt"
SC = " sc1"
INV640 = f"{1.0/640:#.9g}"

class A:
    def __init__(self):
        self.l = []; self.n = 0
    def __call__(self, s):
        for x in s.strip("\n").split("\n"):
            x = x.strip()
            if x: self.l.append(("" if x.endswith(":") else "    ") + x)
    def label(self, p="L"):
        self.n += 1
        return f"{p}_{self.n}"
    def stamp(self, i):
        if DIAG: self(f"{'s_memtime' if 'cyc' in EXP else 's_memrealtime'} s[76:77]\ns_waitcnt lgkmcnt(0)\ns_mov_b32 s{48+i}, s76")
    def text(self): return "\n".join(self.l) + "\n"

def vr(b, n=1, p="v"): return f"{p}{b}" if n == 1 else f"{p}[{b}:{b+n-1}]"
def ar(b, n=1): return vr(b, n, "a")
def srd(a, dst, base, nbytes):
    a(f"s_mov_b32 s{dst}, s{base}\ns_and_b32 s{dst+1}, s{base+1}, 0xffff\ns_mov_b32 s{dst+2}, {nbytes}\ns_mov_b32 s{dst+3}, 0x20000")
def add64(a, dst, base, off):
    a(f"s_add_u32 s{dst}, s{base}, {off}\ns_addc_u32 s{dst+1}, s{base+1}, 0")
def dma(a, voff, sbase, m0, extra=""):
    a(f"s_mov_b32 m0, {m0}\ns_nop 0\nglobal_load_lds_dwordx4 v{voff}, s[{sbase}:{sbase+1}]{extra}")
def rbf16(a, dst, src):
    a(f"v_cvt_pk_bf16_f32 v{dst}, v{src}, v{src}\nv_lshlrev_b32 v{dst}, 16, v{dst}")

def get_tag(a, vt):
    L, Ld = a.label("tag"), a.label("tagd")
    a(f"""s_mov_b32 s74, 0x100000
    v_mov_b32 v{vt+2}, 0
    {L}:
    s_mov_b64 exec, 1
    global_load_dwordx2 {vr(vt,2)}, v{vt+2}, s[72:73]{SC}
    s_mov_b64 exec, -1
    s_waitcnt vmcnt(0)
    v_readfirstlane_b32 s70, v{vt}
    v_readfirstlane_b32 s71, v{vt+1}
    s_sub_u32 s74, s74, 1
    s_cbranch_scc1 {Ld}
    s_cmp_eq_u64 s[70:71], 0
    s_cbranch_scc1 {L}
    {Ld}:""")

def publish(a, phase, vt, vm=0, nosync=False):
    L = a.label("pub")
    if not nosync: a(f"s_waitcnt vmcnt({vm})\ns_barrier")
    a(f"""s_cmp_lg_u32 s3, 0
    s_cbranch_scc1 {L}
    s_lshl_b32 s74, s2, 7
    s_add_u32 s74, s74, {WS['FL'] + phase*256*128}
    v_lshl_add_u32 v{vt+2}, v0, 3, s74
    v_mov_b32 v{vt}, s70
    v_mov_b32 v{vt+1}, s71
    s_mov_b64 exec, {FLMASK}
    global_store_dwordx2 v{vt+2}, {vr(vt,2)}, s[12:13]{SC}
    s_mov_b64 exec, -1
    {L}:""")

def poll(a, phase, first, count, vt, idxreg=None):
    L, Ld = a.label("poll"), a.label("polld")
    if idxreg is None:
        a(f"v_add_u32 v{vt+2}, {first}, v0")
        idxreg = vt + 2
    a(f"""v_lshlrev_b32 v{vt+2}, 7, v{idxreg}
    v_add_u32 v{vt+2}, {WS['FL'] + phase*256*128}, v{vt+2}
    s_mov_b32 s74, 0x100000""")
    if count < 64: a(f"s_mov_b64 exec, {(1 << count) - 1:#x}" if count <= 31 else f"s_mov_b32 exec_hi, {(1 << (count - 32)) - 1:#x}")
    a(f"""{L}:
    global_load_dwordx2 {vr(vt,2)}, v{vt+2}, s[12:13]{SC}
    s_waitcnt vmcnt(0)
    v_cmp_ne_u64 vcc, s[70:71], {vr(vt,2)}
    s_and_b64 exec, exec, vcc
    s_cbranch_execz {Ld}
    s_sleep {SLEEP}
    s_sub_u32 s74, s74, 1
    s_cbranch_scc0 {L}
    {Ld}:
    s_mov_b64 exec, -1""")

def poll_multi(a, phase, count, vt):
    L, Ld = a.label("pollm"), a.label("pollmd")
    a(f"""v_lshlrev_b32 v{vt+6}, 7, v0
    v_add_u32 v{vt+6}, {WS['FL'] + phase*256*128}, v{vt+6}
    v_add_u32 v{vt+7}, {64*128}, v{vt+6}
    v_add_u32 v{vt+8}, {128*128}, v{vt+6}
    s_mov_b64 s[38:39], -1
    s_mov_b64 s[10:11], -1
    s_mov_b32 s28, {(1 << (count - 128)) - 1:#x}
    s_mov_b32 s29, 0
    s_mov_b32 s74, 0x100000
    {L}:""")
    for i, m in enumerate(("s[38:39]", "s[10:11]", "s[28:29]")):
        Ls = a.label("pm")
        a(f"s_mov_b64 exec, {m}\ns_cbranch_execz {Ls}\nglobal_load_dwordx2 {vr(vt+2*i,2)}, v{vt+6+i}, s[12:13]{SC}\n{Ls}:")
    a("s_mov_b64 exec, -1\ns_waitcnt vmcnt(0)")
    for i, m in enumerate(("s[38:39]", "s[10:11]", "s[28:29]")):
        a(f"v_cmp_ne_u64 vcc, s[70:71], {vr(vt+2*i,2)}\ns_and_b64 {m}, {m}, vcc")
    a(f"""s_or_b64 vcc, s[38:39], s[10:11]
    s_or_b64 vcc, vcc, s[28:29]
    s_cbranch_scc0 {Ld}
    s_sleep {SLEEP}
    s_sub_u32 s74, s74, 1
    s_cbranch_scc0 {L}
    {Ld}:""")

def xtile_tr_addrs(a, dst, base_sgpr=None):
    a("""v_lshrrev_b32 v2, 2, v0
    v_and_b32 v3, 7, v2
    v_lshlrev_b32 v3, 1, v3
    v_bfe_u32 v4, v0, 1, 1
    v_or_b32 v3, v3, v4
    v_lshlrev_b32 v2, 8, v2
    v_and_b32 v4, 1, v0
    v_lshl_add_u32 v2, v4, 3, v2""")
    if base_sgpr is not None: a(f"v_add_u32 v2, s{base_sgpr}, v2")
    for m in range(8): a(f"v_xor_b32 v4, {2*m}, v3\nv_lshl_add_u32 v{dst+m}, v4, 4, v2")

def stats_issue(a, R, sx, srow):
    a(f"""s_lshl_b32 s14, s3, 4
    s_add_u32 s14, s14, s{srow}
    s_mul_i32 s14, s14, 1280
    v_lshrrev_b32 v{R+80}, 4, v0
    v_mul_u32_u24 v{R+80}, {1280-256}, v{R+80}
    v_lshl_add_u32 v{R+80}, v0, 4, v{R+80}""")
    add64(a, 14, sx, "s14")
    for gq in range(4):
        for i in range(5): a(f"global_load_dwordx4 {vr(R+20*gq+4*i,4)}, v{R+80}, s[14:15] offset:{256*i}{NT}")
        if gq < 3: add64(a, 14, 14, 4 * 1280)
def stats_compute(a, R, srow):
    T = R + 80
    a("s_mov_b32 s14, 0x3f803f80")
    for half in range(2):
        a(f"s_waitcnt vmcnt({11 if half == 0 else 1})")
        for i in range(20):
            for gq in (2 * half, 2 * half + 1):
                a(f"v_dot2_f32_bf16 v{T+2*gq}, v{R+20*gq+i}, s14, {'0' if i == 0 else f'v{T+2*gq}'}")
                a(f"v_dot2_f32_bf16 v{T+2*gq+1}, v{R+20*gq+i}, v{R+20*gq+i}, {'0' if i == 0 else f'v{T+2*gq+1}'}")
    a("s_nop 2")
    for rot in (8, 4, 2, 1):
        for j in range(8): a(f"v_add_f32_dpp v{T+j}, v{T+j}, v{T+j} row_ror:{rot} row_mask:0xf bank_mask:0xf")
    a(f"""v_and_b32 v{R}, 3, v0
    v_cmp_eq_u32 vcc, 1, v{R}
    v_cmp_eq_u32 s[14:15], 2, v{R}
    v_cmp_eq_u32 s[16:17], 3, v{R}
    v_lshrrev_b32 v{R+1}, 4, v0
    v_lshl_add_u32 v{R}, v{R}, 2, v{R+1}
    v_cndmask_b32 v{T}, v{T}, v{T+2}, vcc
    v_cndmask_b32 v{T+1}, v{T+1}, v{T+3}, vcc
    v_cndmask_b32 v{T}, v{T}, v{T+4}, s[14:15]
    v_cndmask_b32 v{T+1}, v{T+1}, v{T+5}, s[14:15]
    v_cndmask_b32 v{T}, v{T}, v{T+6}, s[16:17]
    v_cndmask_b32 v{T+1}, v{T+1}, v{T+7}, s[16:17]
    v_mul_f32 v{T}, {INV640}, v{T}
    v_mul_f32 v{T+1}, {INV640}, v{T+1}
    v_fma_f32 v{T+1}, -v{T}, v{T}, v{T+1}
    v_max_f32 v{T+1}, 0, v{T+1}
    v_add_f32 v{T+1}, 0x3727c5ac, v{T+1}
    v_rsq_f32 v{T+1}, v{T+1}
    s_lshl_b32 s14, s3, 4
    s_add_u32 s14, s14, s{srow}
    s_lshl_b32 s14, s14, 3
    s_add_u32 s14, s14, {WS['ST']}
    v_mul_f32 v{T}, -v{T}, v{T+1}
    v_and_b32 v{R+1}, 4, v0
    v_cmp_eq_u32 vcc, 0, v{R+1}
    v_lshl_add_u32 v{R}, v{R}, 2, s14
    v_lshl_add_u32 v{R}, v{R+1}, 4, v{R}
    v_cndmask_b32 v{T}, v{T}, v{T+1}, vcc
    s_mov_b32 exec_lo, 0xff00ff
    s_mov_b32 exec_hi, 0xff00ff
    global_store_dword v{R}, v{T}, s[12:13]{SC}
    s_mov_b64 exec, -1""")

def mod_slab(a, sslab, sc, sw, ldsoff):
    R, CR, SV, ACC, U = 100, 180, 16, 56, 64
    a(f"""s_lshl_b32 s14, s3, 3
    v_lshrrev_b32 v2, 3, v0
    v_add_u32 v2, s14, v2
    v_mul_u32_u24 v3, 40, v2
    global_load_dwordx4 {vr(CR,4)}, v3, s[{sc}:{sc+1}]
    global_load_dwordx4 {vr(CR+4,4)}, v3, s[{sc}:{sc+1}] offset:16
    global_load_dwordx2 {vr(CR+8,2)}, v3, s[{sc}:{sc+1}] offset:32
    v_mul_u32_u24 v2, {20*7680}, v2
    v_and_b32 v3, 7, v0
    v_lshl_add_u32 v2, v3, 4, v2
    s_lshl_b32 s16, s{sslab}, 7""")
    add64(a, 14, sw, "s16")
    for i in range(20):
        a(f"global_load_dwordx4 {vr(R+4*i,4)}, v2, s[14:15]{NT}")
        if i < 19: add64(a, 14, 14, 7680)
        if i == 9:
            a("s_waitcnt vmcnt(10)")
            for j in range(10): a(f"v_lshlrev_b32 v{SV+4*j+1}, 16, v{CR+j}\nv_and_b32 v{SV+4*j+3}, s69, v{CR+j}")
            for j in range(20): a(f"v_mul_f32 v{SV+2*j}, 0xbfb8aa3b, v{SV+2*j+1}")
            for j in range(20): a(f"v_exp_f32 v{SV+2*j}, v{SV+2*j}")
            for j in range(20): a(f"v_add_f32 v{SV+2*j}, 1.0, v{SV+2*j}")
            for j in range(20): a(f"v_rcp_f32 v{SV+2*j}, v{SV+2*j}")
            for j in range(20): a(f"v_mul_f32 v{SV+2*j}, v{SV+2*j+1}, v{SV+2*j}")
            for j in range(10): a(f"v_cvt_pk_bf16_f32 v{SV+4*j+1}, v{SV+4*j}, v{SV+4*j+2}")
            for j in range(10): a(f"v_lshlrev_b32 v{SV+4*j}, 16, v{SV+4*j+1}\nv_and_b32 v{SV+4*j+2}, s69, v{SV+4*j+1}")
    tag_issue(a, 212)
    for i in range(20):
        a(f"s_waitcnt vmcnt({20-i if i < 19 else 0})")
        u = U + 8 * (i & 1)
        for j in range(4): a(f"v_lshlrev_b32 v{u+2*j}, 16, v{R+4*i+j}\nv_and_b32 v{u+2*j+1}, s69, v{R+4*i+j}")
        for j in range(4):
            if i == 0: a(f"v_pk_mul_f32 {vr(ACC+2*j,2)}, {vr(u+2*j,2)}, {vr(SV,2)} op_sel_hi:[1,0]")
            else: a(f"v_pk_fma_f32 {vr(ACC+2*j,2)}, {vr(u+2*j,2)}, {vr(SV+2*i,2)}, {vr(ACC+2*j,2)} op_sel_hi:[1,0,1]")
    a("s_nop 1")
    for j in range(4): a(f"v_permlane32_swap_b32 v{ACC+j}, v{ACC+4+j}")
    a("s_nop 0")
    for j in range(4): a(f"v_add_f32 v{ACC+j}, v{ACC+j}, v{ACC+4+j}")
    a("s_nop 1")
    for j in range(2): a(f"v_permlane16_swap_b32 v{ACC+j}, v{ACC+2+j}")
    a("s_nop 0")
    for j in range(2): a(f"v_add_f32 v{ACC+j}, v{ACC+j}, v{ACC+2+j}")
    a("s_nop 1")
    for j in range(2): a(f"v_add_f32_dpp v{ACC+j}, v{ACC+j}, v{ACC+j} row_ror:8 row_mask:0xf bank_mask:0xf")
    L = a.label("modfin")
    a(f"""s_lshl_b32 s14, s3, 8
    s_add_u32 s14, s14, {ldsoff}
    v_lshrrev_b32 v4, 4, v0
    v_lshlrev_b32 v3, 5, v3
    v_lshl_add_u32 v3, v4, 3, v3
    v_add_u32 v3, s14, v3
    ds_write_b64 v3, {vr(ACC,2)}
    s_waitcnt lgkmcnt(0)
    s_barrier
    s_cmp_lg_u32 s3, 0
    s_cbranch_scc1 {L}
    v_lshlrev_b32 v2, 2, v0
    v_add_u32 v3, {ldsoff}, v2
    ds_read2st64_b32 v[4:5], v3 offset0:0 offset1:1
    ds_read2st64_b32 v[6:7], v3 offset0:2 offset1:3
    s_lshl_b32 s14, s{sslab}, 8
    s_add_u32 s14, s14, {WS['MOD']}
    v_add_u32 v2, s14, v2
    s_waitcnt lgkmcnt(0)
    v_pk_add_f32 v[4:5], v[4:5], v[6:7]
    s_nop 0
    v_add_f32 v4, v4, v5""")
    rbf16(a, 4, 4)
    a(f"global_store_dword v2, v4, s[12:13]{SC}\n{L}:")

RW = 4608 + 4160 * 2
OF, OE, OO = 512, 4608, 4608 + 4160
KB = 68096; VB = KB + 17 * 1040; XB = VB + 16 * 1040; MRED = XB + 16 * 1040
WRING = 69632; STL = WRING + 65536; CSL = STL + 4096
W3L = CSL + 2048
LDS_BYTES = W3L + 20480

def tag_issue(a, vt):
    a(f"v_mov_b32 v{vt+2}, 0\ns_mov_b64 exec, 1\nglobal_load_dwordx2 {vr(vt,2)}, v{vt+2}, s[72:73]{SC}\ns_mov_b64 exec, -1")
def tag_check(a, vt):
    Ld = a.label("tagok")
    a(f"""v_readfirstlane_b32 s70, v{vt}
    v_readfirstlane_b32 s71, v{vt+1}
    s_cmp_lg_u64 s[70:71], 0
    s_cbranch_scc1 {Ld}""")
    get_tag(a, vt)
    a(f"{Ld}:")

def interleave(a, mfmas, reads, valu, vmem=()):
    n = len(mfmas)
    slots = [[] for _ in range(n)]
    cap = [2] * n
    vmem = list(vmem)
    for i, (pre, x) in enumerate(vmem):
        p = 1 + (i * (n - 1)) // len(vmem)
        if pre: slots[p - 1].append(pre)
        slots[p].insert(0, x); cap[p] = 0
    free = [i for i in range(n) if cap[i]]
    for e, p in zip(reads, free): slots[p].insert(0, e); cap[p] -= 1
    assert len(reads) <= len(free)
    valu = list(valu)
    tot = sum(cap)
    order = [i for i in range(n) for _ in range(cap[i])]
    if len(valu) < len(order):
        first = [i for i in range(n) if cap[i] == 2]
        pool = sorted(first + [i for i in range(n) if cap[i] >= 1])[:]
        step = len(pool) / max(len(valu), 1)
        order = [pool[int(i * step)] for i in range(len(valu))]
    for i, e in enumerate(valu): slots[order[i] if i < len(order) else n - 1].append(e)
    for m, sl in zip(mfmas, slots):
        a(m)
        for e in sl: a(e)

FLAG2 = f"s_mov_b64 exec, 1\nglobal_load_dwordx2 v[236:237], v240, s[12:13]{SC}\ns_mov_b64 exec, -1"
def flag2_setup(a, zero=False):
    a(f"""s_and_b32 s74, s2, 63
    s_lshl_b32 s74, s74, 7
    s_add_u32 s74, s74, {WS['FL'] + 5*256*128}
    v_mov_b32 v240, s74
    v_mov_b32 v236, s70
    v_mov_b32 v237, s71""")
    if zero: a("v_writelane_b32 v236, 0, 0")
def flag2_check(a, first=False):
    Lok, Lsl, Lld = a.label("f2_ok"), a.label("f2_slow"), a.label("f2_ld")
    a("s_mov_b32 s74, 0x100000")
    if first: a(f"s_branch {Lld}")
    a(f"""{Lsl}:
    v_cmp_ne_u64 vcc, s[70:71], v[236:237]
    s_cbranch_vccz {Lok}
    s_sleep 4
    {Lld}:
    {FLAG2}
    s_waitcnt vmcnt(0)
    s_sub_u32 s74, s74, 1
    s_cbranch_scc0 {Lsl}
    {Lok}:""")
WEL = [int(x) for x in os.environ.get("WEL", "0,2,5,8").split(",")]
NWE = WEL[3]; H2 = int(os.environ.get("H2", "32")); ELP = int(os.environ.get("ELP", "3")); HKP = int(os.environ.get("HKP", "0"))
PUBT = int(os.environ.get("PUBT", "1"))
XST = int(os.environ.get("XST", "0"))
AORD = int(os.environ.get("AORD", "0"))
HK = int(os.environ.get("HK", "4")); HKF = int(os.environ.get("HKF", "3"))
def phase_conv(a, Lg1):
    a(f"""s_load_dwordx4 s[4:7], s[0:1], {KA['x']}
    s_load_dwordx4 s[8:11], s[0:1], {KA['v']}
    s_load_dwordx4 s[36:39], s[0:1], {KA['ssm']}
    s_load_dwordx4 s[40:43], s[0:1], {KA['c']}
    s_lshr_b32 s44, s2, 4
    s_and_b32 s45, s2, 15
    v_lshrrev_b32 v4, 3, v0
    v_and_b32 v5, 7, v0
    v_mul_u32_u24 v2, 1280, v4
    v_lshl_add_u32 v2, v5, 4, v2
    s_lshl_b32 s14, s45, 4
    s_add_u32 s14, s14, s3
    s_mul_i32 s14, s14, {8*1280}
    s_lshl_b32 s15, s44, 7
    s_add_u32 s14, s14, s15
    v_add_u32 v2, s14, v2
    v_add_u32 v3, {(-8*1280) & 0xffffffff}, v2
    s_lshl_b32 s14, s3, 3
    v_add_u32 v6, s14, v4
    s_lshl_b32 s14, s44, 9
    v_lshl_add_u32 v7, v6, 4, s14
    s_mul_i32 s28, s3, 1040
    s_mov_b32 s29, {32*1280}
    s_mov_b32 s30, {64*1280}
    s_mov_b32 s31, {96*1280}
    s_waitcnt lgkmcnt(0)""")
    srd(a, 16, 6, S * D * 2); srd(a, 20, 8, S * D * 2); srd(a, 24, 4, S * D * 2)
    Lh = a.label("nohalo")
    a(f"""s_cmp_lg_u32 s3, 0
    s_cbranch_scc1 {Lh}
    s_mov_b32 m0, {KB}
    s_nop 0
    buffer_load_dwordx4 v3, s[16:19], 0 offen{NT} lds
    {Lh}:""")
    SH = 8
    so = ["0", "s29", "s30", "s31"]
    def tile_dma(base, srdb):
        for i in range(4):
            a(f"s_add_u32 m0, s28, {base + 4*1040*i}\ns_nop 0\nbuffer_load_dwordx4 v2, s[{srdb}:{srdb+3}], {so[i]} offen{NT} lds")
    tile_dma(KB + 1040, 16); tile_dma(VB, 20)
    a(f"global_load_dwordx4 {vr(SH,4)}, v7, s[10:11]")
    code_prefetch(a)
    if AORD == 0: tile_dma(XB, 24)
    else: a("v_mov_b32 v243, v2")
    a(f"""    v_mul_u32_u24 v242, 1040, v5
    v_lshl_add_u32 v242, v6, 2, v242
    v_add_u32 v242, {KB}, v242
    v_xor_b32 v3, 7, v5
    v_mul_u32_u24 v12, 1040, v3
    v_lshl_add_u32 v12, v6, 2, v12
    v_add_u32 v12, {KB}, v12
    v_lshlrev_b32 v13, 13, v6
    v_lshl_add_u32 v14, v5, 4, v13
    v_mov_b32 v13, v14
    s_lshl_b32 s14, s44, 18
    s_lshl_b32 s15, s45, 8
    s_sub_u32 s32, s14, s15
    s_add_u32 s32, s32, {WS['KVT'] + 4096 + 240*16}
    s_add_u32 s34, s14, s15
    s_add_u32 s34, s34, {WS['XTT'] + 4096}""")
    add64(a, 32, 12, "s32"); add64(a, 34, 12, "s34")
    a(f"""s_lshl_b32 s8, s2, 2
    s_add_u32 s8, s8, s3
    s_mul_i32 s9, s3, {RW}
    s_add_u32 s9, s9, 16384
    s_lshl_b32 s10, s8, 12
    v_lshlrev_b32 v2, 4, v0
    v_and_b32 v4, 15, v0
    v_lshrrev_b32 v5, 4, v0
    v_mov_b32 v216, 0
    v_mov_b32 v217, 0
    v_lshl_add_u32 v6, v0, 3, s9
    ds_write_b64 v6, v[216:217]
    v_lshl_add_u32 v6, v4, 2, s9
    ds_write_b32 v6, v216 offset:{OE+4096}
    ds_write_b32 v6, v216 offset:{OO+4096}""")
    add64(a, 36, 36, "s10")
    a(f"s_add_u32 s11, s9, {OF}")
    if AORD < 2:
        for i in range(4): dma(a, 2, 36, "s11", f" offset:{1024*i}{NT}")
    a.stamp(1)
    a(f"s_waitcnt vmcnt({9 - 4*AORD}) lgkmcnt(0)\ns_barrier")
    a.stamp(2)
    SP, KR, VR_, KP, VP, KV, OUT = 16, 24, 46, 62, 84, 100, 116
    def rdk(h, lo, hi):
        for i in range(lo, hi):
            off = 8320 * h + (640 + 128 * i if i < 3 else 1040 + 128 * (i - 3))
            a(f"ds_read_b32 v{KR+11*h+i}, v12 offset:{off}")
    def rdv(h, lo, hi, base=VB, dst=VR_):
        for i in range(lo, hi): a(f"ds_read_b32 v{dst+8*h+i}, v12 offset:{base-KB + 8320*h + 128*i}")
    rdk(0, 0, 11); rdv(0, 0, 4)
    tag_issue(a, 212)
    a(f"""s_lshl_b32 s17, s8, 1
    v_mov_b32 v218, s17
    global_load_ushort v218, v218, s[38:39]
    v_lshlrev_b32 v{SP+0}, 16, v{SH+0}
    v_lshlrev_b32 v{SP+1}, 16, v{SH+2}
    v_and_b32 v{SP+2}, s69, v{SH+0}
    v_and_b32 v{SP+3}, s69, v{SH+2}
    v_lshlrev_b32 v{SP+4}, 16, v{SH+1}
    v_lshlrev_b32 v{SP+5}, 16, v{SH+3}
    v_and_b32 v{SP+6}, s69, v{SH+1}
    v_and_b32 v{SP+7}, s69, v{SH+3}""")
    def ks(h):
        for i in range(11): a(f"v_lshlrev_b32 v{KP+2*i}, 16, v{KR+11*h+i}\nv_and_b32 v{KP+2*i+1}, s69, v{KR+11*h+i}")
        for r in range(8): a(f"v_pk_mul_f32 {vr(KV+2*r,2)}, {vr(KP+2*r,2)}, {vr(SP+6,2)}")
        for j in (2, 1, 0):
            for r in range(8): a(f"v_pk_fma_f32 {vr(KV+2*r,2)}, {vr(KP+2*(r+3-j),2)}, {vr(SP+2*j,2)}, {vr(KV+2*r,2)}")
    def kvs(h):
        for i in range(8): a(f"v_lshlrev_b32 v{VP+2*i}, 16, v{VR_+8*h+i}\nv_and_b32 v{VP+2*i+1}, s69, v{VR_+8*h+i}")
        for r in range(8): a(f"v_pk_mul_f32 {vr(KV+2*r,2)}, {vr(KV+2*r,2)}, {vr(VP+2*r,2)}")
        for ch in range(2):
            o = OUT + 8 * h + 4 * ch
            for j in range(4): a(f"v_cvt_pk_bf16_f32 v{o+j}, v{KV+2*(7-2*j)+ch}, v{KV+2*(6-2*j)+ch}")
            a(f"global_store_dwordx4 v13, {vr(o,4)}, s[32:33] offset:{-4096*(1-ch) + 128*(1-h)}{SC}")
    a("s_waitcnt lgkmcnt(4)"); rdv(0, 4, 8); rdk(1, 0, 7)
    ks(0)
    a("s_waitcnt lgkmcnt(7)"); rdk(1, 7, 11); rdv(1, 0, 4)
    kvs(0)
    a("s_waitcnt lgkmcnt(4)"); rdv(1, 4, 8)
    ks(1)
    a("s_waitcnt lgkmcnt(0)")
    kvs(1)
    a.stamp(3)
    if AORD == 2:
        for i in range(4): dma(a, 2, 36, "s11", f" offset:{1024*i}{NT}")
    if AORD:
        for i in range(4):
            a(f"s_add_u32 m0, s28, {XB + 4*1040*i}\ns_nop 0\nbuffer_load_dwordx4 v243, s[24:27], {so[i]} offen{NT} lds")
    RA, RB = 220, 224
    a(f"""v_and_b32 v6, 1, v4
    v_xor_b32 v6, 1, v6
    v_mul_u32_u24 v6, {4160-2}, v6
    v_lshl_add_u32 v6, v5, 4, v6
    v_lshlrev_b32 v7, 1, v4
    v_sub_u32 v6, v6, v7
    v_add_u32 v6, s9, v6""")
    for q2 in range(4): a(f"v_add_u32 v{RA+q2}, {OE + 2*2031 - 512*(2*q2+1) - 64*7}, v6")
    a(f"""v_lshlrev_b32 v6, 5, v4
    v_lshl_add_u32 v15, v5, 3, v6
    v_lshl_add_u32 v6, v5, 4, v6
    v_add_u32 v6, s9, v6
    v_add_u32 v{RB}, {OF - 32 - 64*7}, v6
    v_add_u32 v3, s9, v2""")
    a(f"s_waitcnt vmcnt({4 + 4*AORD})")
    tag_check(a, 212)
    publish(a, 0, 212, vm=4*AORD)
    a.stamp(4)
    def xtrans():
        for h in range(2):
            for i in range(8): a(f"ds_read_b32 v{24+8*h+i}, v242 offset:{XB-KB + 8320*h + 128*i}")
            if h == 0: a("s_waitcnt lgkmcnt(6)")
        a("s_mov_b32 s14, 0x05040100\ns_mov_b32 s15, 0x07060302")
        for h in range(2):
            a(f"s_waitcnt lgkmcnt({8 if h == 0 else 0})")
            for ch in range(2):
                o = 40 + 8 * h + 4 * ch
                for j in range(4): a(f"v_perm_b32 v{o+j}, v{24+8*h+2*j+1}, v{24+8*h+2*j}, s{14+ch}")
                a(f"global_store_dwordx4 v14, {vr(o,4)}, s[34:35] offset:{-4096*(1-ch) + 128*h}{SC}")
    if AORD == 0: xtrans()
    a(f"s_add_u32 s10, s10, {WS['KVT']}\ns_add_u32 s11, s9, {OE}")
    add64(a, 16, 12, "s10")
    KO = 176
    ACC, KD, HG, SBv, XF, XR, KVR = 16, 48, 80, 112, 144, 176, 192
    FA, FB = 0, 64
    def bread(t, q): return f"ds_read_b128 {ar(FB+32*(t&1)+4*q,4)}, v{RB} offset:{512*q + 64*(7-t)}"
    def areads(t, q):
        o = 16 * (7 - t) + (0 if q & 1 else 128)
        return [f"ds_read2_b32 {ar(FA+32*(t&1)+4*q+2*h,2)}, v{RA+q//2} offset0:{o+2*h} offset1:{o+2*h+1}" for h in range(2)]
    def reads(t):
        r = []
        for q in range(8): r += [bread(t, q)] + areads(t, q)
        return r
    a(f"""v_lshlrev_b32 v218, 16, v218
    v_sub_u32 v11, s9, v15
    v_add_u32 v11, {OE + 4088 - 512*7}, v11
    v_min_u32 v208, 4, v0
    v_mul_u32_u24 v208, 2560, v208
    v_lshrrev_b32 v209, 3, v0
    v_xor_b32 v209, v209, v0
    v_lshlrev_b32 v209, 4, v209
    v_and_b32 v12, 7, v4
    v_xor_b32 v12, v12, v5
    v_lshlrev_b32 v12, 4, v12
    v_lshl_add_u32 v12, v4, 7, v12
    v_xor_b32 v243, 64, v12
    v_lshlrev_b32 v10, 5, v4
    v_lshrrev_b32 v13, 1, v5
    v_lshl_add_u32 v10, v13, 4, v10
    v_and_b32 v13, 1, v5
    v_lshl_add_u32 v10, v13, 9, v10
    s_and_b32 s14, s2, 0xf0
    v_add_u32 v210, s14, v0
    v_add_u32 v211, {210-16}, v0
    v_cmp_gt_u32 s[18:19], 16, v0
    v_mov_b32 v212, s70
    v_mov_b32 v213, s71
    v_cndmask_b32 v210, v211, v210, s[18:19]
    v_mul_u32_u24 v211, 10, v0
    v_cmp_gt_u32 s[18:19], 48, v0
    s_sub_u32 s14, s44, {480-160}
    v_add_u32 v211, s14, v211
    v_cndmask_b32 v210, v211, v210, s[18:19]
    v_lshlrev_b32 v210, 7, v210
    v_add_u32 v210, {WS['FL'] + 256*128}, v210
    s_lshl_b32 s14, s3, 4
    s_lshl_b64 s[28:29], 0xffff, s14
    s_and_b32 s29, s29, 0x1fffff
    """)
    flag2_setup(a)
    w_setup(a)
    a.stamp(5)
    a("s_and_b32 s14, s2, 0xf0")
    poll(a, 0, "s14", 16, 232)
    a.stamp(6)
    for i in range(4): a(f"global_load_dwordx4 {vr(KO+6*i,4)}, v2, s[16:17] offset:{1024*i}{SC}")
    ny = 0
    if AORD == 0: publish(a, 1, 232, vm=4)
    else:
        a("s_barrier"); xtrans(); ny = 4
    w_early(a, 0, WEL[0]); ny += 2 * WEL[0]
    for q in range(8): a(bread(0, q))
    for i in range(4):
        a(f"s_waitcnt vmcnt({max(2-i,0)+ny})")
        a(f"ds_write_b128 v3, {vr(KO+6*i,4)} offset:{OE+1024*i}")
        if i < 3: a(f"v_readlane_b32 s14, v{KO+6*i+6}, 0")
        a(f"v_mov_b32_dpp v{KO+6*i+4}, v{KO+6*i} wave_shl:1 row_mask:0xf bank_mask:0xf bound_ctrl:0")
        if i < 3: a(f"s_nop 0\nv_writelane_b32 v{KO+6*i+4}, s14, 63")
        for j in range(4): a(f"v_alignbit_b32 v{200+4*(i&1)+j}, v{KO+6*i+j+1}, v{KO+6*i+j}, 16")
        a(f"ds_write_b128 v3, {vr(200+4*(i&1),4)} offset:{OO+1024*i}")
        if i == 1: a("s_waitcnt lgkmcnt(2)")
    a("s_waitcnt lgkmcnt(0)")
    for q in range(8):
        for r in areads(0, q): a(r)
    a.stamp(7)
    P, Q, C1 = 226, 228, 230
    unk = []
    for n in range(8):
        unk += [f"v_and_b32 v{KD+4*n}, s69, v{KVR+2*n+1}", f"v_lshlrev_b32 v{KD+4*n+1}, 16, v{KVR+2*n+1}",
                f"v_and_b32 v{KD+4*n+2}, s69, v{KVR+2*n}", f"v_lshlrev_b32 v{KD+4*n+3}, 16, v{KVR+2*n}"]
    mulk = [f"v_mul_f32 v{KD+i}, v218, v{KD+i}" for i in range(32)]
    unx = []
    for n in range(4): unx += [f"v_permlane16_swap_b32 v{XR+4*n}, v{XR+4*n+2}", f"v_permlane16_swap_b32 v{XR+4*n+1}, v{XR+4*n+3}"]
    for n in range(16): unx += [f"v_lshlrev_b32 v{XF+2*n}, 16, v{XR+n}", f"v_and_b32 v{XF+2*n+1}, s69, v{XR+n}"]
    flagld = f"s_mov_b64 exec, s[28:29]\nglobal_load_dwordx2 v[212:213], v210, s[12:13]{SC}\ns_mov_b64 exec, -1"
    eld = [(f"s_lshl_b32 s17, s8, 2\ns_add_u32 s17, s17, {WS['MOD']}\nv_add_u32 v212, s17, v208", f"s_mov_b64 exec, 0x1f\nglobal_load_dword v219, v212, s[12:13]{SC}\ns_mov_b64 exec, -1")]
    pre = f"s_lshl_b32 s16, s3, 12\ns_add_u32 s17, s16, {WS['ST']}\ns_add_u32 s14, s12, s17\ns_addc_u32 s15, s13, 0\ns_mov_b32 m0, s16"
    eld += [(pre if i == 0 else "", f"global_load_lds_dwordx4 v209, s[14:15] offset:{1024*i}{SC}") for i in range(4)]
    pre = f"s_lshl_b32 s17, s8, 12\ns_add_u32 s17, s17, {WS['XTT']}\ns_add_u32 s14, s12, s17\ns_addc_u32 s15, s13, 0"
    eld += [(pre if n == 0 else "", f"global_load_dwordx4 {vr(XR+4*n,4)}, v10, s[14:15] offset:{1024*n}{SC}") for n in range(4)]
    def wpairs(k):
        l = wd_(k); return [(l[0][1], l[1][1]), (l[2][1], l[3][1])]
    strd = []
    for n in range(8): strd += [f"ds_read_b128 {vr(HG+4*n,4)}, v12 offset:{2048*n}", f"ds_read_b128 {vr(SBv+4*n,4)}, v243 offset:{2048*n}"]
    scal = ["v_add_f32 v214, 1.0, v219", "v_readlane_b32 s20, v219, 0", "v_cvt_pk_bf16_f32 v214, v214, v214", "v_readlane_b32 s22, v219, 2",
            "v_lshlrev_b32 v214, 16, v214\ns_nop 0", "v_readlane_b32 s21, v214, 1", "v_readlane_b32 s23, v214, 4", f"v_mov_b32 v{Q}, s22\ns_nop 0",
            f"v_mul_f32 v{P}, s21, v{Q}", f"v_mul_f32 v{Q}, s20, v{Q}", f"v_mov_b32 v{C1}, s23"]
    hg1 = [f"v_fma_f32 v{HG+i}, v{XF+i}, v{HG+i}, v{SBv+i}" for i in range(32)]
    hg2 = [f"v_fma_f32 v{HG+i}, v{HG+i}, v{P}, v{Q}" for i in range(32)]
    oadr = [f"s_lshl_b32 s17, s8, 12\ns_add_u32 s17, s17, {WS['X1T']}\ns_add_u32 s14, s12, s17\ns_addc_u32 s15, s13, 0\ns_add_u32 s16, s14, {WS['X1S']-WS['X1T']}\ns_addc_u32 s17, s15, 0"]
    post = []
    assert HK == 4
    for t in range(8):
        a("s_waitcnt lgkmcnt(0)")
        if "cstamp" in EXP and 2 <= t <= 7: a.stamp(t - 1)
        if AORD and t == PUBT: publish(a, 1, 232, vm=2*WEL[t])
        rd = reads(t + 1) if t < 7 else []
        va = []; vm_ = []
        if t == 0: rd = [f"ds_read_b64 {vr(KVR+2*n,2)}, v11 offset:{512*(7-n)}" for n in range(8)] + rd
        if t == 1: va = unk[:24]
        if t == 2: va = unk[24:] + mulk[:16]
        if t == 3: va = mulk[16:]
        if t < 3:
            for k in range(WEL[t], WEL[t + 1]): vm_ += wpairs(k)
        if t == HKF: vm_ = [("", "")] * HKP + [("", flagld)]
        if t == HK:
            Lok, Lsl = a.label("hk_ok"), a.label("hk_slow")
            a(f"""s_mov_b32 s74, 0x100000
            {Lsl}:
            s_waitcnt vmcnt(0)
            v_cmp_ne_u64 vcc, s[70:71], v[212:213]
            s_cbranch_vccz {Lok}
            {flagld}
            s_sub_u32 s74, s74, 1
            s_cbranch_scc0 {Lsl}
            {Lok}:
            s_barrier""")
            vm_ = [eld[0]] + eld[5:] + eld[1:5] + [("", "")] * ELP
        if t == 6:
            a("s_waitcnt vmcnt(4)")
            va = scal + unx[:36]
        if t == 7:
            a("s_waitcnt vmcnt(0)\ns_barrier")
            rd = strd
            va = unx[36:] + oadr + [""] * 10
            for n in range(H2 // 4): va += [f"s_waitcnt lgkmcnt({max(14 - 2*n - 4, 0)})\n" + hg1[4*n]] + hg1[4*n+1:4*n+4]
            post = [f"v_pk_fma_f32 {vr(HG+2*i,2)}, {vr(XF+2*i,2)}, {vr(HG+2*i,2)}, {vr(SBv+2*i,2)}" for i in range(H2 // 2, 16)]
            post += [f"v_pk_fma_f32 {vr(HG+2*i,2)}, {vr(HG+2*i,2)}, {vr(P,2)}, {vr(Q,2)} op_sel_hi:[1,0,0]" for i in range(16)]
            vm_ = [("", FLAG2)]
        mf = []
        for q in range(8):
            for n in range(q, 8):
                c = "0" if (t == 0 and q == 0) else vr(ACC + 4 * n, 4)
                mf.append(f"v_mfma_f32_16x16x32_bf16 {vr(ACC+4*n,4)}, {ar(FA+32*(t&1)+4*q,4)}, {ar(FB+32*(t&1)+4*(n-q),4)}, {c}")
        interleave(a, mf, rd, va, vm_)
    a.stamp(8)
    a("s_waitcnt lgkmcnt(0)")
    for x in post: a(x)
    a("v_add_u32 v11, s9, v15")
    a("s_nop 3")
    for n in range(0, 8, 2):
        for m in (n, n + 1):
            for h in range(2): a(f"v_pk_add_f32 {vr(ACC+4*m+2*h,2)}, {vr(ACC+4*m+2*h,2)}, {vr(KD+4*m+2*h,2)}")
        for m in (n, n + 1):
            for h in range(2): a(f"v_pk_fma_f32 {vr(ACC+4*m+2*h,2)}, {vr(HG+4*m+2*h,2)}, {vr(ACC+4*m+2*h,2)}, {vr(XF+4*m+2*h,2)}")
        for m in (n, n + 1):
            for h in range(2): a(f"v_pk_mul_f32 {vr(KD+4*m+2*h,2)}, {vr(ACC+4*m+2*h,2)}, {vr(C1,2)} op_sel_hi:[1,0]")
        o = SBv + 2 * n
        for m in (n, n + 1):
            for h in range(2): a(f"v_cvt_pk_bf16_f32 v{o+2*(m-n)+h}, v{KD+4*m+2*h}, v{KD+4*m+2*h+1}")
        if XST:
            for m in (n, n + 1): a(f"ds_write_b64 v11, {vr(o+2*(m-n),2)} offset:{512*m}")
            if n: a(f"s_waitcnt lgkmcnt(2)\nglobal_store_dwordx4 v2, {vr(XF+2*(n-2),4)}, s[16:17] offset:{512*(n-2)}{SC}")
            a(f"ds_read_b128 {vr(XF+2*n,4)}, v3 offset:{512*n}")
        else:
            a(f"""s_nop 1
            v_permlane16_swap_b32 v{o}, v{o+2}
            v_permlane16_swap_b32 v{o+1}, v{o+3}
            global_store_dwordx4 v10, {vr(o,4)}, s[16:17] offset:{512*n}{SC}""")
    for i in range(16): a(f"v_cvt_pk_bf16_f32 v{SBv+16+i}, v{ACC+2*i}, v{ACC+2*i+1}")
    if XST:
        a(f"s_waitcnt lgkmcnt(0)\nglobal_store_dwordx4 v2, {vr(XF+12,4)}, s[16:17] offset:{512*6}{SC}")
        for m in range(8): a(f"ds_write_b64 v11, {vr(SBv+16+2*m,2)} offset:{4096+512*m}")
        for n in range(4): a(f"ds_read_b128 {vr(XF+16+4*n,4)}, v3 offset:{4096+1024*n}")
        for n in range(4): a(f"s_waitcnt lgkmcnt({3-n})\nglobal_store_dwordx4 v2, {vr(XF+16+4*n,4)}, s[14:15] offset:{1024*n}{SC}")
    else:
        for n in range(0, 8, 2):
            o = SBv + 16 + 2 * n
            a(f"""v_permlane16_swap_b32 v{o}, v{o+2}
            v_permlane16_swap_b32 v{o+1}, v{o+3}
            global_store_dwordx4 v10, {vr(o,4)}, s[14:15] offset:{512*n}{SC}""")
    a.stamp(9)
    a(f"s_branch {Lg1}")

def code_prefetch(a):
    a(f"""s_getpc_b64 s[14:15]
    s_sub_u32 s14, s14, . - {KNAME}
    s_subb_u32 s15, s15, 0
    s_lshr_b32 s17, s2, 3
    s_lshl_b32 s17, s17, 2
    s_add_u32 s17, s17, s3
    s_min_u32 s17, s17, (code_end - {KNAME}) / 1024 - 1
    s_lshl_b32 s17, s17, 10
    v_lshl_add_u32 v250, v0, 4, s17
    global_load_dwordx4 v[252:255], v250, s[14:15]""")

def phase_aux(a, Lg1):
    Lst, L2, Lnd, Lnw, Lnd2, Lnw3 = (a.label(x) for x in ("aux_st", "aux2", "aux_nod", "aux_now", "aux_nod2", "aux_now3"))
    RED, MRD = STL, CSL
    LwE, Lwd, Lmod, Lgbd, Lnp1, Ltg = (a.label(x) for x in ("aux_we", "aux_wd", "aux_mod", "aux_gbd", "aux_np1", "aux_tg"))
    a(f"""s_load_dwordx2 s[4:5], s[0:1], {KA['x']}
    s_load_dwordx4 s[36:39], s[0:1], {KA['wg']}
    s_load_dwordx2 s[6:7], s[0:1], {KA['wd']}
    s_load_dwordx4 s[40:43], s[0:1], {KA['c']}
    s_sub_u32 s8, s2, 160
    s_mov_b32 s44, s8
    v_lshlrev_b32 v9, 4, v0
    s_waitcnt lgkmcnt(0)
    s_cmp_ge_u32 s8, 82
    s_cbranch_scc1 {Lwd}
    s_cmp_ge_u32 s8, 50
    s_cbranch_scc1 {Lst}
    {Lmod}:""")
    mod_slab(a, 44, 40, 42, MRD)
    a(f"""s_cmp_ge_u32 s8, 82
    s_cbranch_scc1 {Lgbd}
    s_branch {L2}
    {Lst}:
    s_sub_u32 s45, s8, 50
    s_lshl_b32 s45, s45, 6""")
    stats_issue(a, 100, 4, 45)
    tag_issue(a, 212)
    stats_compute(a, 100, 45)
    a(f"{L2}:")
    a.stamp(3)
    a("s_waitcnt vmcnt(1)")
    tag_check(a, 212)
    a(f"""s_cmp_ge_u32 s8, 56
    s_cbranch_scc1 {Lwd}""")
    TA, RAW, MV, PK, RES = 10, 128, 16, 96, 208
    a(f"""s_and_b32 s10, s8, 3
    s_mul_i32 s10, s10, 7
    s_lshr_b32 s11, s8, 3
    s_add_u32 s10, s10, s11
    s_min_u32 s10, s10, 26
    s_bfe_u32 s9, s8, 0x10002
    s_cmp_eq_u32 s9, 1
    s_cselect_b32 s36, s38, s36
    s_cselect_b32 s37, s39, s37
    v_lshrrev_b32 v2, 3, v0
    v_bfe_u32 v3, v0, 4, 2
    v_lshlrev_b32 v3, 1, v3
    v_and_b32 v4, 7, v0
    v_xor_b32 v3, v3, v4
    v_mul_u32_u24 v2, 3456, v2
    v_lshl_add_u32 v2, v3, 4, v2
    s_lshl_b32 s11, s10, 7
    s_mul_i32 s16, s3, {32*3456}
    s_add_u32 s11, s11, s16
    v_add_u32 v2, s11, v2
    s_mul_i32 s16, s3, {5*4096}
    s_cmp_eq_u32 s3, 3
    s_cselect_b32 s16, {W3L}, s16""")
    srd(a, 20, 36, 640 * 3456)
    for io in range(5):
        for u in range(4):
            if io * 4 + u == 6:
                publish(a, 1, 16, vm=6)
                a.stamp(4)
            a(f"s_add_u32 m0, s16, {4096*io + 1024*u}\ns_mov_b32 s17, {(128*io + 8*u)*3456}\nbuffer_load_dwordx4 v2, s[20:23], s17 offen{WPOL} lds")
    a(f"""v_lshrrev_b32 v2, 2, v0
    v_bfe_u32 v3, v0, 3, 2
    v_and_b32 v4, 3, v0
    v_lshlrev_b32 v2, 7, v2
    v_lshl_add_u32 v2, v4, 3, v2
    v_add_u32 v2, s16, v2""")
    for T_ in range(4): a(f"v_xor_b32 v4, {T_}, v3\nv_lshl_add_u32 v{TA+T_}, v4, 5, v2")
    a(f"""v_lshrrev_b32 v14, 4, v0
    v_lshlrev_b32 v14, 4, v14
    s_lshl_b32 s16, s3, 7
    s_add_u32 s16, s16, 61440
    v_add_u32 v14, s16, v14
    s_mul_i32 s16, s3, 1280
    s_add_u32 s17, s16, {WS['MOD'] + 3*2560}
    v_add_u32 v15, s17, v9
    s_add_u32 s18, s16, 61440""")
    flag2_setup(a, zero=True)
    w_setup(a)
    poll(a, 1, 190, 20, 16)
    a.stamp(6)
    a(f"""s_mov_b32 m0, s18
    s_nop 0
    global_load_lds_dwordx4 v15, s[12:13]{SC}
    s_mov_b64 exec, 0xffff
    global_load_lds_dwordx4 v15, s[12:13] offset:1024{SC}
    s_mov_b64 exec, -1""")
    w_early(a, 0, 4)
    for io in range(5):
        for T_ in range(4):
            for hf in range(2): a(f"ds_read_b64_tr_b16 {vr(RAW+16*io+4*T_+2*hf,2)}, v{TA+T_} offset:{4096*io+2048*hf}")
        a("s_waitcnt lgkmcnt(4)")
    a("s_waitcnt vmcnt(8) lgkmcnt(0)\ns_barrier")
    for io in range(5):
        for hf in range(2):
            a(f"ds_read_b128 {vr(MV+16*io+4*hf,4)}, v14 offset:{512*io+64*hf}")
            a(f"ds_read_b128 {vr(MV+16*io+8+4*hf,4)}, v14 offset:{2560+512*io+64*hf}")
        if io == 2: a("s_waitcnt lgkmcnt(4)")
    w_early(a, 4, NWE)
    a("s_waitcnt lgkmcnt(0)")
    for io in range(5):
        b = MV + 16 * io; p = PK + 8 * (io & 1)
        for i in range(4): a(f"v_cvt_pk_bf16_f32 v{p+i}, v{b+2*i}, v{b+2*i+1}")
        for i in range(8): a(f"v_add_f32 v{b+8+i}, 1.0, v{b+8+i}")
        for i in range(4): a(f"v_cvt_pk_bf16_f32 v{p+4+i}, v{b+8+2*i}, v{b+8+2*i+1}")
        for T_ in range(4): a(f"v_mfma_f32_16x16x32_bf16 {vr(112+4*T_,4)}, {vr(RAW+16*io+4*T_,4)}, {vr(p,4)}, {vr(112+4*T_,4) if io else '0'}")
        for T_ in range(4): a(f"v_mfma_f32_16x16x32_bf16 {vr(RES+4*T_,4)}, {vr(RAW+16*io+4*T_,4)}, {vr(p+4,4)}, {vr(RES+4*T_,4) if io else '0'}")
    a(f"""s_lshl_b32 s16, s3, 9
    s_add_u32 s16, s16, {RED}
    v_add_u32 v2, s16, v0
    s_mov_b32 exec_lo, 0x10001
    s_mov_b32 exec_hi, 0x10001
    s_nop 2""")
    for T_ in range(4): a(f"ds_write_b128 v2, {vr(112+4*T_,4)} offset:{256+64*T_}")
    for T_ in range(4): a(f"ds_write_b128 v2, {vr(RES+4*T_,4)} offset:{64*T_}")
    a(f"""s_mov_b64 exec, -1
    s_waitcnt lgkmcnt(0)
    s_barrier
    s_cmp_ge_u32 s3, 2
    s_cbranch_scc1 {LwE}
    s_lshl_b32 s16, s3, 8
    s_add_u32 s16, s16, {RED}
    v_lshlrev_b32 v3, 2, v0
    v_add_u32 v2, s16, v3
    ds_read2st64_b32 v[4:5], v2 offset0:0 offset1:2
    ds_read2st64_b32 v[16:17], v2 offset0:4 offset1:6
    s_lshl_b32 s16, s9, 1
    s_add_u32 s16, s16, s3
    s_mul_i32 s16, s16, {1728*4}
    s_lshl_b32 s17, s10, 8
    s_add_u32 s16, s16, s17
    s_add_u32 s16, s16, {WS['CSB']}""")
    add64(a, 14, 12, "s16")
    a(f"""s_waitcnt lgkmcnt(0)
    v_add_f32 v4, v4, v5
    v_add_f32 v16, v16, v17
    v_add_f32 v4, v4, v16
    global_store_dword v3, v4, s[14:15]{SC}
    s_waitcnt vmcnt(0)
    {LwE}:""")
    a.stamp(9)
    a(f"s_branch {Lg1}")
    a(f"""{Lwd}:
    s_lshl_b32 s46, s8, 2
    s_add_u32 s46, s46, s3
    s_sub_u32 s17, s46, {4*82}
    s_sub_u32 s46, s46, {4*56-165}
    s_cmp_eq_u32 s17, 55
    s_cselect_b32 s17, 269, s17
    s_cmp_ge_u32 s8, 82
    s_cselect_b32 s46, s17, s46
    v_lshrrev_b32 v2, 4, v0
    v_and_b32 v3, 15, v0
    v_lshlrev_b32 v4, 1, v2
    v_xor_b32 v4, v4, v3
    v_mul_u32_u24 v2, 1280, v2
    v_lshl_add_u32 v5, v4, 4, v2
    v_xor_b32 v4, 8, v4
    v_lshl_add_u32 v6, v4, 4, v2
    v_add_u32 v6, {4*1280}, v6
    s_mul_i32 s16, s3, {3*8192}
    s_mul_i32 s17, s46, 52429
    s_lshr_b32 s17, s17, 18
    s_mul_i32 s11, s17, 5
    s_sub_u32 s11, s46, s11
    s_mul_i32 s17, s17, {32*1280}
    s_lshl_b32 s11, s11, 8
    s_add_u32 s17, s17, s11
    v_add_u32 v5, s17, v5
    v_add_u32 v6, s17, v6""")
    srd(a, 20, 6, 1728 * 1280)
    add64(a, 14, 12, WS['WD']); srd(a, 24, 14, 54 * 40 * 1024)
    for un in range(3):
        for u in range(8):
            if un * 8 + u == 6:
                a(f"s_cmp_ge_u32 s8, 82\ns_cbranch_scc1 {Lnp1}")
                publish(a, 1, 16, vm=6)
                a.stamp(4)
                a(f"{Lnp1}:")
            a(f"s_add_u32 m0, s16, {8192*un + 1024*u}\ns_mov_b32 s17, {(11*32*un + 8*(u>>1))*1280}\nbuffer_load_dwordx4 v{5+(u&1)}, s[20:23], s17 offen{NT} lds")
        if un == 0: a("s_cmp_ge_u32 s8, 82\ns_cselect_b32 s22, s22, 0")
    tag_issue(a, 212)
    xtile_tr_addrs(a, 48, 16)
    a("s_lshl_b32 s17, s46, 13\nv_add_u32 v7, s17, v9")
    for un in range(3):
        a("s_waitcnt vmcnt(17)")
        for q in range(3):
            if q < 2:
                for dt in range(4):
                    for hf in range(2): a(f"ds_read_b64_tr_b16 {vr(100+32*un+16*q+4*dt+2*hf,2)}, v{48+4*q+dt} offset:{8192*un+4096*hf}")
            if q:
                a(f"s_waitcnt lgkmcnt({8 if q < 2 else 0})\ns_mov_b32 s17, {55*8192*un + 4096*(q-1)}")
                for dt in range(4): a(f"buffer_store_dwordx4 {vr(100+32*un+16*(q-1)+4*dt,4)}, v7, s[24:27], s17 offen offset:{1024*dt}{SC}")
        if un == 0: a(f"s_cmp_lt_u32 s8, 82\ns_cbranch_scc1 {Ltg}")
    a(f"{Ltg}:\ns_waitcnt vmcnt(8)")
    tag_check(a, 212)
    publish(a, 0, 16)
    a.stamp(6)
    a(f"""s_cmp_lt_u32 s8, 82
    s_cbranch_scc1 {Lnw3}
    s_sub_u32 s44, s8, 32
    s_cmp_lt_u32 s8, 92
    s_cbranch_scc1 {Lmod}
    s_cmp_lg_u32 s8, 95
    s_cbranch_scc1 {Lnw3}
    s_cmp_lg_u32 s3, 0
    s_cbranch_scc1 {Lnw3}""")
    poll(a, 0, 216, 40, 20)
    a(f"v_mov_b32 v16, s70\nv_mov_b32 v17, s71\nv_mov_b32 v18, s70\nv_mov_b32 v19, s71")
    add64(a, 14, 12, WS['FL'] + 5 * 256 * 128 + 4096)
    for i in range(8): a(f"global_store_dwordx4 v9, v[16:19], s[14:15] offset:{1024*i-4096}{SC}")
    a(f"s_branch {Lnw3}\n{Lgbd}:")
    publish(a, 1, 16)
    a(f"{Lnw3}:")
    flag2_setup(a, zero=True)
    a.stamp(9)
    a("s_branch g1_idle")

def w_setup(a):
    a(f"""s_load_dwordx4 s[84:87], s[0:1], {KA['wg']}
    s_lshr_b32 s6, s2, 3
    s_and_b32 s5, s2, 3
    s_mul_i32 s5, s5, 27
    s_add_u32 s5, s5, s6
    s_lshr_b32 s6, s5, 2
    s_and_b32 s5, s5, 3
    s_and_b32 s89, s2, 4
    s_add_u32 s5, s5, s89
    v_lshrrev_b32 v244, 3, v0
    v_bfe_u32 v245, v0, 4, 2
    v_lshlrev_b32 v245, 1, v245
    v_and_b32 v246, 7, v0
    v_xor_b32 v245, v245, v246
    v_mul_u32_u24 v244, 3456, v244
    v_lshl_add_u32 v7, v245, 4, v244
    s_mul_i32 s88, s3, {8*3456}
    s_lshl_b32 s89, s6, 7
    s_add_u32 s88, s88, s89
    v_add_u32 v7, s88, v7
    s_lshl_b32 s88, s3, 10
    s_add_u32 s88, s88, {WRING}
    s_waitcnt lgkmcnt(0)""")
    srd(a, 80, 84, 640 * 3456); srd(a, 84, 86, 640 * 3456)
def wd_(k):
    out = []
    for m in range(2):
        pre = f"s_add_u32 m0, s88, {(k&7)*8192 + m*4096}" + (f"\ns_mov_b32 s89, {k*32*3456}" if not out else "")
        out += [(None, pre), (("W", k), f"buffer_load_dwordx4 v7, s[{80+4*m}:{83+4*m}], s89 offen lds")]
    return out
def w_early(a, lo, hi):
    for k in range(lo, hi):
        for t, x in wd_(k): a(x + ("" if t else "\ns_nop 0"))

def g2_setup(a):
    a(f"""s_lshr_b32 s4, s2, 3
    s_bfe_u32 s44, s2, 0x20001
    s_lshl_b32 s44, s44, 3
    s_lshr_b32 s45, s4, 2
    s_add_u32 s44, s44, s45
    s_and_b32 s45, s2, 1
    s_lshl_b32 s45, s45, 2
    s_and_b32 s9, s4, 3
    s_add_u32 s45, s45, s9
    s_mul_i32 s9, s45, 5120
    s_add_u32 s10, s9, {WS['WD']}
    v_lshlrev_b32 v9, 4, v0
    v_add_u32 v8, 4096, v9""")
    add64(a, 14, 12, "s10"); srd(a, 40, 14, 0)
    a(f"s_sub_u32 s42, {54*40960}, s9\ns_mul_i32 s46, s3, 40960")

SPREAD = int(os.environ.get("SPREAD", "1")); RDEND = int(os.environ.get("RDEND", "28"))
G2POS = int(os.environ.get("G2POS", "0"))
LEVEL = int(os.environ.get("LEVEL", "7"))
XLATE = int(os.environ.get("XLATE", "0"))
OUTT = int(os.environ.get("OUTT", "1"))
X1LATE = int(os.environ.get("X1LATE", "4"))
WPOL = os.environ.get("WPOL", "")
NWA = int(os.environ.get("NWA", "8"))
NWD0 = int(os.environ.get("NWD0", "26"))
NWD1 = int(os.environ.get("NWD1", "62"))
NW0 = int(os.environ.get("NW0", "8"))
WD_FIRST = int(os.environ.get("WD_FIRST", "12")); WD_LAST = int(os.environ.get("WD_LAST", "20"))
NWD2 = int(os.environ.get("NWD2", "6"))
HK3F = int(os.environ.get("HK3F", "14")); HK3 = int(os.environ.get("HK3", "16"))
def wd_reg(i):
    return ar(4 * i, 4) if i < 64 else vr(232 + 4 * (i - 64), 4)
def wd_load(i):
    st, d = divmod(i, 5)
    return f"s_add_u32 s47, s46, {st*4*40960}\nbuffer_load_dwordx4 {wd_reg(i)}, v{9 if d < 4 else 8}, s[40:43], s47 offen offset:{1024*(d&3)}{SC}"

class VM:
    def __init__(self): self.q = []
    def add(self, tag): self.q.append(tag)
    def wait(self, tags):
        idx = [i for i, t in enumerate(self.q) if t in tags]
        if not idx: return None
        n = len(self.q) - 1 - max(idx)
        self.q = self.q[max(idx) + 1:]
        assert n <= 63
        return f"s_waitcnt vmcnt({n})"

def phase_idle(a, Lg2):
    Lpub = a.label("idle_pub")
    g2_setup(a)
    IW = int(os.environ.get("IW", "62"))
    flag2_check(a)
    def wl(lo, hi):
        for i in range(lo, hi):
            a(wd_load(i))
            if i - lo == 50: a("s_waitcnt vmcnt(30)")
    wl(0, min(IW, NWD1))
    Lrest = a.label("idle_rest")
    PF0, PF1, PF2 = (int(x) for x in os.environ.get("PF", "0,0,0").split(","))
    def pf(lo, hi):
        a(f"""s_lshr_b32 s9, s2, 3
        s_sub_u32 s9, s9, 27
        s_lshl_b32 s9, s9, 2
        s_add_u32 s9, s9, s3
        s_lshl_b32 s9, s9, 12
        s_and_b32 s10, s2, 4
        s_lshl_b32 s10, s10, 9
        s_add_u32 s9, s9, s10
        s_add_u32 s9, s9, {WS['X1S'] + lo*20*4096}
        s_lshl_b32 m0, s3, 11""")
        add64(a, 14, 12, "s9")
        for i in range(lo, hi):
            a(f"global_load_lds_dwordx4 v9, s[14:15]{SC}\nglobal_load_lds_dwordx4 v9, s[14:15] offset:1024{SC}")
            add64(a, 14, 14, 20 * 4096)
    if PF1 > PF0:
        a("s_mul_i32 s9, s3, 40")
        poll(a, 2, "s9", 40, 52)
        a("s_barrier")
        pf(PF0, PF1)
    a(f"""s_sub_u32 s8, s2, 216
    s_mul_i32 s9, s3, 40
    s_add_u32 s9, s9, 1024
    v_add_u32 v55, s9, v0
    v_cmp_gt_u32 vcc, 40, v0
    v_add_u32 v56, {256+242-40}, v0
    s_nop 0
    v_cndmask_b32 v55, v56, v55, vcc""")
    poll(a, 0, None, 50, 52, idxreg=55)
    R, ACC, U = 100, 16, 32
    a(f"""s_barrier
    s_cmp_ge_u32 s8, 32
    s_cbranch_scc1 {Lrest}
    v_lshrrev_b32 v2, 3, v0
    v_lshlrev_b32 v2, 12, v2
    v_and_b32 v3, 7, v0
    v_lshl_add_u32 v2, v3, 4, v2
    s_lshl_b32 s9, s3, 15
    s_lshl_b32 s10, s8, 7
    s_add_u32 s9, s9, s10
    s_add_u32 s9, s9, {WS['X1T']}""")
    add64(a, 14, 12, "s9")
    for i in range(20):
        a(f"global_load_dwordx4 {vr(R+4*i,4)}, v2, s[14:15]{SC}")
        if i < 19: add64(a, 14, 14, 32 * 4096)
    for i in range(20):
        a(f"s_waitcnt vmcnt({19-i})")
        u = (U + 8 * (i & 1)) if i else ACC
        for j in range(4): a(f"v_lshlrev_b32 v{u+2*j}, 16, v{R+4*i+j}\nv_and_b32 v{u+2*j+1}, s69, v{R+4*i+j}")
        for j in range(4):
            if i == 0: a(f"v_pk_mul_f32 {vr(ACC+8+2*j,2)}, {vr(u+2*j,2)}, {vr(u+2*j,2)}")
            else:
                a(f"v_pk_add_f32 {vr(ACC+2*j,2)}, {vr(ACC+2*j,2)}, {vr(u+2*j,2)}")
                a(f"v_pk_fma_f32 {vr(ACC+8+2*j,2)}, {vr(u+2*j,2)}, {vr(u+2*j,2)}, {vr(ACC+8+2*j,2)}")
    a("s_nop 1")
    for b in (ACC, ACC + 8):
        for j in range(4): a(f"v_permlane32_swap_b32 v{b+j}, v{b+4+j}")
    for b in (ACC, ACC + 8):
        for j in range(4): a(f"v_add_f32 v{b+j}, v{b+j}, v{b+4+j}")
    a("s_nop 1")
    for b in (ACC, ACC + 8):
        for j in range(2): a(f"v_permlane16_swap_b32 v{b+j}, v{b+2+j}")
    for b in (ACC, ACC + 8):
        for j in range(2): a(f"v_add_f32 v{b+j}, v{b+j}, v{b+2+j}")
    a("s_nop 1")
    for b in (ACC, ACC + 8):
        for j in range(2): a(f"v_add_f32_dpp v{b+j}, v{b+j}, v{b+j} row_ror:8 row_mask:0xf bank_mask:0xf")
    a(f"""s_lshl_b32 s14, s3, 9
    v_lshrrev_b32 v4, 4, v0
    v_lshlrev_b32 v3, 5, v3
    v_lshl_add_u32 v3, v4, 3, v3
    v_add_u32 v3, s14, v3
    ds_write_b64 v3, {vr(ACC,2)}
    ds_write_b64 v3, {vr(ACC+8,2)} offset:256
    s_waitcnt lgkmcnt(0)
    s_barrier
    s_cmp_lg_u32 s3, 0
    s_cbranch_scc1 {Lpub}
    v_lshlrev_b32 v2, 2, v0""")
    for w in range(4): a(f"ds_read2st64_b32 {vr(16+2*w,2)}, v2 offset0:{2*w} offset1:{2*w+1}")
    a(f"""s_lshl_b32 s14, s8, 9
    s_add_u32 s14, s14, {WS['ST2']}
    v_lshl_add_u32 v2, v0, 3, s14
    s_waitcnt lgkmcnt(0)
    v_pk_add_f32 v[16:17], v[16:17], v[18:19]
    v_pk_add_f32 v[20:21], v[20:21], v[22:23]
    v_pk_add_f32 v[16:17], v[16:17], v[20:21]
    v_mul_f32 v16, {INV640}, v16
    v_mul_f32 v17, {INV640}, v17
    v_fma_f32 v17, -v16, v16, v17
    v_max_f32 v17, 0, v17
    v_add_f32 v17, 0x3727c5ac, v17
    v_rsq_f32 v18, v17
    s_nop 0
    v_mul_f32 v19, -v16, v18
    global_store_dwordx2 v2, v[18:19], s[12:13]{SC}
    {Lpub}:""")
    publish(a, 4, 52)
    a(f"{Lrest}:")
    wl(min(IW, NWD1), NWD1)
    a(f"s_waitcnt vmcnt(0)\ns_branch {Lg2}")

def phase_g1(a):
    Lidle, Lg2 = "g1_idle", a.label("g2")
    g2_setup(a)
    a(f"""s_and_b32 s8, s3, 1
    s_lshl_b32 s7, s6, 1
    s_add_u32 s7, s7, s8
    s_lshr_b32 s4, s3, 1""")
    a(f"""v_lshrrev_b32 v2, 4, v0
    v_and_b32 v3, 15, v0
    v_lshlrev_b32 v4, 1, v2
    v_xor_b32 v4, v4, v3
    v_lshlrev_b32 v2, 12, v2
    s_lshl_b32 s9, s3, 15
    s_lshl_b32 s10, s5, 9
    s_add_u32 s9, s9, s10
    v_add_u32 v2, s9, v2
    v_lshl_add_u32 v5, v4, 4, v2
    v_xor_b32 v4, 8, v4
    v_lshl_add_u32 v6, v4, 4, v2
    v_add_u32 v6, {4*4096}, v6
    s_lshl_b32 s26, s3, 11
    s_lshl_b32 s9, s4, 13""")
    ACC, XF, WF, TA, TW = 128, 64, 32, 10, 18
    xtile_tr_addrs(a, TA, 9)
    a(f"""v_lshrrev_b32 v2, 2, v0
    v_bfe_u32 v3, v0, 3, 2
    v_and_b32 v4, 3, v0
    v_lshlrev_b32 v2, 7, v2
    v_lshl_add_u32 v2, v4, 3, v2
    v_add_u32 v2, {WRING}, v2
    s_lshl_b32 s9, s8, 1
    v_xor_b32 v3, s9, v3
    v_lshl_add_u32 v{TW}, v3, 5, v2
    v_xor_b32 v3, 1, v3
    v_lshl_add_u32 v{TW+1}, v3, 5, v2""")
    add64(a, 14, 12, WS['X1S']); srd(a, 16, 14, 640 * 4096)
    vm = VM()
    def emit(items, nop=False):
        for t, x in items:
            a(x)
            if t: vm.add(t)
            elif nop: a("s_nop 0")
    def xd(k):
        out = []
        for rh in range(2):
            for u in range(2):
                pre = f"s_add_u32 m0, s26, {(k&3)*16384 + rh*(8192-256) + u*1024}" + (f"\ns_mov_b32 s25, {k*0x20000}" if not out else "")
                out += [(None, pre), (("X", k), f"buffer_load_dwordx4 v{5+u}, s[16:19], s25 offen offset:{256*rh}{SC} lds")]
        return out
    def trreads(k):
        x = [(None, f"ds_read_b64_tr_b16 {vr(XF+32*(k&1)+4*m+2*hf,2)}, v{TA+m} offset:{16384*(k&3)+4096*hf}") for m in range(8) for hf in range(2)]
        w = [(None, f"ds_read_b64_tr_b16 {vr(WF+16*(k&1)+4*f+2*hf,2)}, v{TW+(f>>1)} offset:{8192*(k&7)+4096*(f&1)+2048*hf}") for f in range(4) for hf in range(2)]
        return w + x
    for j in range(NWE, NWA): emit(wd_(j), True)
    publish(a, 2, 52, vm=2*(NWA-NWE) + X1LATE)
    a.stamp(10)
    for j in range(NWA, NW0): emit(wd_(j), True)
    flag2_check(a)
    for i in range(NWD0): a(wd_load(i))
    a(f"""s_lshl_b32 s9, s5, 2
    s_lshl_b32 s10, s4, 1
    s_add_u32 s9, s9, s10
    v_add_u32 v20, s9, v0
    s_mul_i32 s10, s6, 37
    s_lshr_b32 s10, s10, 8
    s_mul_i32 s10, s10, 55
    s_lshl_b32 s11, s6, 3
    s_sub_u32 s10, s11, s10
    s_add_u32 s10, s10, {(512 + 160 - 8 - 1024 - 216) & 0xffffffff}
    v_lshl_add_u32 v21, v0, 2, s10
    v_cmp_gt_u32 vcc, 2, v0
    s_lshl_b32 s9, s9, 9
    s_add_u32 s9, s9, {WS['ST2']}
    v_cndmask_b32 v20, v21, v20, vcc
    v_lshlrev_b32 v20, 7, v20
    v_add_u32 v20, {WS['FL'] + (4*256+216)*128}, v20
    v_add_u32 v21, s9, v9
    v_bfe_u32 v22, v0, 3, 2
    v_mul_u32_u24 v22, {1728*4}, v22
    v_and_b32 v23, 7, v0
    v_lshl_add_u32 v22, v23, 4, v22
    s_lshl_b32 s9, s7, 7
    s_add_u32 s9, s9, {WS['CSB']}
    v_add_u32 v22, s9, v22
    v_mov_b32 v24, s70
    v_mov_b32 v25, s71
    s_lshl_b32 s30, s3, 10
    s_add_u32 s30, s30, {STL}
    s_lshl_b32 s31, s3, 9
    s_add_u32 s31, s31, {CSL}
    v_and_b32 v26, 15, v0
    v_lshl_add_u32 v26, v26, 3, s30
    v_lshrrev_b32 v27, 4, v0
    v_lshl_add_u32 v27, v27, 4, s31
    s_mul_i32 s9, s3, 40""")
    a.stamp(11)
    if "lazy" in EXP: a("s_mul_i32 s9, s3, 10"); poll(a, 2, "s9", 10, 52)
    elif "lazy2" in EXP: a("s_mul_i32 s9, s3, 20"); poll(a, 2, "s9", 20, 52)
    else: poll(a, 2, "s9", 40, 52)
    vm.q = []
    a("s_barrier")
    a.stamp(12)
    XE = int(os.environ.get("XE", "2"))
    for j in range(XE): emit(xd(j), True)
    emit(trreads(0)[:8])
    publish(a, 4, 28, nosync=True)
    a(vm.wait([("X", 0)]) + "\ns_barrier")
    emit(trreads(0)[8:])
    for j in range(XE, 4): emit(xd(j), True)
    a.stamp(13)
    wdi = NWD0; wnext = NW0
    fl = f"s_mov_b64 exec, 0xf\nglobal_load_dwordx2 v[24:25], v20, s[12:13]{SC}\ns_mov_b64 exec, -1"
    STV, CB = 32, 64
    for k in range(20):
        w = vm.wait([("W", k + 1), ("X", k + 1)] + (["S"] if k == 19 else []) + (["G"] if k == HK3 else []))
        a("s_waitcnt lgkmcnt(0)")
        if w: a(w)
        if k < 19: a("s_barrier")
        if "g1stamp" in EXP and k % 2 == 0 and k: a.stamp(k // 2)
        mem = []
        if k == HK3:
            Lok, Lsl = a.label("h3_ok"), a.label("h3_slow")
            a(f"""s_mov_b32 s74, 0x100000
            {Lsl}:
            v_cmp_ne_u64 vcc, s[70:71], v[24:25]
            s_cbranch_vccz {Lok}
            {fl}
            s_waitcnt vmcnt(0)
            s_sub_u32 s74, s74, 1
            s_cbranch_scc0 {Lsl}
            {Lok}:""")
            mem += [(None, "s_mov_b32 m0, s30"), ("S", f"global_load_lds_dwordx4 v21, s[12:13]{SC}"),
                    (None, "s_mov_b32 m0, s31"), ("S", f"s_mov_b32 exec_hi, 0\nglobal_load_lds_dwordx4 v22, s[12:13]{SC}\ns_mov_b64 exec, -1")]
        if k == HK3F: mem.append(("G", fl))
        if k < 19: rd = trreads(k + 1)
        else:
            rd = [(None, f"ds_read_b64 {vr(STV+2*m,2)}, v26 offset:{128*m}") for m in range(8)]
            rd += [(None, f"ds_read_b128 {vr(CB+16*h+4*mt_,4)}, v27 offset:{128*mt_+64*h}") for h in range(2) for mt_ in range(4)]
        if k + 4 < 20: mem += xd(k + 4)
        if wnext < 20: mem += wd_(wnext); wnext += 1
        cnt = lambda: sum(1 for e in mem if e[0] is not None)
        lim = LEVEL if k < 19 else 99
        while wdi < NWD1 and cnt() < lim and k >= WD_FIRST: mem.append((("D", wdi), wd_load(wdi))); wdi += 1
        slots = [[] for _ in range(32)]
        if SPREAD:
            groups = []; pend = []
            for e in mem:
                if e[0] is None: pend.append(e)
                else: groups.append((pend, e)); pend = []
            n = len(groups)
            pos = [1 + (i * 31) // n for i in range(n)] if n else []
            for (pre, e), p in zip(groups, pos):
                slots[p - 1] += pre; slots[p].insert(0, e)
            free = [i for i in range(RDEND) if i not in pos]
            order = free + [p for p in pos if p < RDEND] + free
            for e, p in zip(rd, sorted(order[:len(rd)])): slots[p].insert(1 if p in pos else 0, e)
        else:
            for i, e in enumerate(rd): slots[i].append(e)
            for i, e in enumerate(mem): slots[(32 - len(mem) + i) if len(mem) <= 20 else None].append(e)
        j = 0
        MO = os.environ.get("MORD", "m")
        if MO == "m": order_ = [(m, f) for m in range(8) for f in range(4)]
        elif MO == "ms": order_ = [(m, f if m % 2 == 0 else 3 - f) for m in range(8) for f in range(4)]
        elif MO == "f": order_ = [(m, f) for f in range(4) for m in range(8)]
        else: order_ = [(m if f % 2 == 0 else 7 - m, f) for f in range(4) for m in range(8)]
        for m, f in order_:
            if True:
                d = vr(ACC + 32 * f + 4 * m, 4)
                if "g1nomfma" in EXP: a("s_nop 0")
                else: a(f"v_mfma_f32_16x16x32_bf16 {d}, {vr(WF+16*(k&1)+4*f,4)}, {vr(XF+32*(k&1)+4*m,4)}, {d if k else '0'}")
                if "g1noload" in EXP: slots[j] = [e for e in slots[j] if "buffer_load" not in e[1]]
                if "g1notr" in EXP: slots[j] = [e for e in slots[j] if "_tr_" not in e[1]]
                emit(slots[j]); j += 1
    assert wdi == NWD1
    a.stamp(14)
    a(f"""s_lshl_b32 s9, s5, 1
    s_add_u32 s9, s9, s4
    s_mul_i32 s9, s9, {2*54}
    s_add_u32 s9, s9, s7
    s_lshl_b32 s9, s9, 12
    s_add_u32 s9, s9, {WS['HH']}""")
    add64(a, 14, 12, "s9"); add64(a, 28, 14, 54 * 4096)
    a("s_waitcnt lgkmcnt(0)")
    for m in range(8):
        st_ = vr(STV + 2 * m, 2); o = 96 + 4 * (m & 3)
        for h in range(2):
            G, U = ACC + 64 * h + 4 * m, ACC + 64 * h + 32 + 4 * m
            c = CB + 16 * h; t = 112 + 8 * h
            for p in range(2):
                a(f"v_pk_fma_f32 {vr(t+2*p,2)}, {vr(c+2*p,2)}, {st_}, {vr(c+4+2*p,2)} op_sel:[0,1,0] op_sel_hi:[1,1,1]")
                a(f"v_pk_fma_f32 {vr(t+4+2*p,2)}, {vr(c+8+2*p,2)}, {st_}, {vr(c+12+2*p,2)} op_sel:[0,1,0] op_sel_hi:[1,1,1]")
            for p in range(2):
                a(f"v_pk_fma_f32 {vr(G+2*p,2)}, {vr(G+2*p,2)}, {st_}, {vr(t+2*p,2)} op_sel_hi:[1,0,1]")
                a(f"v_pk_fma_f32 {vr(U+2*p,2)}, {vr(U+2*p,2)}, {st_}, {vr(t+4+2*p,2)} op_sel_hi:[1,0,1]")
            for r in range(4): a(f"v_max_f32 v{G+r}, 0, v{G+r}")
            for p in range(2): a(f"v_pk_mul_f32 {vr(G+2*p,2)}, {vr(G+2*p,2)}, {vr(U+2*p,2)}")
            for p in range(2): a(f"v_cvt_pk_bf16_f32 v{o+2*h+p}, v{G+2*p}, v{G+2*p+1}")
        sb_ = 14 if m < 4 else 28
        a(f"global_store_dwordx4 v9, {vr(o,4)}, s[{sb_}:{sb_+1}] offset:{1024*(m&3)}{SC}")
    a(f"s_branch {Lg2}\n{Lidle}:")
    phase_idle(a, Lg2)
    a(f"{Lg2}:")

def phase_g2(a):
    a.stamp(15)
    n1 = NWD1
    for i in range(n1, n1 + NWD2): a(wd_load(i))
    a(f"s_load_dwordx2 s[30:31], s[0:1], {KA['out']}")
    for sg in range(4):
        a(f"""s_add_u32 s7, s3, {sg}
        s_and_b32 s7, s7, 3
        s_lshl_b32 s8, s7, 10
        v_add_u32 v{10+sg}, s8, v9""")
        if sg: a(f"s_mul_i32 s8, s7, {15*1024}\ns_add_u32 s8, s8, {(sg-1)*5*1024}\nv_add_u32 v{13+sg}, s8, v9")
    a(f"s_mul_i32 s8, s44, {54*4096}\ns_add_u32 s8, s8, {WS['HH']}")
    add64(a, 14, 12, "s8"); srd(a, 16, 14, 54 * 4096)
    ACC, XR, GB, SEL, HB = 152, 20, 40, 60, 64
    NB = 5
    a(f"""v_and_b32 v2, 15, v0
    v_lshrrev_b32 v3, 4, v0
    v_lshlrev_b32 v4, 12, v2
    v_lshl_add_u32 v4, v3, 4, v4
    v_lshlrev_b32 v18, 4, v3
    s_mul_i32 s8, s45, {80*4096}
    s_lshl_b32 s9, s44, 7
    s_add_u32 s8, s8, s9
    s_lshr_b32 s9, s3, 1
    s_lshl_b32 s9, s9, 6
    s_add_u32 s8, s8, s9
    s_add_u32 s8, s8, {WS['X1T']}
    s_add_u32 s14, s12, s8
    s_addc_u32 s15, s13, 0
    s_mul_i32 s8, s45, 320
    s_add_u32 s8, s8, {WS['MOD'] + 5*2560}
    s_add_u32 s26, s12, s8
    s_addc_u32 s27, s13, 0
    s_and_b32 s8, s3, 1
    s_lshl_b32 s8, s8, 4
    v_lshlrev_b32 v5, 3, v3
    v_sub_u32 v5, v2, v5
    v_add_u32 v5, s8, v5
    v_mov_b32 v6, 0x3f80
    v_mov_b32 v7, 0x3f800000""")
    for p in range(4):
        a(f"""v_cmp_eq_u32 vcc, {2*p}, v5
        v_cmp_eq_u32 s[28:29], {2*p+1}, v5
        s_nop 1
        v_cndmask_b32 v{SEL+p}, 0, v6, vcc
        v_cndmask_b32 v{SEL+p}, v{SEL+p}, v7, s[28:29]""")
    a(f"""s_bfe_u32 s8, s44, 0x20002
    v_lshl_add_u32 v147, v0, 2, s8
    v_mul_u32_u24 v146, 2428, v147
    v_lshrrev_b32 v146, 16, v146
    v_lshlrev_b32 v147, 3, v147
    v_mul_u32_u24 v145, {8*27-1}, v146
    v_sub_u32 v147, v147, v145
    s_lshr_b32 s8, s44, 4
    s_lshl_b32 s8, s8, 2
    v_add_u32 v147, s8, v147
    s_lshl_b32 s24, s3, 12""")
    publish(a, 3, 148, vm=NWD2)
    a.stamp(16)
    for i in range(n1 + NWD2, 70): a(wd_load(i))
    a(f"""v_lshrrev_b32 v4, 2, v0
    v_lshlrev_b32 v4, 12, v4
    v_bfe_u32 v19, v0, 4, 2
    v_xor_b32 v19, v19, v0
    v_and_b32 v19, 3, v19
    v_lshl_add_u32 v4, v19, 4, v4
    s_mul_i32 s9, s3, 5120
    s_add_u32 s9, s9, {W3L}
    v_bfe_u32 v19, v0, 2, 2
    v_xor_b32 v19, v19, v3
    v_lshl_add_u32 v19, v2, 2, v19
    v_lshl_add_u32 v19, v19, 4, s9""")
    late = [(99, f"s_add_u32 m0, s9, {1024*d}\ns_nop 0\nglobal_load_lds_dwordx4 v4, s[14:15]{SC}\ns_add_u32 s14, s14, 0x10000\ns_addc_u32 s15, s15, 0") for d in range(5)]
    late += [(99, f"s_lshl_b32 s8, s3, 9\ns_add_u32 m0, s8, {CSL}\nv_add_u32 v18, m0, v18\ns_mov_b64 exec, 0xfffff\nglobal_load_lds_dwordx4 v9, s[26:27]{SC}\ns_mov_b64 exec, -1")]
    if not XLATE:
        for e in late: a(e[1])
        late = []
    poll(a, 3, None, 27, 144, idxreg=147)
    a.stamp(17)
    for d in range(5): a(f"ds_read_b128 {vr(GB+4*d,4)}, v18 offset:{64*d}")
    for d in range(5): a(f"ds_read_b128 {vr(XR+4*d,4)}, v19 offset:{1024*d}")
    if "opf" in EXP:
        a(f"""s_lshl_b32 s8, s44, 2
        s_add_u32 s8, s8, s3
        s_mul_i32 s8, s8, {16*1280}
        s_mul_i32 s9, s45, 160
        s_add_u32 s8, s8, s9
        v_mul_u32_u24 v19, 1280, v2
        v_mul_u32_u24 v145, 52, v3
        v_add3_u32 v19, v19, v145, s8
        s_waitcnt lgkmcnt(0)
        global_load_dword v145, v19, s[30:31]""")
    vm = VM()
    def hl(st):
        return [(st, (f"s_add_u32 s25, s24, {st*16384}\n" if sg == 0 else "") + f"buffer_load_dwordx4 {vr(HB+16*(st%NB)+4*sg,4)}, v{10+sg}, s[16:19], s25 offen{SC}") for sg in range(4)]
    rest = []
    def emit(e):
        if "g2noload" in EXP and "s[16:19]" in e[1] and e[0] >= 4: return
        if "g2norest" in EXP and "s[16:19]" not in e[1]: return
        a(e[1]); vm.add(e[0])
    for st in range(NB - 1):
        for e in hl(st): emit(e)
    per = -(-len(rest) // 10)
    for st in range(14):
        a(vm.wait(list(range(st + 1))) or "s_nop 0")
        if "g2stamp" in EXP and st in (0, 1, 2, 4, 6, 8, 10, 12): a.stamp({0: 1, 1: 2, 2: 3, 4: 4, 6: 5, 8: 6, 10: 7, 12: 8}[st])
        ex = hl(st + NB - 1) if st + NB - 1 < 14 else []
        if st >= 10: ex += late[:4]; late = late[4:]
        for sg in ((0, 1, 2, 3) if st < 13 else (1, 2, 3, 0)):
            for d in range(5):
                t = vr(ACC + 20 * sg + 4 * d, 4)
                if "g2nomfma" not in EXP: a(f"v_mfma_f32_16x16x32_bf16 {t}, {wd_reg(5*st+d)}, {vr(HB+16*(st%NB)+4*sg,4)}, {t if st else '0'}")
                if ex and (d == G2POS or not SPREAD): emit(ex.pop(0))
                if st == 13 and sg in (3, 0): a(f"ds_write_b128 v{14 if sg == 3 else 15}, {vr(ACC+20*(1 if sg == 3 else 2)+4*d,4)} offset:{1024*d}")
        assert not ex
    assert not rest
    a.stamp(18)
    XD = 64
    a("s_waitcnt lgkmcnt(10)")
    for d in range(5):
        a(f"v_mfma_f32_16x16x32_bf16 {vr(XD+4*d,4)}, {vr(XR+4*d,4)}, {vr(SEL,4)}, 0")
        a(f"ds_write_b128 v16, {vr(ACC+60+4*d,4)} offset:{1024*d}")
    if OUTT:
        a(f"""s_mul_i32 s8, s3, 2816
        s_add_u32 s8, s8, 65536
        v_mul_u32_u24 v5, 176, v2
        v_lshl_add_u32 v5, v3, 3, v5
        v_add_u32 v5, s8, v5""")
        for i in range(3):
            a(f"""v_add_u32 v6, {64*i}, v0
            v_min_u32 v6, 159, v6
            v_mul_u32_u24 v7, 6554, v6
            v_lshrrev_b32 v7, 16, v7
            v_lshlrev_b32 v6, 4, v6
            v_lshl_add_u32 v{84+i}, v7, 4, v6
            v_add_u32 v{84+i}, s8, v{84+i}
            v_mul_u32_u24 v7, {1280-160}, v7
            v_add_u32 v{88+i}, v6, v7""")
    a(f"""s_mul_i32 s8, s3, {15*1024}
    v_add_u32 v17, s8, v9
    v_mul_u32_u24 v4, 1280, v2
    v_lshl_add_u32 v4, v3, 3, v4
    s_lshl_b32 s8, s44, 2
    s_add_u32 s8, s8, s3
    s_mul_i32 s8, s8, {16*1280}
    s_mul_i32 s9, s45, 160
    s_add_u32 s8, s8, s9
    s_waitcnt lgkmcnt(0)""")
    add64(a, 30, 30, "s8")
    if "fstamp" in EXP: a.stamp(1)
    a("s_barrier")
    if "fstamp" in EXP: a.stamp(2)
    for d in range(5):
        for sg in range(1, 4): a(f"ds_read_b128 {vr(ACC+20*sg+4*d,4)}, v17 offset:{1024*(5*(sg-1)+d)}")
    for d in range(5):
        a(f"s_waitcnt lgkmcnt({12-3*d + (d if OUTT else 0)})")
        t = ACC + 4 * d
        for p in range(2):
            a(f"v_pk_add_f32 {vr(t+2*p,2)}, {vr(t+2*p,2)}, {vr(t+20+2*p,2)}")
            a(f"v_pk_add_f32 {vr(t+40+2*p,2)}, {vr(t+40+2*p,2)}, {vr(t+60+2*p,2)}")
        for p in range(2): a(f"v_pk_add_f32 {vr(t+2*p,2)}, {vr(t+2*p,2)}, {vr(t+40+2*p,2)}")
        for p in range(2): a(f"v_pk_fma_f32 {vr(t+2*p,2)}, {vr(t+2*p,2)}, {vr(GB+4*d+2*p,2)}, {vr(XD+4*d+2*p,2)}")
        a(f"v_cvt_pk_bf16_f32 v{t}, v{t}, v{t+1}\nv_cvt_pk_bf16_f32 v{t+1}, v{t+2}, v{t+3}")
        if OUTT: a(f"ds_write_b64 v5, {vr(t,2)} offset:{32*d}")
        else: a(f"global_store_dwordx2 v4, {vr(t,2)}, s[30:31] offset:{32*d}")
    if OUTT:
        a("s_waitcnt lgkmcnt(0)")
        for i in range(3): a(f"ds_read_b128 {vr(100+4*i,4)}, v{84+i}")
        for i in range(3):
            a(f"s_waitcnt lgkmcnt({2-i})")
            if i == 2: a("s_mov_b32 exec_hi, 0")
            a(f"global_store_dwordx4 v{88+i}, {vr(100+4*i,4)}, s[30:31]")

def build():
    a = A()
    hdr = open("cdna_kernels/" + NAME + ".s.ref").read().split("; Override launch")[0]
    a(f'.amdgcn_target "amdgcn-amd-amdhsa--gfx950"\n.text\n.globl {KNAME}\n.p2align 8\n.type {KNAME},@function\n{KNAME}:')
    Lend, Laux, Lg1, Lnt = a.label("end"), a.label("aux"), a.label("g1"), a.label("notag")
    if DIAG:
        for i in range(NSTAMP): a(f"s_mov_b32 s{48+i}, 0")
    a.stamp(0)
    a(f"""s_cmp_ge_u32 s2, 256
    s_cbranch_scc1 {Lend}
    s_load_dwordx2 s[12:13], s[0:1], {KA['ws']}
    s_load_dwordx2 s[72:73], s[0:1], {KA['dbg']}
    v_lshrrev_b32 v1, 6, v0
    v_and_b32 v0, 63, v0
    v_readfirstlane_b32 s3, v1
    s_mov_b32 s69, 0xffff0000
    s_cmp_lg_u32 s2, 255
    s_cbranch_scc1 {Lnt}
    s_cmp_lg_u32 s3, 0
    s_cbranch_scc1 {Lnt}
    s_memrealtime s[70:71]
    v_mov_b32 v4, 0
    s_waitcnt lgkmcnt(0)
    s_or_b32 s70, s70, 1
    v_mov_b32 v2, s70
    v_mov_b32 v3, s71
    s_mov_b64 exec, 1
    global_store_dwordx2 v4, v[2:3], s[72:73]{SC}
    s_mov_b64 exec, -1
    {Lnt}:""")
    if "tlb" in EXP:
        TSH = int(os.environ.get("TSH", "20"))
        Ltl = a.label("notouch")
        npg = (_off >> TSH) + 1
        assert npg <= 64
        a(f"""s_cmp_lg_u32 s3, 1
        s_cbranch_scc1 {Ltl}
        s_load_dwordx4 s[4:7], s[0:1], {KA['wg']}
        s_load_dwordx2 s[8:9], s[0:1], {KA['wd']}
        s_load_dwordx2 s[10:11], s[0:1], {KA['out']}
        v_min_u32 v2, {npg-1}, v0
        v_lshlrev_b32 v2, {TSH}, v2
        v_min_u32 v3, 0x200000, v2
        s_waitcnt lgkmcnt(0)
        global_load_dword v251, v2, s[12:13]{NT}
        global_load_dword v251, v3, s[4:5]{NT}
        global_load_dword v251, v3, s[6:7]{NT}
        global_load_dword v251, v3, s[8:9]{NT}
        global_load_dword v251, v3, s[10:11]{NT}
        {Ltl}:""")
    a(f"""s_cmp_ge_u32 s2, 160
    s_cbranch_scc1 {Laux}""")
    phase_conv(a, Lg1)
    a(f"{Laux}:")
    phase_aux(a, Lg1)
    a(f"{Lg1}:")
    phase_g1(a)
    phase_g2(a)
    if DIAG:
        if "fstamp" in EXP: a.stamp(3)
        a("s_waitcnt vmcnt(0)")
        a.stamp(19)
        AMP = os.environ.get("AMP", "")
        if AMP:
            i, wgsel = (int(x) for x in AMP.split(":"))
            Lsp, Lsk = a.label("spin"), a.label("nospin")
            a(f"""s_cmp_lg_u32 s2, {wgsel}
            s_cbranch_scc1 {Lsk}
            s_sub_u32 s4, s{48+i}, s48
            s_lshl_b32 s4, s4, 3
            {Lsp}:
            s_memrealtime s[76:77]
            s_waitcnt lgkmcnt(0)
            s_sub_u32 s5, s76, s67
            s_cmp_lt_u32 s5, s4
            s_cbranch_scc1 {Lsp}
            {Lsk}:""")
        a(f"""s_lshl_b32 s4, s2, 2
        s_add_u32 s4, s4, s3
        s_lshl_b32 s4, s4, 7
        s_add_u32 s4, s4, {TS_OFF}
        v_mov_b32 v0, s4
        s_mov_b64 exec, 1""")
        for i in range(NSTAMP): a(f"v_mov_b32 v2, s{48+i}\nglobal_store_dword v0, v2, s[12:13] offset:{4*i}\ns_nop 1")
    a(f"{Lend}:\ns_endpgm\ncode_end:")
    kd = f""".section .rodata,"a"
.p2align 6
.amdhsa_kernel {KNAME}
  .amdhsa_next_free_vgpr 512
  .amdhsa_next_free_sgpr 102
  .amdhsa_accum_offset 256
  .amdhsa_group_segment_fixed_size 0
  .amdhsa_kernarg_size 120
  .amdhsa_user_sgpr_count 2
  .amdhsa_user_sgpr_kernarg_segment_ptr 1
  .amdhsa_system_sgpr_workgroup_id_x 1
.end_amdhsa_kernel
"""
    return hdr + f"; @launch grid=(256,1,1) block=(256,1,1) lds={LDS_BYTES}\n" + a.text() + kd

if __name__ == "__main__":
    open(sys.argv[1] if len(sys.argv) > 1 else "p.s", "w").write(build())
```

```python
import sys, os
NAME = "adaLN_cond__ssm_conv_h3__glu_gated_reglu__prompt"
KNAME = NAME + "_kernel"
S, D, F = 2048, 640, 1728
KA = dict(x=0, k=8, v=16, shift=24, ssm=32, ssmD=40, bx=48, wg=56, wu=64, wd=72, c=80, wmod=88, out=96, dbg=104, ws=112)
WS = {}
_off = 0
def alloc(name, n):
    global _off
    WS[name] = _off
    _off += (n + 4095) // 4096 * 4096
alloc("FL", 6 * 256 * 128)
alloc("KVT", 640 * 4096 + 4096)
alloc("XTT", 640 * 4096)
alloc("ST", 2 * 2048 * 4)
alloc("MOD", 3840 * 4)
alloc("X1T", 640 * 4096)
alloc("X1S", 640 * 4096)
alloc("ST2", 2048 * 8)
alloc("CSB", 4 * 1728 * 4)
alloc("WD", 54 * 40 * 1024)
alloc("HH", 32 * 54 * 4096)
DIAG = bool(int(os.environ.get("DIAG", "0")))
EXP = os.environ.get("EXP", "").split(",")
TS_OFF = 64 << 20
NSTAMP = 20
SLEEP = int(os.environ.get("SLEEP", "1"))
FLMASK = os.environ.get("FLMASK", "0xffff")
NT = " nt"
SC = " sc1"
INV640 = f"{1.0/640:#.9g}"

class A:
    def __init__(self):
        self.l = []; self.n = 0
    def __call__(self, s):
        for x in s.strip("\n").split("\n"):
            x = x.strip()
            if x: self.l.append(("" if x.endswith(":") else "    ") + x)
    def label(self, p="L"):
        self.n += 1
        return f"{p}_{self.n}"
    def stamp(self, i):
        if DIAG: self(f"{'s_memtime' if 'cyc' in EXP else 's_memrealtime'} s[76:77]\ns_waitcnt lgkmcnt(0)\ns_mov_b32 s{48+i}, s76")
    def text(self): return "\n".join(self.l) + "\n"

def vr(b, n=1, p="v"): return f"{p}{b}" if n == 1 else f"{p}[{b}:{b+n-1}]"
def ar(b, n=1): return vr(b, n, "a")
def srd(a, dst, base, nbytes):
    a(f"s_mov_b32 s{dst}, s{base}\ns_and_b32 s{dst+1}, s{base+1}, 0xffff\ns_mov_b32 s{dst+2}, {nbytes}\ns_mov_b32 s{dst+3}, 0x20000")
def add64(a, dst, base, off):
    a(f"s_add_u32 s{dst}, s{base}, {off}\ns_addc_u32 s{dst+1}, s{base+1}, 0")
def dma(a, voff, sbase, m0, extra=""):
    a(f"s_mov_b32 m0, {m0}\ns_nop 0\nglobal_load_lds_dwordx4 v{voff}, s[{sbase}:{sbase+1}]{extra}")
def rbf16(a, dst, src):
    a(f"v_cvt_pk_bf16_f32 v{dst}, v{src}, v{src}\nv_lshlrev_b32 v{dst}, 16, v{dst}")

def get_tag(a, vt):
    L, Ld = a.label("tag"), a.label("tagd")
    a(f"""s_mov_b32 s74, 0x100000
    v_mov_b32 v{vt+2}, 0
    {L}:
    s_mov_b64 exec, 1
    global_load_dwordx2 {vr(vt,2)}, v{vt+2}, s[72:73]{SC}
    s_mov_b64 exec, -1
    s_waitcnt vmcnt(0)
    v_readfirstlane_b32 s70, v{vt}
    v_readfirstlane_b32 s71, v{vt+1}
    s_sub_u32 s74, s74, 1
    s_cbranch_scc1 {Ld}
    s_cmp_eq_u64 s[70:71], 0
    s_cbranch_scc1 {L}
    {Ld}:""")

def publish(a, phase, vt, vm=0, nosync=False):
    L = a.label("pub")
    if not nosync: a(f"s_waitcnt vmcnt({vm})\ns_barrier")
    a(f"""s_cmp_lg_u32 s3, 0
    s_cbranch_scc1 {L}
    s_lshl_b32 s74, s2, 7
    s_add_u32 s74, s74, {WS['FL'] + phase*256*128}
    v_lshl_add_u32 v{vt+2}, v0, 3, s74
    v_mov_b32 v{vt}, s70
    v_mov_b32 v{vt+1}, s71
    s_mov_b64 exec, {FLMASK}
    global_store_dwordx2 v{vt+2}, {vr(vt,2)}, s[12:13]{SC}
    s_mov_b64 exec, -1
    {L}:""")

def poll(a, phase, first, count, vt, idxreg=None):
    L, Ld = a.label("poll"), a.label("polld")
    if idxreg is None:
        a(f"v_add_u32 v{vt+2}, {first}, v0")
        idxreg = vt + 2
    a(f"""v_lshlrev_b32 v{vt+2}, 7, v{idxreg}
    v_add_u32 v{vt+2}, {WS['FL'] + phase*256*128}, v{vt+2}
    s_mov_b32 s74, 0x100000""")
    if count < 64: a(f"s_mov_b64 exec, {(1 << count) - 1:#x}" if count <= 31 else f"s_mov_b32 exec_hi, {(1 << (count - 32)) - 1:#x}")
    a(f"""{L}:
    global_load_dwordx2 {vr(vt,2)}, v{vt+2}, s[12:13]{SC}
    s_waitcnt vmcnt(0)
    v_cmp_ne_u64 vcc, s[70:71], {vr(vt,2)}
    s_and_b64 exec, exec, vcc
    s_cbranch_execz {Ld}
    s_sleep {SLEEP}
    s_sub_u32 s74, s74, 1
    s_cbranch_scc0 {L}
    {Ld}:
    s_mov_b64 exec, -1""")

def poll_multi(a, phase, count, vt):
    L, Ld = a.label("pollm"), a.label("pollmd")
    a(f"""v_lshlrev_b32 v{vt+6}, 7, v0
    v_add_u32 v{vt+6}, {WS['FL'] + phase*256*128}, v{vt+6}
    v_add_u32 v{vt+7}, {64*128}, v{vt+6}
    v_add_u32 v{vt+8}, {128*128}, v{vt+6}
    s_mov_b64 s[38:39], -1
    s_mov_b64 s[10:11], -1
    s_mov_b32 s28, {(1 << (count - 128)) - 1:#x}
    s_mov_b32 s29, 0
    s_mov_b32 s74, 0x100000
    {L}:""")
    for i, m in enumerate(("s[38:39]", "s[10:11]", "s[28:29]")):
        Ls = a.label("pm")
        a(f"s_mov_b64 exec, {m}\ns_cbranch_execz {Ls}\nglobal_load_dwordx2 {vr(vt+2*i,2)}, v{vt+6+i}, s[12:13]{SC}\n{Ls}:")
    a("s_mov_b64 exec, -1\ns_waitcnt vmcnt(0)")
    for i, m in enumerate(("s[38:39]", "s[10:11]", "s[28:29]")):
        a(f"v_cmp_ne_u64 vcc, s[70:71], {vr(vt+2*i,2)}\ns_and_b64 {m}, {m}, vcc")
    a(f"""s_or_b64 vcc, s[38:39], s[10:11]
    s_or_b64 vcc, vcc, s[28:29]
    s_cbranch_scc0 {Ld}
    s_sleep {SLEEP}
    s_sub_u32 s74, s74, 1
    s_cbranch_scc0 {L}
    {Ld}:""")

def xtile_tr_addrs(a, dst, base_sgpr=None):
    a("""v_lshrrev_b32 v2, 2, v0
    v_and_b32 v3, 7, v2
    v_lshlrev_b32 v3, 1, v3
    v_bfe_u32 v4, v0, 1, 1
    v_or_b32 v3, v3, v4
    v_lshlrev_b32 v2, 8, v2
    v_and_b32 v4, 1, v0
    v_lshl_add_u32 v2, v4, 3, v2""")
    if base_sgpr is not None: a(f"v_add_u32 v2, s{base_sgpr}, v2")
    for m in range(8): a(f"v_xor_b32 v4, {2*m}, v3\nv_lshl_add_u32 v{dst+m}, v4, 4, v2")

def stats_issue(a, R, sx, srow):
    a(f"""s_lshl_b32 s14, s3, 4
    s_add_u32 s14, s14, s{srow}
    s_mul_i32 s14, s14, 1280
    v_lshrrev_b32 v{R+80}, 4, v0
    v_mul_u32_u24 v{R+80}, {1280-256}, v{R+80}
    v_lshl_add_u32 v{R+80}, v0, 4, v{R+80}""")
    add64(a, 14, sx, "s14")
    for gq in range(4):
        for i in range(5): a(f"global_load_dwordx4 {vr(R+20*gq+4*i,4)}, v{R+80}, s[14:15] offset:{256*i}{NT}")
        if gq < 3: add64(a, 14, 14, 4 * 1280)
def stats_compute(a, R, srow):
    T = R + 80
    a("s_mov_b32 s14, 0x3f803f80")
    for half in range(2):
        a(f"s_waitcnt vmcnt({11 if half == 0 else 1})")
        for i in range(20):
            for gq in (2 * half, 2 * half + 1):
                a(f"v_dot2_f32_bf16 v{T+2*gq}, v{R+20*gq+i}, s14, {'0' if i == 0 else f'v{T+2*gq}'}")
                a(f"v_dot2_f32_bf16 v{T+2*gq+1}, v{R+20*gq+i}, v{R+20*gq+i}, {'0' if i == 0 else f'v{T+2*gq+1}'}")
    a("s_nop 2")
    for rot in (8, 4, 2, 1):
        for j in range(8): a(f"v_add_f32_dpp v{T+j}, v{T+j}, v{T+j} row_ror:{rot} row_mask:0xf bank_mask:0xf")
    a(f"""v_and_b32 v{R}, 3, v0
    v_cmp_eq_u32 vcc, 1, v{R}
    v_cmp_eq_u32 s[14:15], 2, v{R}
    v_cmp_eq_u32 s[16:17], 3, v{R}
    v_lshrrev_b32 v{R+1}, 4, v0
    v_lshl_add_u32 v{R}, v{R}, 2, v{R+1}
    v_cndmask_b32 v{T}, v{T}, v{T+2}, vcc
    v_cndmask_b32 v{T+1}, v{T+1}, v{T+3}, vcc
    v_cndmask_b32 v{T}, v{T}, v{T+4}, s[14:15]
    v_cndmask_b32 v{T+1}, v{T+1}, v{T+5}, s[14:15]
    v_cndmask_b32 v{T}, v{T}, v{T+6}, s[16:17]
    v_cndmask_b32 v{T+1}, v{T+1}, v{T+7}, s[16:17]
    v_mul_f32 v{T}, {INV640}, v{T}
    v_mul_f32 v{T+1}, {INV640}, v{T+1}
    v_fma_f32 v{T+1}, -v{T}, v{T}, v{T+1}
    v_max_f32 v{T+1}, 0, v{T+1}
    v_add_f32 v{T+1}, 0x3727c5ac, v{T+1}
    v_rsq_f32 v{T+1}, v{T+1}
    s_lshl_b32 s14, s3, 4
    s_add_u32 s14, s14, s{srow}
    s_lshl_b32 s14, s14, 3
    s_add_u32 s14, s14, {WS['ST']}
    v_mul_f32 v{T}, -v{T}, v{T+1}
    v_and_b32 v{R+1}, 4, v0
    v_cmp_eq_u32 vcc, 0, v{R+1}
    v_lshl_add_u32 v{R}, v{R}, 2, s14
    v_lshl_add_u32 v{R}, v{R+1}, 4, v{R}
    v_cndmask_b32 v{T}, v{T}, v{T+1}, vcc
    s_mov_b32 exec_lo, 0xff00ff
    s_mov_b32 exec_hi, 0xff00ff
    global_store_dword v{R}, v{T}, s[12:13]{SC}
    s_mov_b64 exec, -1""")

def mod_slab(a, sslab, sc, sw, ldsoff):
    R, CR, SV, ACC, U = 100, 180, 16, 56, 64
    a(f"""s_lshl_b32 s14, s3, 3
    v_lshrrev_b32 v2, 3, v0
    v_add_u32 v2, s14, v2
    v_mul_u32_u24 v3, 40, v2
    global_load_dwordx4 {vr(CR,4)}, v3, s[{sc}:{sc+1}]
    global_load_dwordx4 {vr(CR+4,4)}, v3, s[{sc}:{sc+1}] offset:16
    global_load_dwordx2 {vr(CR+8,2)}, v3, s[{sc}:{sc+1}] offset:32
    v_mul_u32_u24 v2, {20*7680}, v2
    v_and_b32 v3, 7, v0
    v_lshl_add_u32 v2, v3, 4, v2
    s_lshl_b32 s16, s{sslab}, 7""")
    add64(a, 14, sw, "s16")
    for i in range(20):
        a(f"global_load_dwordx4 {vr(R+4*i,4)}, v2, s[14:15]{NT}")
        if i < 19: add64(a, 14, 14, 7680)
        if i == 9:
            a("s_waitcnt vmcnt(10)")
            for j in range(10): a(f"v_lshlrev_b32 v{SV+4*j+1}, 16, v{CR+j}\nv_and_b32 v{SV+4*j+3}, s69, v{CR+j}")
            for j in range(20): a(f"v_mul_f32 v{SV+2*j}, 0xbfb8aa3b, v{SV+2*j+1}")
            for j in range(20): a(f"v_exp_f32 v{SV+2*j}, v{SV+2*j}")
            for j in range(20): a(f"v_add_f32 v{SV+2*j}, 1.0, v{SV+2*j}")
            for j in range(20): a(f"v_rcp_f32 v{SV+2*j}, v{SV+2*j}")
            for j in range(20): a(f"v_mul_f32 v{SV+2*j}, v{SV+2*j+1}, v{SV+2*j}")
            for j in range(10): a(f"v_cvt_pk_bf16_f32 v{SV+4*j+1}, v{SV+4*j}, v{SV+4*j+2}")
            for j in range(10): a(f"v_lshlrev_b32 v{SV+4*j}, 16, v{SV+4*j+1}\nv_and_b32 v{SV+4*j+2}, s69, v{SV+4*j+1}")
    tag_issue(a, 212)
    for i in range(20):
        a(f"s_waitcnt vmcnt({20-i if i < 19 else 0})")
        u = U + 8 * (i & 1)
        for j in range(4): a(f"v_lshlrev_b32 v{u+2*j}, 16, v{R+4*i+j}\nv_and_b32 v{u+2*j+1}, s69, v{R+4*i+j}")
        for j in range(4):
            if i == 0: a(f"v_pk_mul_f32 {vr(ACC+2*j,2)}, {vr(u+2*j,2)}, {vr(SV,2)} op_sel_hi:[1,0]")
            else: a(f"v_pk_fma_f32 {vr(ACC+2*j,2)}, {vr(u+2*j,2)}, {vr(SV+2*i,2)}, {vr(ACC+2*j,2)} op_sel_hi:[1,0,1]")
    a("s_nop 1")
    for j in range(4): a(f"v_permlane32_swap_b32 v{ACC+j}, v{ACC+4+j}")
    a("s_nop 0")
    for j in range(4): a(f"v_add_f32 v{ACC+j}, v{ACC+j}, v{ACC+4+j}")
    a("s_nop 1")
    for j in range(2): a(f"v_permlane16_swap_b32 v{ACC+j}, v{ACC+2+j}")
    a("s_nop 0")
    for j in range(2): a(f"v_add_f32 v{ACC+j}, v{ACC+j}, v{ACC+2+j}")
    a("s_nop 1")
    for j in range(2): a(f"v_add_f32_dpp v{ACC+j}, v{ACC+j}, v{ACC+j} row_ror:8 row_mask:0xf bank_mask:0xf")
    L = a.label("modfin")
    a(f"""s_lshl_b32 s14, s3, 8
    s_add_u32 s14, s14, {ldsoff}
    v_lshrrev_b32 v4, 4, v0
    v_lshlrev_b32 v3, 5, v3
    v_lshl_add_u32 v3, v4, 3, v3
    v_add_u32 v3, s14, v3
    ds_write_b64 v3, {vr(ACC,2)}
    s_waitcnt lgkmcnt(0)
    s_barrier
    s_cmp_lg_u32 s3, 0
    s_cbranch_scc1 {L}
    v_lshlrev_b32 v2, 2, v0
    v_add_u32 v3, {ldsoff}, v2
    ds_read2st64_b32 v[4:5], v3 offset0:0 offset1:1
    ds_read2st64_b32 v[6:7], v3 offset0:2 offset1:3
    s_lshl_b32 s14, s{sslab}, 8
    s_add_u32 s14, s14, {WS['MOD']}
    v_add_u32 v2, s14, v2
    s_waitcnt lgkmcnt(0)
    v_pk_add_f32 v[4:5], v[4:5], v[6:7]
    s_nop 0
    v_add_f32 v4, v4, v5""")
    rbf16(a, 4, 4)
    a(f"global_store_dword v2, v4, s[12:13]{SC}\n{L}:")

RW = 4608 + 4160 * 2
OF, OE, OO = 512, 4608, 4608 + 4160
KB = 68096; VB = KB + 17 * 1040; XB = VB + 16 * 1040; MRED = XB + 16 * 1040
WRING = 69632; STL = WRING + 65536; CSL = STL + 4096
W3L = CSL + 2048
LDS_BYTES = W3L + 20480

def tag_issue(a, vt):
    a(f"v_mov_b32 v{vt+2}, 0\ns_mov_b64 exec, 1\nglobal_load_dwordx2 {vr(vt,2)}, v{vt+2}, s[72:73]{SC}\ns_mov_b64 exec, -1")
def tag_check(a, vt):
    Ld = a.label("tagok")
    a(f"""v_readfirstlane_b32 s70, v{vt}
    v_readfirstlane_b32 s71, v{vt+1}
    s_cmp_lg_u64 s[70:71], 0
    s_cbranch_scc1 {Ld}""")
    get_tag(a, vt)
    a(f"{Ld}:")

def interleave(a, mfmas, reads, valu, vmem=()):
    n = len(mfmas)
    slots = [[] for _ in range(n)]
    cap = [2] * n
    vmem = list(vmem)
    for i, (pre, x) in enumerate(vmem):
        p = 1 + (i * (n - 1)) // len(vmem)
        if pre: slots[p - 1].append(pre)
        slots[p].insert(0, x); cap[p] = 0
    free = [i for i in range(n) if cap[i]]
    for e, p in zip(reads, free): slots[p].insert(0, e); cap[p] -= 1
    assert len(reads) <= len(free)
    valu = list(valu)
    tot = sum(cap)
    order = [i for i in range(n) for _ in range(cap[i])]
    if len(valu) < len(order):
        first = [i for i in range(n) if cap[i] == 2]
        pool = sorted(first + [i for i in range(n) if cap[i] >= 1])[:]
        step = len(pool) / max(len(valu), 1)
        order = [pool[int(i * step)] for i in range(len(valu))]
    for i, e in enumerate(valu): slots[order[i] if i < len(order) else n - 1].append(e)
    for m, sl in zip(mfmas, slots):
        a(m)
        for e in sl: a(e)

FLAG2 = f"s_mov_b64 exec, 1\nglobal_load_dwordx2 v[236:237], v240, s[12:13]{SC}\ns_mov_b64 exec, -1"
def flag2_setup(a, zero=False):
    a(f"""s_and_b32 s74, s2, 63
    s_lshl_b32 s74, s74, 7
    s_add_u32 s74, s74, {WS['FL'] + 5*256*128}
    v_mov_b32 v240, s74
    v_mov_b32 v236, s70
    v_mov_b32 v237, s71""")
    if zero: a("v_writelane_b32 v236, 0, 0")
def flag2_check(a, first=False):
    Lok, Lsl, Lld = a.label("f2_ok"), a.label("f2_slow"), a.label("f2_ld")
    a("s_mov_b32 s74, 0x100000")
    if first: a(f"s_branch {Lld}")
    a(f"""{Lsl}:
    v_cmp_ne_u64 vcc, s[70:71], v[236:237]
    s_cbranch_vccz {Lok}
    s_sleep 4
    {Lld}:
    {FLAG2}
    s_waitcnt vmcnt(0)
    s_sub_u32 s74, s74, 1
    s_cbranch_scc0 {Lsl}
    {Lok}:""")
WEL = [int(x) for x in os.environ.get("WEL", "0,2,5,8").split(",")]
NWE = WEL[3]; H2 = int(os.environ.get("H2", "32")); ELP = int(os.environ.get("ELP", "3")); HKP = int(os.environ.get("HKP", "0"))
PUBT = int(os.environ.get("PUBT", "1"))
XST = int(os.environ.get("XST", "0"))
AORD = int(os.environ.get("AORD", "0"))
HK = int(os.environ.get("HK", "4")); HKF = int(os.environ.get("HKF", "3"))
def phase_conv(a, Lg1):
    a(f"""s_load_dwordx4 s[4:7], s[0:1], {KA['x']}
    s_load_dwordx4 s[8:11], s[0:1], {KA['v']}
    s_load_dwordx4 s[36:39], s[0:1], {KA['ssm']}
    s_load_dwordx4 s[40:43], s[0:1], {KA['c']}
    s_lshr_b32 s44, s2, 4
    s_and_b32 s45, s2, 15
    v_lshrrev_b32 v4, 3, v0
    v_and_b32 v5, 7, v0
    v_mul_u32_u24 v2, 1280, v4
    v_lshl_add_u32 v2, v5, 4, v2
    s_lshl_b32 s14, s45, 4
    s_add_u32 s14, s14, s3
    s_mul_i32 s14, s14, {8*1280}
    s_lshl_b32 s15, s44, 7
    s_add_u32 s14, s14, s15
    v_add_u32 v2, s14, v2
    v_add_u32 v3, {(-8*1280) & 0xffffffff}, v2
    s_lshl_b32 s14, s3, 3
    v_add_u32 v6, s14, v4
    s_lshl_b32 s14, s44, 9
    v_lshl_add_u32 v7, v6, 4, s14
    s_mul_i32 s28, s3, 1040
    s_mov_b32 s29, {32*1280}
    s_mov_b32 s30, {64*1280}
    s_mov_b32 s31, {96*1280}
    s_waitcnt lgkmcnt(0)""")
    srd(a, 16, 6, S * D * 2); srd(a, 20, 8, S * D * 2); srd(a, 24, 4, S * D * 2)
    Lh = a.label("nohalo")
    a(f"""s_cmp_lg_u32 s3, 0
    s_cbranch_scc1 {Lh}
    s_mov_b32 m0, {KB}
    s_nop 0
    buffer_load_dwordx4 v3, s[16:19], 0 offen{NT} lds
    {Lh}:""")
    SH = 8
    so = ["0", "s29", "s30", "s31"]
    def tile_dma(base, srdb):
        for i in range(4):
            a(f"s_add_u32 m0, s28, {base + 4*1040*i}\ns_nop 0\nbuffer_load_dwordx4 v2, s[{srdb}:{srdb+3}], {so[i]} offen{NT} lds")
    tile_dma(KB + 1040, 16); tile_dma(VB, 20)
    a(f"global_load_dwordx4 {vr(SH,4)}, v7, s[10:11]")
    code_prefetch(a)
    if AORD == 0: tile_dma(XB, 24)
    else: a("v_mov_b32 v243, v2")
    a(f"""    v_mul_u32_u24 v242, 1040, v5
    v_lshl_add_u32 v242, v6, 2, v242
    v_add_u32 v242, {KB}, v242
    v_xor_b32 v3, 7, v5
    v_mul_u32_u24 v12, 1040, v3
    v_lshl_add_u32 v12, v6, 2, v12
    v_add_u32 v12, {KB}, v12
    v_lshlrev_b32 v13, 13, v6
    v_lshl_add_u32 v14, v5, 4, v13
    v_mov_b32 v13, v14
    s_lshl_b32 s14, s44, 18
    s_lshl_b32 s15, s45, 8
    s_sub_u32 s32, s14, s15
    s_add_u32 s32, s32, {WS['KVT'] + 4096 + 240*16}
    s_add_u32 s34, s14, s15
    s_add_u32 s34, s34, {WS['XTT'] + 4096}""")
    add64(a, 32, 12, "s32"); add64(a, 34, 12, "s34")
    a(f"""s_lshl_b32 s8, s2, 2
    s_add_u32 s8, s8, s3
    s_mul_i32 s9, s3, {RW}
    s_add_u32 s9, s9, 16384
    s_lshl_b32 s10, s8, 12
    v_lshlrev_b32 v2, 4, v0
    v_and_b32 v4, 15, v0
    v_lshrrev_b32 v5, 4, v0
    v_mov_b32 v216, 0
    v_mov_b32 v217, 0
    v_lshl_add_u32 v6, v0, 3, s9
    ds_write_b64 v6, v[216:217]
    v_lshl_add_u32 v6, v4, 2, s9
    ds_write_b32 v6, v216 offset:{OE+4096}
    ds_write_b32 v6, v216 offset:{OO+4096}""")
    add64(a, 36, 36, "s10")
    a(f"s_add_u32 s11, s9, {OF}")
    if AORD < 2:
        for i in range(4): dma(a, 2, 36, "s11", f" offset:{1024*i}{NT}")
    a.stamp(1)
    a(f"s_waitcnt vmcnt({9 - 4*AORD}) lgkmcnt(0)\ns_barrier")
    a.stamp(2)
    SP, KR, VR_, KP, VP, KV, OUT = 16, 24, 46, 62, 84, 100, 116
    def rdk(h, lo, hi):
        for i in range(lo, hi):
            off = 8320 * h + (640 + 128 * i if i < 3 else 1040 + 128 * (i - 3))
            a(f"ds_read_b32 v{KR+11*h+i}, v12 offset:{off}")
    def rdv(h, lo, hi, base=VB, dst=VR_):
        for i in range(lo, hi): a(f"ds_read_b32 v{dst+8*h+i}, v12 offset:{base-KB + 8320*h + 128*i}")
    rdk(0, 0, 11); rdv(0, 0, 4)
    tag_issue(a, 212)
    a(f"""s_lshl_b32 s17, s8, 1
    v_mov_b32 v218, s17
    global_load_ushort v218, v218, s[38:39]
    v_lshlrev_b32 v{SP+0}, 16, v{SH+0}
    v_lshlrev_b32 v{SP+1}, 16, v{SH+2}
    v_and_b32 v{SP+2}, s69, v{SH+0}
    v_and_b32 v{SP+3}, s69, v{SH+2}
    v_lshlrev_b32 v{SP+4}, 16, v{SH+1}
    v_lshlrev_b32 v{SP+5}, 16, v{SH+3}
    v_and_b32 v{SP+6}, s69, v{SH+1}
    v_and_b32 v{SP+7}, s69, v{SH+3}""")
    def ks(h):
        for i in range(11): a(f"v_lshlrev_b32 v{KP+2*i}, 16, v{KR+11*h+i}\nv_and_b32 v{KP+2*i+1}, s69, v{KR+11*h+i}")
        for r in range(8): a(f"v_pk_mul_f32 {vr(KV+2*r,2)}, {vr(KP+2*r,2)}, {vr(SP+6,2)}")
        for j in (2, 1, 0):
            for r in range(8): a(f"v_pk_fma_f32 {vr(KV+2*r,2)}, {vr(KP+2*(r+3-j),2)}, {vr(SP+2*j,2)}, {vr(KV+2*r,2)}")
    def kvs(h):
        for i in range(8): a(f"v_lshlrev_b32 v{VP+2*i}, 16, v{VR_+8*h+i}\nv_and_b32 v{VP+2*i+1}, s69, v{VR_+8*h+i}")
        for r in range(8): a(f"v_pk_mul_f32 {vr(KV+2*r,2)}, {vr(KV+2*r,2)}, {vr(VP+2*r,2)}")
        for ch in range(2):
            o = OUT + 8 * h + 4 * ch
            for j in range(4): a(f"v_cvt_pk_bf16_f32 v{o+j}, v{KV+2*(7-2*j)+ch}, v{KV+2*(6-2*j)+ch}")
            a(f"global_store_dwordx4 v13, {vr(o,4)}, s[32:33] offset:{-4096*(1-ch) + 128*(1-h)}{SC}")
    a("s_waitcnt lgkmcnt(4)"); rdv(0, 4, 8); rdk(1, 0, 7)
    ks(0)
    a("s_waitcnt lgkmcnt(7)"); rdk(1, 7, 11); rdv(1, 0, 4)
    kvs(0)
    a("s_waitcnt lgkmcnt(4)"); rdv(1, 4, 8)
    ks(1)
    a("s_waitcnt lgkmcnt(0)")
    kvs(1)
    a.stamp(3)
    if AORD == 2:
        for i in range(4): dma(a, 2, 36, "s11", f" offset:{1024*i}{NT}")
    if AORD:
        for i in range(4):
            a(f"s_add_u32 m0, s28, {XB + 4*1040*i}\ns_nop 0\nbuffer_load_dwordx4 v243, s[24:27], {so[i]} offen{NT} lds")
    RA, RB = 220, 224
    a(f"""v_and_b32 v6, 1, v4
    v_xor_b32 v6, 1, v6
    v_mul_u32_u24 v6, {4160-2}, v6
    v_lshl_add_u32 v6, v5, 4, v6
    v_lshlrev_b32 v7, 1, v4
    v_sub_u32 v6, v6, v7
    v_add_u32 v6, s9, v6""")
    for q2 in range(4): a(f"v_add_u32 v{RA+q2}, {OE + 2*2031 - 512*(2*q2+1) - 64*7}, v6")
    a(f"""v_lshlrev_b32 v6, 5, v4
    v_lshl_add_u32 v15, v5, 3, v6
    v_lshl_add_u32 v6, v5, 4, v6
    v_add_u32 v6, s9, v6
    v_add_u32 v{RB}, {OF - 32 - 64*7}, v6
    v_add_u32 v3, s9, v2""")
    a(f"s_waitcnt vmcnt({4 + 4*AORD})")
    tag_check(a, 212)
    publish(a, 0, 212, vm=4*AORD)
    a.stamp(4)
    def xtrans():
        for h in range(2):
            for i in range(8): a(f"ds_read_b32 v{24+8*h+i}, v242 offset:{XB-KB + 8320*h + 128*i}")
            if h == 0: a("s_waitcnt lgkmcnt(6)")
        a("s_mov_b32 s14, 0x05040100\ns_mov_b32 s15, 0x07060302")
        for h in range(2):
            a(f"s_waitcnt lgkmcnt({8 if h == 0 else 0})")
            for ch in range(2):
                o = 40 + 8 * h + 4 * ch
                for j in range(4): a(f"v_perm_b32 v{o+j}, v{24+8*h+2*j+1}, v{24+8*h+2*j}, s{14+ch}")
                a(f"global_store_dwordx4 v14, {vr(o,4)}, s[34:35] offset:{-4096*(1-ch) + 128*h}{SC}")
    if AORD == 0: xtrans()
    a(f"s_add_u32 s10, s10, {WS['KVT']}\ns_add_u32 s11, s9, {OE}")
    add64(a, 16, 12, "s10")
    KO = 176
    ACC, KD, HG, SBv, XF, XR, KVR = 16, 48, 80, 112, 144, 176, 192
    FA, FB = 0, 64
    def bread(t, q): return f"ds_read_b128 {ar(FB+32*(t&1)+4*q,4)}, v{RB} offset:{512*q + 64*(7-t)}"
    def areads(t, q):
        o = 16 * (7 - t) + (0 if q & 1 else 128)
        return [f"ds_read2_b32 {ar(FA+32*(t&1)+4*q+2*h,2)}, v{RA+q//2} offset0:{o+2*h} offset1:{o+2*h+1}" for h in range(2)]
    def reads(t):
        r = []
        for q in range(8): r += [bread(t, q)] + areads(t, q)
        return r
    a(f"""v_lshlrev_b32 v218, 16, v218
    v_sub_u32 v11, s9, v15
    v_add_u32 v11, {OE + 4088 - 512*7}, v11
    v_min_u32 v208, 4, v0
    v_mul_u32_u24 v208, 2560, v208
    v_lshrrev_b32 v209, 3, v0
    v_xor_b32 v209, v209, v0
    v_lshlrev_b32 v209, 4, v209
    v_and_b32 v12, 7, v4
    v_xor_b32 v12, v12, v5
    v_lshlrev_b32 v12, 4, v12
    v_lshl_add_u32 v12, v4, 7, v12
    v_xor_b32 v243, 64, v12
    v_lshlrev_b32 v10, 5, v4
    v_lshrrev_b32 v13, 1, v5
    v_lshl_add_u32 v10, v13, 4, v10
    v_and_b32 v13, 1, v5
    v_lshl_add_u32 v10, v13, 9, v10
    s_and_b32 s14, s2, 0xf0
    v_add_u32 v210, s14, v0
    v_add_u32 v211, {210-16}, v0
    v_cmp_gt_u32 s[18:19], 16, v0
    v_mov_b32 v212, s70
    v_mov_b32 v213, s71
    v_cndmask_b32 v210, v211, v210, s[18:19]
    v_mul_u32_u24 v211, 10, v0
    v_cmp_gt_u32 s[18:19], 48, v0
    s_sub_u32 s14, s44, {480-160}
    v_add_u32 v211, s14, v211
    v_cndmask_b32 v210, v211, v210, s[18:19]
    v_lshlrev_b32 v210, 7, v210
    v_add_u32 v210, {WS['FL'] + 256*128}, v210
    s_lshl_b32 s14, s3, 4
    s_lshl_b64 s[28:29], 0xffff, s14
    s_and_b32 s29, s29, 0x1fffff
    """)
    flag2_setup(a)
    w_setup(a)
    a.stamp(5)
    a("s_and_b32 s14, s2, 0xf0")
    poll(a, 0, "s14", 16, 232)
    a.stamp(6)
    for i in range(4): a(f"global_load_dwordx4 {vr(KO+6*i,4)}, v2, s[16:17] offset:{1024*i}{SC}")
    ny = 0
    if AORD == 0: publish(a, 1, 232, vm=4)
    else:
        a("s_barrier"); xtrans(); ny = 4
    w_early(a, 0, WEL[0]); ny += 2 * WEL[0]
    for q in range(8): a(bread(0, q))
    for i in range(4):
        a(f"s_waitcnt vmcnt({max(2-i,0)+ny})")
        a(f"ds_write_b128 v3, {vr(KO+6*i,4)} offset:{OE+1024*i}")
        if i < 3: a(f"v_readlane_b32 s14, v{KO+6*i+6}, 0")
        a(f"v_mov_b32_dpp v{KO+6*i+4}, v{KO+6*i} wave_shl:1 row_mask:0xf bank_mask:0xf bound_ctrl:0")
        if i < 3: a(f"s_nop 0\nv_writelane_b32 v{KO+6*i+4}, s14, 63")
        for j in range(4): a(f"v_alignbit_b32 v{200+4*(i&1)+j}, v{KO+6*i+j+1}, v{KO+6*i+j}, 16")
        a(f"ds_write_b128 v3, {vr(200+4*(i&1),4)} offset:{OO+1024*i}")
        if i == 1: a("s_waitcnt lgkmcnt(2)")
    a("s_waitcnt lgkmcnt(0)")
    for q in range(8):
        for r in areads(0, q): a(r)
    a.stamp(7)
    P, Q, C1 = 226, 228, 230
    unk = []
    for n in range(8):
        unk += [f"v_and_b32 v{KD+4*n}, s69, v{KVR+2*n+1}", f"v_lshlrev_b32 v{KD+4*n+1}, 16, v{KVR+2*n+1}",
                f"v_and_b32 v{KD+4*n+2}, s69, v{KVR+2*n}", f"v_lshlrev_b32 v{KD+4*n+3}, 16, v{KVR+2*n}"]
    mulk = [f"v_mul_f32 v{KD+i}, v218, v{KD+i}" for i in range(32)]
    unx = []
    for n in range(4): unx += [f"v_permlane16_swap_b32 v{XR+4*n}, v{XR+4*n+2}", f"v_permlane16_swap_b32 v{XR+4*n+1}, v{XR+4*n+3}"]
    for n in range(16): unx += [f"v_lshlrev_b32 v{XF+2*n}, 16, v{XR+n}", f"v_and_b32 v{XF+2*n+1}, s69, v{XR+n}"]
    flagld = f"s_mov_b64 exec, s[28:29]\nglobal_load_dwordx2 v[212:213], v210, s[12:13]{SC}\ns_mov_b64 exec, -1"
    eld = [(f"s_lshl_b32 s17, s8, 2\ns_add_u32 s17, s17, {WS['MOD']}\nv_add_u32 v212, s17, v208", f"s_mov_b64 exec, 0x1f\nglobal_load_dword v219, v212, s[12:13]{SC}\ns_mov_b64 exec, -1")]
    pre = f"s_lshl_b32 s16, s3, 12\ns_add_u32 s17, s16, {WS['ST']}\ns_add_u32 s14, s12, s17\ns_addc_u32 s15, s13, 0\ns_mov_b32 m0, s16"
    eld += [(pre if i == 0 else "", f"global_load_lds_dwordx4 v209, s[14:15] offset:{1024*i}{SC}") for i in range(4)]
    pre = f"s_lshl_b32 s17, s8, 12\ns_add_u32 s17, s17, {WS['XTT']}\ns_add_u32 s14, s12, s17\ns_addc_u32 s15, s13, 0"
    eld += [(pre if n == 0 else "", f"global_load_dwordx4 {vr(XR+4*n,4)}, v10, s[14:15] offset:{1024*n}{SC}") for n in range(4)]
    def wpairs(k):
        l = wd_(k); return [(l[0][1], l[1][1]), (l[2][1], l[3][1])]
    strd = []
    for n in range(8): strd += [f"ds_read_b128 {vr(HG+4*n,4)}, v12 offset:{2048*n}", f"ds_read_b128 {vr(SBv+4*n,4)}, v243 offset:{2048*n}"]
    scal = ["v_add_f32 v214, 1.0, v219", "v_readlane_b32 s20, v219, 0", "v_cvt_pk_bf16_f32 v214, v214, v214", "v_readlane_b32 s22, v219, 2",
            "v_lshlrev_b32 v214, 16, v214\ns_nop 0", "v_readlane_b32 s21, v214, 1", "v_readlane_b32 s23, v214, 4", f"v_mov_b32 v{Q}, s22\ns_nop 0",
            f"v_mul_f32 v{P}, s21, v{Q}", f"v_mul_f32 v{Q}, s20, v{Q}", f"v_mov_b32 v{C1}, s23"]
    hg1 = [f"v_fma_f32 v{HG+i}, v{XF+i}, v{HG+i}, v{SBv+i}" for i in range(32)]
    hg2 = [f"v_fma_f32 v{HG+i}, v{HG+i}, v{P}, v{Q}" for i in range(32)]
    oadr = [f"s_lshl_b32 s17, s8, 12\ns_add_u32 s17, s17, {WS['X1T']}\ns_add_u32 s14, s12, s17\ns_addc_u32 s15, s13, 0\ns_add_u32 s16, s14, {WS['X1S']-WS['X1T']}\ns_addc_u32 s17, s15, 0"]
    post = []
    assert HK == 4
    for t in range(8):
        a("s_waitcnt lgkmcnt(0)")
        if "cstamp" in EXP and 2 <= t <= 7: a.stamp(t - 1)
        if AORD and t == PUBT: publish(a, 1, 232, vm=2*WEL[t])
        rd = reads(t + 1) if t < 7 else []
        va = []; vm_ = []
        if t == 0: rd = [f"ds_read_b64 {vr(KVR+2*n,2)}, v11 offset:{512*(7-n)}" for n in range(8)] + rd
        if t == 1: va = unk[:24]
        if t == 2: va = unk[24:] + mulk[:16]
        if t == 3: va = mulk[16:]
        if t < 3:
            for k in range(WEL[t], WEL[t + 1]): vm_ += wpairs(k)
        if t == HKF: vm_ = [("", "")] * HKP + [("", flagld)]
        if t == HK:
            Lok, Lsl = a.label("hk_ok"), a.label("hk_slow")
            a(f"""s_mov_b32 s74, 0x100000
            {Lsl}:
            s_waitcnt vmcnt(0)
            v_cmp_ne_u64 vcc, s[70:71], v[212:213]
            s_cbranch_vccz {Lok}
            {flagld}
            s_sub_u32 s74, s74, 1
            s_cbranch_scc0 {Lsl}
            {Lok}:
            s_barrier""")
            vm_ = [eld[0]] + eld[5:] + eld[1:5] + [("", "")] * ELP
        if t == 6:
            a("s_waitcnt vmcnt(4)")
            va = scal + unx[:36]
        if t == 7:
            a("s_waitcnt vmcnt(0)\ns_barrier")
            rd = strd
            va = unx[36:] + oadr + [""] * 10
            for n in range(H2 // 4): va += [f"s_waitcnt lgkmcnt({max(14 - 2*n - 4, 0)})\n" + hg1[4*n]] + hg1[4*n+1:4*n+4]
            post = [f"v_pk_fma_f32 {vr(HG+2*i,2)}, {vr(XF+2*i,2)}, {vr(HG+2*i,2)}, {vr(SBv+2*i,2)}" for i in range(H2 // 2, 16)]
            post += [f"v_pk_fma_f32 {vr(HG+2*i,2)}, {vr(HG+2*i,2)}, {vr(P,2)}, {vr(Q,2)} op_sel_hi:[1,0,0]" for i in range(16)]
            vm_ = [("", FLAG2)]
        mf = []
        for q in range(8):
            for n in range(q, 8):
                c = "0" if (t == 0 and q == 0) else vr(ACC + 4 * n, 4)
                mf.append(f"v_mfma_f32_16x16x32_bf16 {vr(ACC+4*n,4)}, {ar(FA+32*(t&1)+4*q,4)}, {ar(FB+32*(t&1)+4*(n-q),4)}, {c}")
        interleave(a, mf, rd, va, vm_)
    a.stamp(8)
    a("s_waitcnt lgkmcnt(0)")
    for x in post: a(x)
    a("v_add_u32 v11, s9, v15")
    a("s_nop 3")
    for n in range(0, 8, 2):
        for m in (n, n + 1):
            for h in range(2): a(f"v_pk_add_f32 {vr(ACC+4*m+2*h,2)}, {vr(ACC+4*m+2*h,2)}, {vr(KD+4*m+2*h,2)}")
        for m in (n, n + 1):
            for h in range(2): a(f"v_pk_fma_f32 {vr(ACC+4*m+2*h,2)}, {vr(HG+4*m+2*h,2)}, {vr(ACC+4*m+2*h,2)}, {vr(XF+4*m+2*h,2)}")
        for m in (n, n + 1):
            for h in range(2): a(f"v_pk_mul_f32 {vr(KD+4*m+2*h,2)}, {vr(ACC+4*m+2*h,2)}, {vr(C1,2)} op_sel_hi:[1,0]")
        o = SBv + 2 * n
        for m in (n, n + 1):
            for h in range(2): a(f"v_cvt_pk_bf16_f32 v{o+2*(m-n)+h}, v{KD+4*m+2*h}, v{KD+4*m+2*h+1}")
        if XST:
            for m in (n, n + 1): a(f"ds_write_b64 v11, {vr(o+2*(m-n),2)} offset:{512*m}")
            if n: a(f"s_waitcnt lgkmcnt(2)\nglobal_store_dwordx4 v2, {vr(XF+2*(n-2),4)}, s[16:17] offset:{512*(n-2)}{SC}")
            a(f"ds_read_b128 {vr(XF+2*n,4)}, v3 offset:{512*n}")
        else:
            a(f"""s_nop 1
            v_permlane16_swap_b32 v{o}, v{o+2}
            v_permlane16_swap_b32 v{o+1}, v{o+3}
            global_store_dwordx4 v10, {vr(o,4)}, s[16:17] offset:{512*n}{SC}""")
    for i in range(16): a(f"v_cvt_pk_bf16_f32 v{SBv+16+i}, v{ACC+2*i}, v{ACC+2*i+1}")
    if XST:
        a(f"s_waitcnt lgkmcnt(0)\nglobal_store_dwordx4 v2, {vr(XF+12,4)}, s[16:17] offset:{512*6}{SC}")
        for m in range(8): a(f"ds_write_b64 v11, {vr(SBv+16+2*m,2)} offset:{4096+512*m}")
        for n in range(4): a(f"ds_read_b128 {vr(XF+16+4*n,4)}, v3 offset:{4096+1024*n}")
        for n in range(4): a(f"s_waitcnt lgkmcnt({3-n})\nglobal_store_dwordx4 v2, {vr(XF+16+4*n,4)}, s[14:15] offset:{1024*n}{SC}")
    else:
        for n in range(0, 8, 2):
            o = SBv + 16 + 2 * n
            a(f"""v_permlane16_swap_b32 v{o}, v{o+2}
            v_permlane16_swap_b32 v{o+1}, v{o+3}
            global_store_dwordx4 v10, {vr(o,4)}, s[14:15] offset:{512*n}{SC}""")
    a.stamp(9)
    a(f"s_branch {Lg1}")

def code_prefetch(a):
    a(f"""s_getpc_b64 s[14:15]
    s_sub_u32 s14, s14, . - {KNAME}
    s_subb_u32 s15, s15, 0
    s_lshr_b32 s17, s2, 3
    s_lshl_b32 s17, s17, 2
    s_add_u32 s17, s17, s3
    s_min_u32 s17, s17, (code_end - {KNAME}) / 1024 - 1
    s_lshl_b32 s17, s17, 10
    v_lshl_add_u32 v250, v0, 4, s17
    global_load_dwordx4 v[252:255], v250, s[14:15]""")

def phase_aux(a, Lg1):
    Lst, L2, Lnd, Lnw, Lnd2, Lnw3 = (a.label(x) for x in ("aux_st", "aux2", "aux_nod", "aux_now", "aux_nod2", "aux_now3"))
    RED, MRD = STL, CSL
    LwE, Lwd, Lmod, Lgbd, Lnp1, Ltg = (a.label(x) for x in ("aux_we", "aux_wd", "aux_mod", "aux_gbd", "aux_np1", "aux_tg"))
    a(f"""s_load_dwordx2 s[4:5], s[0:1], {KA['x']}
    s_load_dwordx4 s[36:39], s[0:1], {KA['wg']}
    s_load_dwordx2 s[6:7], s[0:1], {KA['wd']}
    s_load_dwordx4 s[40:43], s[0:1], {KA['c']}
    s_sub_u32 s8, s2, 160
    s_mov_b32 s44, s8
    v_lshlrev_b32 v9, 4, v0
    s_waitcnt lgkmcnt(0)
    s_cmp_ge_u32 s8, 82
    s_cbranch_scc1 {Lwd}
    s_cmp_ge_u32 s8, 50
    s_cbranch_scc1 {Lst}
    {Lmod}:""")
    mod_slab(a, 44, 40, 42, MRD)
    a(f"""s_cmp_ge_u32 s8, 82
    s_cbranch_scc1 {Lgbd}
    s_branch {L2}
    {Lst}:
    s_sub_u32 s45, s8, 50
    s_lshl_b32 s45, s45, 6""")
    stats_issue(a, 100, 4, 45)
    tag_issue(a, 212)
    stats_compute(a, 100, 45)
    a(f"{L2}:")
    a.stamp(3)
    a("s_waitcnt vmcnt(1)")
    tag_check(a, 212)
    a(f"""s_cmp_ge_u32 s8, 56
    s_cbranch_scc1 {Lwd}""")
    TA, RAW, MV, PK, RES = 10, 128, 16, 96, 208
    a(f"""s_and_b32 s10, s8, 3
    s_mul_i32 s10, s10, 7
    s_lshr_b32 s11, s8, 3
    s_add_u32 s10, s10, s11
    s_min_u32 s10, s10, 26
    s_bfe_u32 s9, s8, 0x10002
    s_cmp_eq_u32 s9, 1
    s_cselect_b32 s36, s38, s36
    s_cselect_b32 s37, s39, s37
    v_lshrrev_b32 v2, 3, v0
    v_bfe_u32 v3, v0, 4, 2
    v_lshlrev_b32 v3, 1, v3
    v_and_b32 v4, 7, v0
    v_xor_b32 v3, v3, v4
    v_mul_u32_u24 v2, 3456, v2
    v_lshl_add_u32 v2, v3, 4, v2
    s_lshl_b32 s11, s10, 7
    s_mul_i32 s16, s3, {32*3456}
    s_add_u32 s11, s11, s16
    v_add_u32 v2, s11, v2
    s_mul_i32 s16, s3, {5*4096}
    s_cmp_eq_u32 s3, 3
    s_cselect_b32 s16, {W3L}, s16""")
    srd(a, 20, 36, 640 * 3456)
    for io in range(5):
        for u in range(4):
            if io * 4 + u == 6:
                publish(a, 1, 16, vm=6)
                a.stamp(4)
            a(f"s_add_u32 m0, s16, {4096*io + 1024*u}\ns_mov_b32 s17, {(128*io + 8*u)*3456}\nbuffer_load_dwordx4 v2, s[20:23], s17 offen{WPOL} lds")
    a(f"""v_lshrrev_b32 v2, 2, v0
    v_bfe_u32 v3, v0, 3, 2
    v_and_b32 v4, 3, v0
    v_lshlrev_b32 v2, 7, v2
    v_lshl_add_u32 v2, v4, 3, v2
    v_add_u32 v2, s16, v2""")
    for T_ in range(4): a(f"v_xor_b32 v4, {T_}, v3\nv_lshl_add_u32 v{TA+T_}, v4, 5, v2")
    a(f"""v_lshrrev_b32 v14, 4, v0
    v_lshlrev_b32 v14, 4, v14
    s_lshl_b32 s16, s3, 7
    s_add_u32 s16, s16, 61440
    v_add_u32 v14, s16, v14
    s_mul_i32 s16, s3, 1280
    s_add_u32 s17, s16, {WS['MOD'] + 3*2560}
    v_add_u32 v15, s17, v9
    s_add_u32 s18, s16, 61440""")
    flag2_setup(a, zero=True)
    w_setup(a)
    poll(a, 1, 190, 20, 16)
    a.stamp(6)
    a(f"""s_mov_b32 m0, s18
    s_nop 0
    global_load_lds_dwordx4 v15, s[12:13]{SC}
    s_mov_b64 exec, 0xffff
    global_load_lds_dwordx4 v15, s[12:13] offset:1024{SC}
    s_mov_b64 exec, -1""")
    w_early(a, 0, 4)
    for io in range(5):
        for T_ in range(4):
            for hf in range(2): a(f"ds_read_b64_tr_b16 {vr(RAW+16*io+4*T_+2*hf,2)}, v{TA+T_} offset:{4096*io+2048*hf}")
        a("s_waitcnt lgkmcnt(4)")
    a("s_waitcnt vmcnt(8) lgkmcnt(0)\ns_barrier")
    for io in range(5):
        for hf in range(2):
            a(f"ds_read_b128 {vr(MV+16*io+4*hf,4)}, v14 offset:{512*io+64*hf}")
            a(f"ds_read_b128 {vr(MV+16*io+8+4*hf,4)}, v14 offset:{2560+512*io+64*hf}")
        if io == 2: a("s_waitcnt lgkmcnt(4)")
    w_early(a, 4, NWE)
    a("s_waitcnt lgkmcnt(0)")
    for io in range(5):
        b = MV + 16 * io; p = PK + 8 * (io & 1)
        for i in range(4): a(f"v_cvt_pk_bf16_f32 v{p+i}, v{b+2*i}, v{b+2*i+1}")
        for i in range(8): a(f"v_add_f32 v{b+8+i}, 1.0, v{b+8+i}")
        for i in range(4): a(f"v_cvt_pk_bf16_f32 v{p+4+i}, v{b+8+2*i}, v{b+8+2*i+1}")
        for T_ in range(4): a(f"v_mfma_f32_16x16x32_bf16 {vr(112+4*T_,4)}, {vr(RAW+16*io+4*T_,4)}, {vr(p,4)}, {vr(112+4*T_,4) if io else '0'}")
        for T_ in range(4): a(f"v_mfma_f32_16x16x32_bf16 {vr(RES+4*T_,4)}, {vr(RAW+16*io+4*T_,4)}, {vr(p+4,4)}, {vr(RES+4*T_,4) if io else '0'}")
    a(f"""s_lshl_b32 s16, s3, 9
    s_add_u32 s16, s16, {RED}
    v_add_u32 v2, s16, v0
    s_mov_b32 exec_lo, 0x10001
    s_mov_b32 exec_hi, 0x10001
    s_nop 2""")
    for T_ in range(4): a(f"ds_write_b128 v2, {vr(112+4*T_,4)} offset:{256+64*T_}")
    for T_ in range(4): a(f"ds_write_b128 v2, {vr(RES+4*T_,4)} offset:{64*T_}")
    a(f"""s_mov_b64 exec, -1
    s_waitcnt lgkmcnt(0)
    s_barrier
    s_cmp_ge_u32 s3, 2
    s_cbranch_scc1 {LwE}
    s_lshl_b32 s16, s3, 8
    s_add_u32 s16, s16, {RED}
    v_lshlrev_b32 v3, 2, v0
    v_add_u32 v2, s16, v3
    ds_read2st64_b32 v[4:5], v2 offset0:0 offset1:2
    ds_read2st64_b32 v[16:17], v2 offset0:4 offset1:6
    s_lshl_b32 s16, s9, 1
    s_add_u32 s16, s16, s3
    s_mul_i32 s16, s16, {1728*4}
    s_lshl_b32 s17, s10, 8
    s_add_u32 s16, s16, s17
    s_add_u32 s16, s16, {WS['CSB']}""")
    add64(a, 14, 12, "s16")
    a(f"""s_waitcnt lgkmcnt(0)
    v_add_f32 v4, v4, v5
    v_add_f32 v16, v16, v17
    v_add_f32 v4, v4, v16
    global_store_dword v3, v4, s[14:15]{SC}
    s_waitcnt vmcnt(0)
    {LwE}:""")
    a.stamp(9)
    a(f"s_branch {Lg1}")
    a(f"""{Lwd}:
    s_lshl_b32 s46, s8, 2
    s_add_u32 s46, s46, s3
    s_sub_u32 s17, s46, {4*82}
    s_sub_u32 s46, s46, {4*56-165}
    s_cmp_eq_u32 s17, 55
    s_cselect_b32 s17, 269, s17
    s_cmp_ge_u32 s8, 82
    s_cselect_b32 s46, s17, s46
    v_lshrrev_b32 v2, 4, v0
    v_and_b32 v3, 15, v0
    v_lshlrev_b32 v4, 1, v2
    v_xor_b32 v4, v4, v3
    v_mul_u32_u24 v2, 1280, v2
    v_lshl_add_u32 v5, v4, 4, v2
    v_xor_b32 v4, 8, v4
    v_lshl_add_u32 v6, v4, 4, v2
    v_add_u32 v6, {4*1280}, v6
    s_mul_i32 s16, s3, {3*8192}
    s_mul_i32 s17, s46, 52429
    s_lshr_b32 s17, s17, 18
    s_mul_i32 s11, s17, 5
    s_sub_u32 s11, s46, s11
    s_mul_i32 s17, s17, {32*1280}
    s_lshl_b32 s11, s11, 8
    s_add_u32 s17, s17, s11
    v_add_u32 v5, s17, v5
    v_add_u32 v6, s17, v6""")
    srd(a, 20, 6, 1728 * 1280)
    add64(a, 14, 12, WS['WD']); srd(a, 24, 14, 54 * 40 * 1024)
    for un in range(3):
        for u in range(8):
            if un * 8 + u == 6:
                a(f"s_cmp_ge_u32 s8, 82\ns_cbranch_scc1 {Lnp1}")
                publish(a, 1, 16, vm=6)
                a.stamp(4)
                a(f"{Lnp1}:")
            a(f"s_add_u32 m0, s16, {8192*un + 1024*u}\ns_mov_b32 s17, {(11*32*un + 8*(u>>1))*1280}\nbuffer_load_dwordx4 v{5+(u&1)}, s[20:23], s17 offen{NT} lds")
        if un == 0: a("s_cmp_ge_u32 s8, 82\ns_cselect_b32 s22, s22, 0")
    tag_issue(a, 212)
    xtile_tr_addrs(a, 48, 16)
    a("s_lshl_b32 s17, s46, 13\nv_add_u32 v7, s17, v9")
    for un in range(3):
        a("s_waitcnt vmcnt(17)")
        for q in range(3):
            if q < 2:
                for dt in range(4):
                    for hf in range(2): a(f"ds_read_b64_tr_b16 {vr(100+32*un+16*q+4*dt+2*hf,2)}, v{48+4*q+dt} offset:{8192*un+4096*hf}")
            if q:
                a(f"s_waitcnt lgkmcnt({8 if q < 2 else 0})\ns_mov_b32 s17, {55*8192*un + 4096*(q-1)}")
                for dt in range(4): a(f"buffer_store_dwordx4 {vr(100+32*un+16*(q-1)+4*dt,4)}, v7, s[24:27], s17 offen offset:{1024*dt}{SC}")
        if un == 0: a(f"s_cmp_lt_u32 s8, 82\ns_cbranch_scc1 {Ltg}")
    a(f"{Ltg}:\ns_waitcnt vmcnt(8)")
    tag_check(a, 212)
    publish(a, 0, 16)
    a.stamp(6)
    a(f"""s_cmp_lt_u32 s8, 82
    s_cbranch_scc1 {Lnw3}
    s_sub_u32 s44, s8, 32
    s_cmp_lt_u32 s8, 92
    s_cbranch_scc1 {Lmod}
    s_cmp_lg_u32 s8, 95
    s_cbranch_scc1 {Lnw3}
    s_cmp_lg_u32 s3, 0
    s_cbranch_scc1 {Lnw3}""")
    poll(a, 0, 216, 40, 20)
    a(f"v_mov_b32 v16, s70\nv_mov_b32 v17, s71\nv_mov_b32 v18, s70\nv_mov_b32 v19, s71")
    add64(a, 14, 12, WS['FL'] + 5 * 256 * 128 + 4096)
    for i in range(8): a(f"global_store_dwordx4 v9, v[16:19], s[14:15] offset:{1024*i-4096}{SC}")
    a(f"s_branch {Lnw3}\n{Lgbd}:")
    publish(a, 1, 16)
    a(f"{Lnw3}:")
    flag2_setup(a, zero=True)
    a.stamp(9)
    a("s_branch g1_idle")

def w_setup(a):
    a(f"""s_load_dwordx4 s[84:87], s[0:1], {KA['wg']}
    s_lshr_b32 s6, s2, 3
    s_and_b32 s5, s2, 3
    s_mul_i32 s5, s5, 27
    s_add_u32 s5, s5, s6
    s_lshr_b32 s6, s5, 2
    s_and_b32 s5, s5, 3
    s_and_b32 s89, s2, 4
    s_add_u32 s5, s5, s89
    v_lshrrev_b32 v244, 3, v0
    v_bfe_u32 v245, v0, 4, 2
    v_lshlrev_b32 v245, 1, v245
    v_and_b32 v246, 7, v0
    v_xor_b32 v245, v245, v246
    v_mul_u32_u24 v244, 3456, v244
    v_lshl_add_u32 v7, v245, 4, v244
    s_mul_i32 s88, s3, {8*3456}
    s_lshl_b32 s89, s6, 7
    s_add_u32 s88, s88, s89
    v_add_u32 v7, s88, v7
    s_lshl_b32 s88, s3, 10
    s_add_u32 s88, s88, {WRING}
    s_waitcnt lgkmcnt(0)""")
    srd(a, 80, 84, 640 * 3456); srd(a, 84, 86, 640 * 3456)
def wd_(k):
    out = []
    for m in range(2):
        pre = f"s_add_u32 m0, s88, {(k&7)*8192 + m*4096}" + (f"\ns_mov_b32 s89, {k*32*3456}" if not out else "")
        out += [(None, pre), (("W", k), f"buffer_load_dwordx4 v7, s[{80+4*m}:{83+4*m}], s89 offen lds")]
    return out
def w_early(a, lo, hi):
    for k in range(lo, hi):
        for t, x in wd_(k): a(x + ("" if t else "\ns_nop 0"))

def g2_setup(a):
    a(f"""s_lshr_b32 s4, s2, 3
    s_bfe_u32 s44, s2, 0x20001
    s_lshl_b32 s44, s44, 3
    s_lshr_b32 s45, s4, 2
    s_add_u32 s44, s44, s45
    s_and_b32 s45, s2, 1
    s_lshl_b32 s45, s45, 2
    s_and_b32 s9, s4, 3
    s_add_u32 s45, s45, s9
    s_mul_i32 s9, s45, 5120
    s_add_u32 s10, s9, {WS['WD']}
    v_lshlrev_b32 v9, 4, v0
    v_add_u32 v8, 4096, v9""")
    add64(a, 14, 12, "s10"); srd(a, 40, 14, 0)
    a(f"s_sub_u32 s42, {54*40960}, s9\ns_mul_i32 s46, s3, 40960")

SPREAD = int(os.environ.get("SPREAD", "1")); RDEND = int(os.environ.get("RDEND", "28"))
G2POS = int(os.environ.get("G2POS", "0"))
LEVEL = int(os.environ.get("LEVEL", "7"))
XLATE = int(os.environ.get("XLATE", "0"))
OUTT = int(os.environ.get("OUTT", "1"))
CPF = int(os.environ.get("CPF", "12"))
X1LATE = int(os.environ.get("X1LATE", "4"))
WPOL = os.environ.get("WPOL", "")
NWA = int(os.environ.get("NWA", "8"))
NWD0 = int(os.environ.get("NWD0", "26"))
NWD1 = int(os.environ.get("NWD1", "62"))
NW0 = int(os.environ.get("NW0", "8"))
WD_FIRST = int(os.environ.get("WD_FIRST", "12")); WD_LAST = int(os.environ.get("WD_LAST", "20"))
NWD2 = int(os.environ.get("NWD2", "6"))
HK3F = int(os.environ.get("HK3F", "14")); HK3 = int(os.environ.get("HK3", "16"))
def wd_reg(i):
    return ar(4 * i, 4) if i < 64 else vr(232 + 4 * (i - 64), 4)
def wd_load(i):
    st, d = divmod(i, 5)
    return f"s_add_u32 s47, s46, {st*4*40960}\nbuffer_load_dwordx4 {wd_reg(i)}, v{9 if d < 4 else 8}, s[40:43], s47 offen offset:{1024*(d&3)}{SC}"

class VM:
    def __init__(self): self.q = []
    def add(self, tag): self.q.append(tag)
    def wait(self, tags):
        idx = [i for i, t in enumerate(self.q) if t in tags]
        if not idx: return None
        n = len(self.q) - 1 - max(idx)
        self.q = self.q[max(idx) + 1:]
        assert n <= 63
        return f"s_waitcnt vmcnt({n})"

def phase_idle(a, Lg2):
    Lpub = a.label("idle_pub")
    g2_setup(a)
    IW = int(os.environ.get("IW", "62"))
    flag2_check(a)
    def wl(lo, hi):
        for i in range(lo, hi):
            a(wd_load(i))
            if i - lo == 50: a("s_waitcnt vmcnt(30)")
    wl(0, min(IW, NWD1))
    Lrest = a.label("idle_rest")
    PF0, PF1, PF2 = (int(x) for x in os.environ.get("PF", "0,0,0").split(","))
    def pf(lo, hi):
        a(f"""s_lshr_b32 s9, s2, 3
        s_sub_u32 s9, s9, 27
        s_lshl_b32 s9, s9, 2
        s_add_u32 s9, s9, s3
        s_lshl_b32 s9, s9, 12
        s_and_b32 s10, s2, 4
        s_lshl_b32 s10, s10, 9
        s_add_u32 s9, s9, s10
        s_add_u32 s9, s9, {WS['X1S'] + lo*20*4096}
        s_lshl_b32 m0, s3, 11""")
        add64(a, 14, 12, "s9")
        for i in range(lo, hi):
            a(f"global_load_lds_dwordx4 v9, s[14:15]{SC}\nglobal_load_lds_dwordx4 v9, s[14:15] offset:1024{SC}")
            add64(a, 14, 14, 20 * 4096)
    if PF1 > PF0:
        a("s_mul_i32 s9, s3, 40")
        poll(a, 2, "s9", 40, 52)
        a("s_barrier")
        pf(PF0, PF1)
    a(f"""s_sub_u32 s8, s2, 216
    s_mul_i32 s9, s3, 40
    s_add_u32 s9, s9, 1024
    v_add_u32 v55, s9, v0
    v_cmp_gt_u32 vcc, 40, v0
    v_add_u32 v56, {256+242-40}, v0
    s_nop 0
    v_cndmask_b32 v55, v56, v55, vcc""")
    poll(a, 0, None, 50, 52, idxreg=55)
    R, ACC, U = 100, 16, 32
    a(f"""s_barrier
    s_cmp_ge_u32 s8, 32
    s_cbranch_scc1 {Lrest}
    v_lshrrev_b32 v2, 3, v0
    v_lshlrev_b32 v2, 12, v2
    v_and_b32 v3, 7, v0
    v_lshl_add_u32 v2, v3, 4, v2
    s_lshl_b32 s9, s3, 15
    s_lshl_b32 s10, s8, 7
    s_add_u32 s9, s9, s10
    s_add_u32 s9, s9, {WS['X1T']}""")
    add64(a, 14, 12, "s9")
    for i in range(20):
        a(f"global_load_dwordx4 {vr(R+4*i,4)}, v2, s[14:15]{SC}")
        if i < 19: add64(a, 14, 14, 32 * 4096)
    for i in range(20):
        a(f"s_waitcnt vmcnt({19-i})")
        u = (U + 8 * (i & 1)) if i else ACC
        for j in range(4): a(f"v_lshlrev_b32 v{u+2*j}, 16, v{R+4*i+j}\nv_and_b32 v{u+2*j+1}, s69, v{R+4*i+j}")
        for j in range(4):
            if i == 0: a(f"v_pk_mul_f32 {vr(ACC+8+2*j,2)}, {vr(u+2*j,2)}, {vr(u+2*j,2)}")
            else:
                a(f"v_pk_add_f32 {vr(ACC+2*j,2)}, {vr(ACC+2*j,2)}, {vr(u+2*j,2)}")
                a(f"v_pk_fma_f32 {vr(ACC+8+2*j,2)}, {vr(u+2*j,2)}, {vr(u+2*j,2)}, {vr(ACC+8+2*j,2)}")
    a("s_nop 1")
    for b in (ACC, ACC + 8):
        for j in range(4): a(f"v_permlane32_swap_b32 v{b+j}, v{b+4+j}")
    for b in (ACC, ACC + 8):
        for j in range(4): a(f"v_add_f32 v{b+j}, v{b+j}, v{b+4+j}")
    a("s_nop 1")
    for b in (ACC, ACC + 8):
        for j in range(2): a(f"v_permlane16_swap_b32 v{b+j}, v{b+2+j}")
    for b in (ACC, ACC + 8):
        for j in range(2): a(f"v_add_f32 v{b+j}, v{b+j}, v{b+2+j}")
    a("s_nop 1")
    for b in (ACC, ACC + 8):
        for j in range(2): a(f"v_add_f32_dpp v{b+j}, v{b+j}, v{b+j} row_ror:8 row_mask:0xf bank_mask:0xf")
    a(f"""s_lshl_b32 s14, s3, 9
    v_lshrrev_b32 v4, 4, v0
    v_lshlrev_b32 v3, 5, v3
    v_lshl_add_u32 v3, v4, 3, v3
    v_add_u32 v3, s14, v3
    ds_write_b64 v3, {vr(ACC,2)}
    ds_write_b64 v3, {vr(ACC+8,2)} offset:256
    s_waitcnt lgkmcnt(0)
    s_barrier
    s_cmp_lg_u32 s3, 0
    s_cbranch_scc1 {Lpub}
    v_lshlrev_b32 v2, 2, v0""")
    for w in range(4): a(f"ds_read2st64_b32 {vr(16+2*w,2)}, v2 offset0:{2*w} offset1:{2*w+1}")
    a(f"""s_lshl_b32 s14, s8, 9
    s_add_u32 s14, s14, {WS['ST2']}
    v_lshl_add_u32 v2, v0, 3, s14
    s_waitcnt lgkmcnt(0)
    v_pk_add_f32 v[16:17], v[16:17], v[18:19]
    v_pk_add_f32 v[20:21], v[20:21], v[22:23]
    v_pk_add_f32 v[16:17], v[16:17], v[20:21]
    v_mul_f32 v16, {INV640}, v16
    v_mul_f32 v17, {INV640}, v17
    v_fma_f32 v17, -v16, v16, v17
    v_max_f32 v17, 0, v17
    v_add_f32 v17, 0x3727c5ac, v17
    v_rsq_f32 v18, v17
    s_nop 0
    v_mul_f32 v19, -v16, v18
    global_store_dwordx2 v2, v[18:19], s[12:13]{SC}
    {Lpub}:""")
    publish(a, 4, 52)
    a(f"{Lrest}:")
    wl(min(IW, NWD1), NWD1)
    a(f"s_waitcnt vmcnt(0)\ns_branch {Lg2}")

def phase_g1(a):
    Lidle, Lg2 = "g1_idle", a.label("g2")
    g2_setup(a)
    a(f"""s_and_b32 s8, s3, 1
    s_lshl_b32 s7, s6, 1
    s_add_u32 s7, s7, s8
    s_lshr_b32 s4, s3, 1""")
    a(f"""v_lshrrev_b32 v2, 4, v0
    v_and_b32 v3, 15, v0
    v_lshlrev_b32 v4, 1, v2
    v_xor_b32 v4, v4, v3
    v_lshlrev_b32 v2, 12, v2
    s_lshl_b32 s9, s3, 15
    s_lshl_b32 s10, s5, 9
    s_add_u32 s9, s9, s10
    v_add_u32 v2, s9, v2
    v_lshl_add_u32 v5, v4, 4, v2
    v_xor_b32 v4, 8, v4
    v_lshl_add_u32 v6, v4, 4, v2
    v_add_u32 v6, {4*4096}, v6
    s_lshl_b32 s26, s3, 11
    s_lshl_b32 s9, s4, 13""")
    ACC, XF, WF, TA, TW = 128, 64, 32, 10, 18
    xtile_tr_addrs(a, TA, 9)
    a(f"""v_lshrrev_b32 v2, 2, v0
    v_bfe_u32 v3, v0, 3, 2
    v_and_b32 v4, 3, v0
    v_lshlrev_b32 v2, 7, v2
    v_lshl_add_u32 v2, v4, 3, v2
    v_add_u32 v2, {WRING}, v2
    s_lshl_b32 s9, s8, 1
    v_xor_b32 v3, s9, v3
    v_lshl_add_u32 v{TW}, v3, 5, v2
    v_xor_b32 v3, 1, v3
    v_lshl_add_u32 v{TW+1}, v3, 5, v2""")
    add64(a, 14, 12, WS['X1S']); srd(a, 16, 14, 640 * 4096)
    vm = VM()
    def emit(items, nop=False):
        for t, x in items:
            a(x)
            if t: vm.add(t)
            elif nop: a("s_nop 0")
    def xd(k):
        out = []
        for rh in range(2):
            for u in range(2):
                pre = f"s_add_u32 m0, s26, {(k&3)*16384 + rh*(8192-256) + u*1024}" + (f"\ns_mov_b32 s25, {k*0x20000}" if not out else "")
                out += [(None, pre), (("X", k), f"buffer_load_dwordx4 v{5+u}, s[16:19], s25 offen offset:{256*rh}{SC} lds")]
        return out
    def trreads(k):
        x = [(None, f"ds_read_b64_tr_b16 {vr(XF+32*(k&1)+4*m+2*hf,2)}, v{TA+m} offset:{16384*(k&3)+4096*hf}") for m in range(8) for hf in range(2)]
        w = [(None, f"ds_read_b64_tr_b16 {vr(WF+16*(k&1)+4*f+2*hf,2)}, v{TW+(f>>1)} offset:{8192*(k&7)+4096*(f&1)+2048*hf}") for f in range(4) for hf in range(2)]
        return w + x
    for j in range(NWE, NWA): emit(wd_(j), True)
    publish(a, 2, 52, vm=2*(NWA-NWE) + X1LATE)
    a.stamp(10)
    for j in range(NWA, NW0): emit(wd_(j), True)
    flag2_check(a)
    for i in range(NWD0): a(wd_load(i))
    a(f"""s_lshl_b32 s9, s5, 2
    s_lshl_b32 s10, s4, 1
    s_add_u32 s9, s9, s10
    v_add_u32 v20, s9, v0
    s_mul_i32 s10, s6, 37
    s_lshr_b32 s10, s10, 8
    s_mul_i32 s10, s10, 55
    s_lshl_b32 s11, s6, 3
    s_sub_u32 s10, s11, s10
    s_add_u32 s10, s10, {(512 + 160 - 8 - 1024 - 216) & 0xffffffff}
    v_lshl_add_u32 v21, v0, 2, s10
    v_cmp_gt_u32 vcc, 2, v0
    s_lshl_b32 s9, s9, 9
    s_add_u32 s9, s9, {WS['ST2']}
    v_cndmask_b32 v20, v21, v20, vcc
    v_lshlrev_b32 v20, 7, v20
    v_add_u32 v20, {WS['FL'] + (4*256+216)*128}, v20
    v_add_u32 v21, s9, v9
    v_bfe_u32 v22, v0, 3, 2
    v_mul_u32_u24 v22, {1728*4}, v22
    v_and_b32 v23, 7, v0
    v_lshl_add_u32 v22, v23, 4, v22
    s_lshl_b32 s9, s7, 7
    s_add_u32 s9, s9, {WS['CSB']}
    v_add_u32 v22, s9, v22
    v_mov_b32 v24, s70
    v_mov_b32 v25, s71
    s_lshl_b32 s30, s3, 10
    s_add_u32 s30, s30, {STL}
    s_lshl_b32 s31, s3, 9
    s_add_u32 s31, s31, {CSL}
    v_and_b32 v26, 15, v0
    v_lshl_add_u32 v26, v26, 3, s30
    v_lshrrev_b32 v27, 4, v0
    v_lshl_add_u32 v27, v27, 4, s31
    s_mul_i32 s9, s3, 40""")
    a(f"""s_lshr_b32 s10, s2, 3
    s_and_b32 s10, s10, 1
    s_lshl_b32 s10, s10, 2
    s_add_u32 s10, s10, s3
    s_lshl_b32 s10, s10, 12
    v_lshl_add_u32 v30, v0, 6, s10
    v_min_u32 v30, code_end - g1_tail - 4, v30""")
    a.stamp(11)
    if "lazy" in EXP: a("s_mul_i32 s9, s3, 10"); poll(a, 2, "s9", 10, 52)
    elif "lazy2" in EXP: a("s_mul_i32 s9, s3, 20"); poll(a, 2, "s9", 20, 52)
    else: poll(a, 2, "s9", 40, 52)
    vm.q = []
    a("s_barrier")
    a.stamp(12)
    XE = int(os.environ.get("XE", "2"))
    for j in range(XE): emit(xd(j), True)
    emit(trreads(0)[:8])
    publish(a, 4, 28, nosync=True)
    a(vm.wait([("X", 0)]) + "\ns_barrier")
    emit(trreads(0)[8:])
    for j in range(XE, 4): emit(xd(j), True)
    a.stamp(13)
    wdi = NWD0; wnext = NW0
    fl = f"s_mov_b64 exec, 0xf\nglobal_load_dwordx2 v[24:25], v20, s[12:13]{SC}\ns_mov_b64 exec, -1"
    STV, CB = 32, 64
    for k in range(20):
        w = vm.wait([("W", k + 1), ("X", k + 1)] + (["S"] if k == 19 else []) + (["G"] if k == HK3 else []))
        a("s_waitcnt lgkmcnt(0)")
        if w: a(w)
        if k < 19: a("s_barrier")
        if "g1stamp" in EXP and k % 2 == 0 and k: a.stamp(k // 2)
        mem = []
        if k == HK3:
            Lok, Lsl = a.label("h3_ok"), a.label("h3_slow")
            a(f"""s_mov_b32 s74, 0x100000
            {Lsl}:
            v_cmp_ne_u64 vcc, s[70:71], v[24:25]
            s_cbranch_vccz {Lok}
            {fl}
            s_waitcnt vmcnt(0)
            s_sub_u32 s74, s74, 1
            s_cbranch_scc0 {Lsl}
            {Lok}:""")
            mem += [(None, "s_mov_b32 m0, s30"), ("S", f"global_load_lds_dwordx4 v21, s[12:13]{SC}"),
                    (None, "s_mov_b32 m0, s31"), ("S", f"s_mov_b32 exec_hi, 0\nglobal_load_lds_dwordx4 v22, s[12:13]{SC}\ns_mov_b64 exec, -1")]
        if k == HK3F: mem.append(("G", fl))
        if k == CPF:
            mem += [(None, f"s_getpc_b64 s[14:15]\ns_add_u32 s14, s14, g1_tail - .\ns_addc_u32 s15, s15, 0"), ("P", "global_load_dword v31, v30, s[14:15]")]
        if k == 18: a("g1_tail:")
        if k < 19: rd = trreads(k + 1)
        else:
            rd = [(None, f"ds_read_b64 {vr(STV+2*m,2)}, v26 offset:{128*m}") for m in range(8)]
            rd += [(None, f"ds_read_b128 {vr(CB+16*h+4*mt_,4)}, v27 offset:{128*mt_+64*h}") for h in range(2) for mt_ in range(4)]
        if k + 4 < 20: mem += xd(k + 4)
        if wnext < 20: mem += wd_(wnext); wnext += 1
        cnt = lambda: sum(1 for e in mem if e[0] is not None)
        lim = LEVEL if k < 19 else 99
        while wdi < NWD1 and cnt() < lim and k >= WD_FIRST: mem.append((("D", wdi), wd_load(wdi))); wdi += 1
        slots = [[] for _ in range(32)]
        if SPREAD:
            groups = []; pend = []
            for e in mem:
                if e[0] is None: pend.append(e)
                else: groups.append((pend, e)); pend = []
            n = len(groups)
            pos = [1 + (i * 31) // n for i in range(n)] if n else []
            for (pre, e), p in zip(groups, pos):
                slots[p - 1] += pre; slots[p].insert(0, e)
            free = [i for i in range(RDEND) if i not in pos]
            order = free + [p for p in pos if p < RDEND] + free
            for e, p in zip(rd, sorted(order[:len(rd)])): slots[p].insert(1 if p in pos else 0, e)
        else:
            for i, e in enumerate(rd): slots[i].append(e)
            for i, e in enumerate(mem): slots[(32 - len(mem) + i) if len(mem) <= 20 else None].append(e)
        j = 0
        MO = os.environ.get("MORD", "m")
        if MO == "m": order_ = [(m, f) for m in range(8) for f in range(4)]
        elif MO == "ms": order_ = [(m, f if m % 2 == 0 else 3 - f) for m in range(8) for f in range(4)]
        elif MO == "f": order_ = [(m, f) for f in range(4) for m in range(8)]
        else: order_ = [(m if f % 2 == 0 else 7 - m, f) for f in range(4) for m in range(8)]
        for m, f in order_:
            if True:
                d = vr(ACC + 32 * f + 4 * m, 4)
                if "g1nomfma" in EXP: a("s_nop 0")
                else: a(f"v_mfma_f32_16x16x32_bf16 {d}, {vr(WF+16*(k&1)+4*f,4)}, {vr(XF+32*(k&1)+4*m,4)}, {d if k else '0'}")
                if "g1noload" in EXP: slots[j] = [e for e in slots[j] if "buffer_load" not in e[1]]
                if "g1notr" in EXP: slots[j] = [e for e in slots[j] if "_tr_" not in e[1]]
                emit(slots[j]); j += 1
    assert wdi == NWD1
    a.stamp(14)
    a(f"""s_lshl_b32 s9, s5, 1
    s_add_u32 s9, s9, s4
    s_mul_i32 s9, s9, {2*54}
    s_add_u32 s9, s9, s7
    s_lshl_b32 s9, s9, 12
    s_add_u32 s9, s9, {WS['HH']}""")
    add64(a, 14, 12, "s9"); add64(a, 28, 14, 54 * 4096)
    a("s_waitcnt lgkmcnt(0)")
    for m in range(8):
        st_ = vr(STV + 2 * m, 2); o = 96 + 4 * (m & 3)
        for h in range(2):
            G, U = ACC + 64 * h + 4 * m, ACC + 64 * h + 32 + 4 * m
            c = CB + 16 * h; t = 112 + 8 * h
            for p in range(2):
                a(f"v_pk_fma_f32 {vr(t+2*p,2)}, {vr(c+2*p,2)}, {st_}, {vr(c+4+2*p,2)} op_sel:[0,1,0] op_sel_hi:[1,1,1]")
                a(f"v_pk_fma_f32 {vr(t+4+2*p,2)}, {vr(c+8+2*p,2)}, {st_}, {vr(c+12+2*p,2)} op_sel:[0,1,0] op_sel_hi:[1,1,1]")
            for p in range(2):
                a(f"v_pk_fma_f32 {vr(G+2*p,2)}, {vr(G+2*p,2)}, {st_}, {vr(t+2*p,2)} op_sel_hi:[1,0,1]")
                a(f"v_pk_fma_f32 {vr(U+2*p,2)}, {vr(U+2*p,2)}, {st_}, {vr(t+4+2*p,2)} op_sel_hi:[1,0,1]")
            for r in range(4): a(f"v_max_f32 v{G+r}, 0, v{G+r}")
            for p in range(2): a(f"v_pk_mul_f32 {vr(G+2*p,2)}, {vr(G+2*p,2)}, {vr(U+2*p,2)}")
            for p in range(2): a(f"v_cvt_pk_bf16_f32 v{o+2*h+p}, v{G+2*p}, v{G+2*p+1}")
        sb_ = 14 if m < 4 else 28
        a(f"global_store_dwordx4 v9, {vr(o,4)}, s[{sb_}:{sb_+1}] offset:{1024*(m&3)}{SC}")
    a(f"s_branch {Lg2}\n{Lidle}:")
    phase_idle(a, Lg2)
    a(f"{Lg2}:")

def phase_g2(a):
    a.stamp(15)
    n1 = NWD1
    for i in range(n1, n1 + NWD2): a(wd_load(i))
    a(f"s_load_dwordx2 s[30:31], s[0:1], {KA['out']}")
    for sg in range(4):
        a(f"""s_add_u32 s7, s3, {sg}
        s_and_b32 s7, s7, 3
        s_lshl_b32 s8, s7, 10
        v_add_u32 v{10+sg}, s8, v9""")
        if sg: a(f"s_mul_i32 s8, s7, {15*1024}\ns_add_u32 s8, s8, {(sg-1)*5*1024}\nv_add_u32 v{13+sg}, s8, v9")
    a(f"s_mul_i32 s8, s44, {54*4096}\ns_add_u32 s8, s8, {WS['HH']}")
    add64(a, 14, 12, "s8"); srd(a, 16, 14, 54 * 4096)
    ACC, XR, GB, SEL, HB = 152, 20, 40, 60, 64
    NB = 5
    a(f"""v_and_b32 v2, 15, v0
    v_lshrrev_b32 v3, 4, v0
    v_lshlrev_b32 v4, 12, v2
    v_lshl_add_u32 v4, v3, 4, v4
    v_lshlrev_b32 v18, 4, v3
    s_mul_i32 s8, s45, {80*4096}
    s_lshl_b32 s9, s44, 7
    s_add_u32 s8, s8, s9
    s_lshr_b32 s9, s3, 1
    s_lshl_b32 s9, s9, 6
    s_add_u32 s8, s8, s9
    s_add_u32 s8, s8, {WS['X1T']}
    s_add_u32 s14, s12, s8
    s_addc_u32 s15, s13, 0
    s_mul_i32 s8, s45, 320
    s_add_u32 s8, s8, {WS['MOD'] + 5*2560}
    s_add_u32 s26, s12, s8
    s_addc_u32 s27, s13, 0
    s_and_b32 s8, s3, 1
    s_lshl_b32 s8, s8, 4
    v_lshlrev_b32 v5, 3, v3
    v_sub_u32 v5, v2, v5
    v_add_u32 v5, s8, v5
    v_mov_b32 v6, 0x3f80
    v_mov_b32 v7, 0x3f800000""")
    for p in range(4):
        a(f"""v_cmp_eq_u32 vcc, {2*p}, v5
        v_cmp_eq_u32 s[28:29], {2*p+1}, v5
        s_nop 1
        v_cndmask_b32 v{SEL+p}, 0, v6, vcc
        v_cndmask_b32 v{SEL+p}, v{SEL+p}, v7, s[28:29]""")
    a(f"""s_bfe_u32 s8, s44, 0x20002
    v_lshl_add_u32 v147, v0, 2, s8
    v_mul_u32_u24 v146, 2428, v147
    v_lshrrev_b32 v146, 16, v146
    v_lshlrev_b32 v147, 3, v147
    v_mul_u32_u24 v145, {8*27-1}, v146
    v_sub_u32 v147, v147, v145
    s_lshr_b32 s8, s44, 4
    s_lshl_b32 s8, s8, 2
    v_add_u32 v147, s8, v147
    s_lshl_b32 s24, s3, 12""")
    publish(a, 3, 148, vm=NWD2)
    a.stamp(16)
    for i in range(n1 + NWD2, 70): a(wd_load(i))
    a(f"""v_lshrrev_b32 v4, 2, v0
    v_lshlrev_b32 v4, 12, v4
    v_bfe_u32 v19, v0, 4, 2
    v_xor_b32 v19, v19, v0
    v_and_b32 v19, 3, v19
    v_lshl_add_u32 v4, v19, 4, v4
    s_mul_i32 s9, s3, 5120
    s_add_u32 s9, s9, {W3L}
    v_bfe_u32 v19, v0, 2, 2
    v_xor_b32 v19, v19, v3
    v_lshl_add_u32 v19, v2, 2, v19
    v_lshl_add_u32 v19, v19, 4, s9""")
    late = [(99, f"s_add_u32 m0, s9, {1024*d}\ns_nop 0\nglobal_load_lds_dwordx4 v4, s[14:15]{SC}\ns_add_u32 s14, s14, 0x10000\ns_addc_u32 s15, s15, 0") for d in range(5)]
    late += [(99, f"s_lshl_b32 s8, s3, 9\ns_add_u32 m0, s8, {CSL}\nv_add_u32 v18, m0, v18\ns_mov_b64 exec, 0xfffff\nglobal_load_lds_dwordx4 v9, s[26:27]{SC}\ns_mov_b64 exec, -1")]
    if not XLATE:
        for e in late: a(e[1])
        late = []
    poll(a, 3, None, 27, 144, idxreg=147)
    a.stamp(17)
    for d in range(5): a(f"ds_read_b128 {vr(GB+4*d,4)}, v18 offset:{64*d}")
    for d in range(5): a(f"ds_read_b128 {vr(XR+4*d,4)}, v19 offset:{1024*d}")
    if "opf" in EXP:
        a(f"""s_lshl_b32 s8, s44, 2
        s_add_u32 s8, s8, s3
        s_mul_i32 s8, s8, {16*1280}
        s_mul_i32 s9, s45, 160
        s_add_u32 s8, s8, s9
        v_mul_u32_u24 v19, 1280, v2
        v_mul_u32_u24 v145, 52, v3
        v_add3_u32 v19, v19, v145, s8
        s_waitcnt lgkmcnt(0)
        global_load_dword v145, v19, s[30:31]""")
    vm = VM()
    def hl(st):
        return [(st, (f"s_add_u32 s25, s24, {st*16384}\n" if sg == 0 else "") + f"buffer_load_dwordx4 {vr(HB+16*(st%NB)+4*sg,4)}, v{10+sg}, s[16:19], s25 offen{SC}") for sg in range(4)]
    rest = []
    def emit(e):
        if "g2noload" in EXP and "s[16:19]" in e[1] and e[0] >= 4: return
        if "g2norest" in EXP and "s[16:19]" not in e[1]: return
        a(e[1]); vm.add(e[0])
    for st in range(NB - 1):
        for e in hl(st): emit(e)
    per = -(-len(rest) // 10)
    for st in range(14):
        a(vm.wait(list(range(st + 1))) or "s_nop 0")
        if "g2stamp" in EXP and st in (0, 1, 2, 4, 6, 8, 10, 12): a.stamp({0: 1, 1: 2, 2: 3, 4: 4, 6: 5, 8: 6, 10: 7, 12: 8}[st])
        ex = hl(st + NB - 1) if st + NB - 1 < 14 else []
        if st >= 10: ex += late[:4]; late = late[4:]
        for sg in ((0, 1, 2, 3) if st < 13 else (1, 2, 3, 0)):
            for d in range(5):
                t = vr(ACC + 20 * sg + 4 * d, 4)
                if "g2nomfma" not in EXP: a(f"v_mfma_f32_16x16x32_bf16 {t}, {wd_reg(5*st+d)}, {vr(HB+16*(st%NB)+4*sg,4)}, {t if st else '0'}")
                if ex and (d == G2POS or not SPREAD): emit(ex.pop(0))
                if st == 13 and sg in (3, 0): a(f"ds_write_b128 v{14 if sg == 3 else 15}, {vr(ACC+20*(1 if sg == 3 else 2)+4*d,4)} offset:{1024*d}")
        assert not ex
    assert not rest
    a.stamp(18)
    XD = 64
    a("s_waitcnt lgkmcnt(10)")
    for d in range(5):
        a(f"v_mfma_f32_16x16x32_bf16 {vr(XD+4*d,4)}, {vr(XR+4*d,4)}, {vr(SEL,4)}, 0")
        a(f"ds_write_b128 v16, {vr(ACC+60+4*d,4)} offset:{1024*d}")
    if OUTT:
        a(f"""s_mul_i32 s8, s3, 2816
        s_add_u32 s8, s8, 65536
        v_mul_u32_u24 v5, 176, v2
        v_lshl_add_u32 v5, v3, 3, v5
        v_add_u32 v5, s8, v5""")
        for i in range(3):
            a(f"""v_add_u32 v6, {64*i}, v0
            v_min_u32 v6, 159, v6
            v_mul_u32_u24 v7, 6554, v6
            v_lshrrev_b32 v7, 16, v7
            v_lshlrev_b32 v6, 4, v6
            v_lshl_add_u32 v{84+i}, v7, 4, v6
            v_add_u32 v{84+i}, s8, v{84+i}
            v_mul_u32_u24 v7, {1280-160}, v7
            v_add_u32 v{88+i}, v6, v7""")
    a(f"""s_mul_i32 s8, s3, {15*1024}
    v_add_u32 v17, s8, v9
    v_mul_u32_u24 v4, 1280, v2
    v_lshl_add_u32 v4, v3, 3, v4
    s_lshl_b32 s8, s44, 2
    s_add_u32 s8, s8, s3
    s_mul_i32 s8, s8, {16*1280}
    s_mul_i32 s9, s45, 160
    s_add_u32 s8, s8, s9
    s_waitcnt lgkmcnt(0)""")
    add64(a, 30, 30, "s8")
    if "fstamp" in EXP: a.stamp(1)
    a("s_barrier")
    if "fstamp" in EXP: a.stamp(2)
    for d in range(5):
        for sg in range(1, 4): a(f"ds_read_b128 {vr(ACC+20*sg+4*d,4)}, v17 offset:{1024*(5*(sg-1)+d)}")
    for d in range(5):
        a(f"s_waitcnt lgkmcnt({12-3*d + (d if OUTT else 0)})")
        t = ACC + 4 * d
        for p in range(2):
            a(f"v_pk_add_f32 {vr(t+2*p,2)}, {vr(t+2*p,2)}, {vr(t+20+2*p,2)}")
            a(f"v_pk_add_f32 {vr(t+40+2*p,2)}, {vr(t+40+2*p,2)}, {vr(t+60+2*p,2)}")
        for p in range(2): a(f"v_pk_add_f32 {vr(t+2*p,2)}, {vr(t+2*p,2)}, {vr(t+40+2*p,2)}")
        for p in range(2): a(f"v_pk_fma_f32 {vr(t+2*p,2)}, {vr(t+2*p,2)}, {vr(GB+4*d+2*p,2)}, {vr(XD+4*d+2*p,2)}")
        a(f"v_cvt_pk_bf16_f32 v{t}, v{t}, v{t+1}\nv_cvt_pk_bf16_f32 v{t+1}, v{t+2}, v{t+3}")
        if OUTT: a(f"ds_write_b64 v5, {vr(t,2)} offset:{32*d}")
        else: a(f"global_store_dwordx2 v4, {vr(t,2)}, s[30:31] offset:{32*d}")
    if OUTT:
        a("s_waitcnt lgkmcnt(0)")
        for i in range(3): a(f"ds_read_b128 {vr(100+4*i,4)}, v{84+i}")
        for i in range(3):
            a(f"s_waitcnt lgkmcnt({2-i})")
            if i == 2: a("s_mov_b32 exec_hi, 0")
            a(f"global_store_dwordx4 v{88+i}, {vr(100+4*i,4)}, s[30:31]")

def build():
    a = A()
    hdr = open("cdna_kernels/" + NAME + ".s.ref").read().split("; Override launch")[0]
    a(f'.amdgcn_target "amdgcn-amd-amdhsa--gfx950"\n.text\n.globl {KNAME}\n.p2align 8\n.type {KNAME},@function\n{KNAME}:')
    Lend, Laux, Lg1, Lnt = a.label("end"), a.label("aux"), a.label("g1"), a.label("notag")
    if DIAG:
        for i in range(NSTAMP): a(f"s_mov_b32 s{48+i}, 0")
    a.stamp(0)
    a(f"""s_cmp_ge_u32 s2, 256
    s_cbranch_scc1 {Lend}
    s_load_dwordx2 s[12:13], s[0:1], {KA['ws']}
    s_load_dwordx2 s[72:73], s[0:1], {KA['dbg']}
    v_lshrrev_b32 v1, 6, v0
    v_and_b32 v0, 63, v0
    v_readfirstlane_b32 s3, v1
    s_mov_b32 s69, 0xffff0000
    s_cmp_lg_u32 s2, 255
    s_cbranch_scc1 {Lnt}
    s_cmp_lg_u32 s3, 0
    s_cbranch_scc1 {Lnt}
    s_memrealtime s[70:71]
    v_mov_b32 v4, 0
    s_waitcnt lgkmcnt(0)
    s_or_b32 s70, s70, 1
    v_mov_b32 v2, s70
    v_mov_b32 v3, s71
    s_mov_b64 exec, 1
    global_store_dwordx2 v4, v[2:3], s[72:73]{SC}
    s_mov_b64 exec, -1
    {Lnt}:""")
    if "tlb" in EXP:
        TSH = int(os.environ.get("TSH", "20"))
        Ltl = a.label("notouch")
        npg = (_off >> TSH) + 1
        assert npg <= 64
        a(f"""s_cmp_lg_u32 s3, 1
        s_cbranch_scc1 {Ltl}
        s_load_dwordx4 s[4:7], s[0:1], {KA['wg']}
        s_load_dwordx2 s[8:9], s[0:1], {KA['wd']}
        s_load_dwordx2 s[10:11], s[0:1], {KA['out']}
        v_min_u32 v2, {npg-1}, v0
        v_lshlrev_b32 v2, {TSH}, v2
        v_min_u32 v3, 0x200000, v2
        s_waitcnt lgkmcnt(0)
        global_load_dword v251, v2, s[12:13]{NT}
        global_load_dword v251, v3, s[4:5]{NT}
        global_load_dword v251, v3, s[6:7]{NT}
        global_load_dword v251, v3, s[8:9]{NT}
        global_load_dword v251, v3, s[10:11]{NT}
        {Ltl}:""")
    a(f"""s_cmp_ge_u32 s2, 160
    s_cbranch_scc1 {Laux}""")
    phase_conv(a, Lg1)
    a(f"{Laux}:")
    phase_aux(a, Lg1)
    a(f"{Lg1}:")
    phase_g1(a)
    phase_g2(a)
    if DIAG:
        if "fstamp" in EXP: a.stamp(3)
        a("s_waitcnt vmcnt(0)")
        a.stamp(19)
        AMP = os.environ.get("AMP", "")
        if AMP:
            i, wgsel = (int(x) for x in AMP.split(":"))
            Lsp, Lsk = a.label("spin"), a.label("nospin")
            a(f"""s_cmp_lg_u32 s2, {wgsel}
            s_cbranch_scc1 {Lsk}
            s_sub_u32 s4, s{48+i}, s48
            s_lshl_b32 s4, s4, 3
            {Lsp}:
            s_memrealtime s[76:77]
            s_waitcnt lgkmcnt(0)
            s_sub_u32 s5, s76, s67
            s_cmp_lt_u32 s5, s4
            s_cbranch_scc1 {Lsp}
            {Lsk}:""")
        a(f"""s_lshl_b32 s4, s2, 2
        s_add_u32 s4, s4, s3
        s_lshl_b32 s4, s4, 7
        s_add_u32 s4, s4, {TS_OFF}
        v_mov_b32 v0, s4
        s_mov_b64 exec, 1""")
        for i in range(NSTAMP): a(f"v_mov_b32 v2, s{48+i}\nglobal_store_dword v0, v2, s[12:13] offset:{4*i}\ns_nop 1")
    a(f"{Lend}:\ns_endpgm\ncode_end:")
    kd = f""".section .rodata,"a"
.p2align 6
.amdhsa_kernel {KNAME}
  .amdhsa_next_free_vgpr 512
  .amdhsa_next_free_sgpr 102
  .amdhsa_accum_offset 256
  .amdhsa_group_segment_fixed_size 0
  .amdhsa_kernarg_size 120
  .amdhsa_user_sgpr_count 2
  .amdhsa_user_sgpr_kernarg_segment_ptr 1
  .amdhsa_system_sgpr_workgroup_id_x 1
.end_amdhsa_kernel
"""
    return hdr + f"; @launch grid=(256,1,1) block=(256,1,1) lds={LDS_BYTES}\n" + a.text() + kd

if __name__ == "__main__":
    open(sys.argv[1] if len(sys.argv) > 1 else "p.s", "w").write(build())
```

```python
import sys, os
NAME = "adaLN_cond__ssm_conv_h3__glu_gated_reglu__prompt"
KNAME = NAME + "_kernel"
S, D, F = 2048, 640, 1728
KA = dict(x=0, k=8, v=16, shift=24, ssm=32, ssmD=40, bx=48, wg=56, wu=64, wd=72, c=80, wmod=88, out=96, dbg=104, ws=112)
WS = {}
_off = 0
def alloc(name, n):
    global _off
    WS[name] = _off
    _off += (n + 4095) // 4096 * 4096
alloc("FL", 6 * 256 * 128)
alloc("KVT", 640 * 4096 + 4096)
alloc("XTT", 640 * 4096)
alloc("ST", 2 * 2048 * 4)
alloc("MOD", 3840 * 4)
alloc("X1T", 640 * 4096)
alloc("X1S", 640 * 4096)
alloc("ST2", 2048 * 8)
alloc("CSB", 4 * 1728 * 4)
alloc("WD", 54 * 40 * 1024)
alloc("HH", 32 * 54 * 4096)
DIAG = bool(int(os.environ.get("DIAG", "0")))
EXP = os.environ.get("EXP", "").split(",")
TS_OFF = 64 << 20
NSTAMP = 20
SLEEP = int(os.environ.get("SLEEP", "1"))
FLMASK = os.environ.get("FLMASK", "0xffff")
NT = " nt"
SC = " sc1"
INV640 = f"{1.0/640:#.9g}"

class A:
    def __init__(self):
        self.l = []; self.n = 0
    def __call__(self, s):
        for x in s.strip("\n").split("\n"):
            x = x.strip()
            if x: self.l.append(("" if x.endswith(":") else "    ") + x)
    def label(self, p="L"):
        self.n += 1
        return f"{p}_{self.n}"
    def stamp(self, i):
        if DIAG: self(f"{'s_memtime' if 'cyc' in EXP else 's_memrealtime'} s[76:77]\ns_waitcnt lgkmcnt(0)\ns_mov_b32 s{48+i}, s76")
    def text(self): return "\n".join(self.l) + "\n"

def vr(b, n=1, p="v"): return f"{p}{b}" if n == 1 else f"{p}[{b}:{b+n-1}]"
def ar(b, n=1): return vr(b, n, "a")
def srd(a, dst, base, nbytes):
    a(f"s_mov_b32 s{dst}, s{base}\ns_and_b32 s{dst+1}, s{base+1}, 0xffff\ns_mov_b32 s{dst+2}, {nbytes}\ns_mov_b32 s{dst+3}, 0x20000")
def add64(a, dst, base, off):
    a(f"s_add_u32 s{dst}, s{base}, {off}\ns_addc_u32 s{dst+1}, s{base+1}, 0")
def dma(a, voff, sbase, m0, extra=""):
    a(f"s_mov_b32 m0, {m0}\ns_nop 0\nglobal_load_lds_dwordx4 v{voff}, s[{sbase}:{sbase+1}]{extra}")
def rbf16(a, dst, src):
    a(f"v_cvt_pk_bf16_f32 v{dst}, v{src}, v{src}\nv_lshlrev_b32 v{dst}, 16, v{dst}")

def get_tag(a, vt):
    L, Ld = a.label("tag"), a.label("tagd")
    a(f"""s_mov_b32 s74, 0x100000
    v_mov_b32 v{vt+2}, 0
    {L}:
    s_mov_b64 exec, 1
    global_load_dwordx2 {vr(vt,2)}, v{vt+2}, s[72:73]{SC}
    s_mov_b64 exec, -1
    s_waitcnt vmcnt(0)
    v_readfirstlane_b32 s70, v{vt}
    v_readfirstlane_b32 s71, v{vt+1}
    s_sub_u32 s74, s74, 1
    s_cbranch_scc1 {Ld}
    s_cmp_eq_u64 s[70:71], 0
    s_cbranch_scc1 {L}
    {Ld}:""")

def publish(a, phase, vt, vm=0, nosync=False):
    L = a.label("pub")
    if not nosync: a(f"s_waitcnt vmcnt({vm})\ns_barrier")
    a(f"""s_cmp_lg_u32 s3, 0
    s_cbranch_scc1 {L}
    s_lshl_b32 s74, s2, 7
    s_add_u32 s74, s74, {WS['FL'] + phase*256*128}
    v_lshl_add_u32 v{vt+2}, v0, 3, s74
    v_mov_b32 v{vt}, s70
    v_mov_b32 v{vt+1}, s71
    s_mov_b64 exec, {FLMASK}
    global_store_dwordx2 v{vt+2}, {vr(vt,2)}, s[12:13]{SC}
    s_mov_b64 exec, -1
    {L}:""")

def poll(a, phase, first, count, vt, idxreg=None):
    L, Ld = a.label("poll"), a.label("polld")
    if idxreg is None:
        a(f"v_add_u32 v{vt+2}, {first}, v0")
        idxreg = vt + 2
    a(f"""v_lshlrev_b32 v{vt+2}, 7, v{idxreg}
    v_add_u32 v{vt+2}, {WS['FL'] + phase*256*128}, v{vt+2}
    s_mov_b32 s74, 0x100000""")
    if count < 64: a(f"s_mov_b64 exec, {(1 << count) - 1:#x}" if count <= 31 else f"s_mov_b32 exec_hi, {(1 << (count - 32)) - 1:#x}")
    a(f"""{L}:
    global_load_dwordx2 {vr(vt,2)}, v{vt+2}, s[12:13]{SC}
    s_waitcnt vmcnt(0)
    v_cmp_ne_u64 vcc, s[70:71], {vr(vt,2)}
    s_and_b64 exec, exec, vcc
    s_cbranch_execz {Ld}
    s_sleep {SLEEP}
    s_sub_u32 s74, s74, 1
    s_cbranch_scc0 {L}
    {Ld}:
    s_mov_b64 exec, -1""")

def poll_multi(a, phase, count, vt):
    L, Ld = a.label("pollm"), a.label("pollmd")
    a(f"""v_lshlrev_b32 v{vt+6}, 7, v0
    v_add_u32 v{vt+6}, {WS['FL'] + phase*256*128}, v{vt+6}
    v_add_u32 v{vt+7}, {64*128}, v{vt+6}
    v_add_u32 v{vt+8}, {128*128}, v{vt+6}
    s_mov_b64 s[38:39], -1
    s_mov_b64 s[10:11], -1
    s_mov_b32 s28, {(1 << (count - 128)) - 1:#x}
    s_mov_b32 s29, 0
    s_mov_b32 s74, 0x100000
    {L}:""")
    for i, m in enumerate(("s[38:39]", "s[10:11]", "s[28:29]")):
        Ls = a.label("pm")
        a(f"s_mov_b64 exec, {m}\ns_cbranch_execz {Ls}\nglobal_load_dwordx2 {vr(vt+2*i,2)}, v{vt+6+i}, s[12:13]{SC}\n{Ls}:")
    a("s_mov_b64 exec, -1\ns_waitcnt vmcnt(0)")
    for i, m in enumerate(("s[38:39]", "s[10:11]", "s[28:29]")):
        a(f"v_cmp_ne_u64 vcc, s[70:71], {vr(vt+2*i,2)}\ns_and_b64 {m}, {m}, vcc")
    a(f"""s_or_b64 vcc, s[38:39], s[10:11]
    s_or_b64 vcc, vcc, s[28:29]
    s_cbranch_scc0 {Ld}
    s_sleep {SLEEP}
    s_sub_u32 s74, s74, 1
    s_cbranch_scc0 {L}
    {Ld}:""")

def xtile_tr_addrs(a, dst, base_sgpr=None):
    a("""v_lshrrev_b32 v2, 2, v0
    v_and_b32 v3, 7, v2
    v_lshlrev_b32 v3, 1, v3
    v_bfe_u32 v4, v0, 1, 1
    v_or_b32 v3, v3, v4
    v_lshlrev_b32 v2, 8, v2
    v_and_b32 v4, 1, v0
    v_lshl_add_u32 v2, v4, 3, v2""")
    if base_sgpr is not None: a(f"v_add_u32 v2, s{base_sgpr}, v2")
    for m in range(8): a(f"v_xor_b32 v4, {2*m}, v3\nv_lshl_add_u32 v{dst+m}, v4, 4, v2")

def stats_issue(a, R, sx, srow):
    a(f"""s_lshl_b32 s14, s3, 4
    s_add_u32 s14, s14, s{srow}
    s_mul_i32 s14, s14, 1280
    v_lshrrev_b32 v{R+80}, 4, v0
    v_mul_u32_u24 v{R+80}, {1280-256}, v{R+80}
    v_lshl_add_u32 v{R+80}, v0, 4, v{R+80}""")
    add64(a, 14, sx, "s14")
    for gq in range(4):
        for i in range(5): a(f"global_load_dwordx4 {vr(R+20*gq+4*i,4)}, v{R+80}, s[14:15] offset:{256*i}{NT}")
        if gq < 3: add64(a, 14, 14, 4 * 1280)
def stats_compute(a, R, srow):
    T = R + 80
    a("s_mov_b32 s14, 0x3f803f80")
    for half in range(2):
        a(f"s_waitcnt vmcnt({11 if half == 0 else 1})")
        for i in range(20):
            for gq in (2 * half, 2 * half + 1):
                a(f"v_dot2_f32_bf16 v{T+2*gq}, v{R+20*gq+i}, s14, {'0' if i == 0 else f'v{T+2*gq}'}")
                a(f"v_dot2_f32_bf16 v{T+2*gq+1}, v{R+20*gq+i}, v{R+20*gq+i}, {'0' if i == 0 else f'v{T+2*gq+1}'}")
    a("s_nop 2")
    for rot in (8, 4, 2, 1):
        for j in range(8): a(f"v_add_f32_dpp v{T+j}, v{T+j}, v{T+j} row_ror:{rot} row_mask:0xf bank_mask:0xf")
    a(f"""v_and_b32 v{R}, 3, v0
    v_cmp_eq_u32 vcc, 1, v{R}
    v_cmp_eq_u32 s[14:15], 2, v{R}
    v_cmp_eq_u32 s[16:17], 3, v{R}
    v_lshrrev_b32 v{R+1}, 4, v0
    v_lshl_add_u32 v{R}, v{R}, 2, v{R+1}
    v_cndmask_b32 v{T}, v{T}, v{T+2}, vcc
    v_cndmask_b32 v{T+1}, v{T+1}, v{T+3}, vcc
    v_cndmask_b32 v{T}, v{T}, v{T+4}, s[14:15]
    v_cndmask_b32 v{T+1}, v{T+1}, v{T+5}, s[14:15]
    v_cndmask_b32 v{T}, v{T}, v{T+6}, s[16:17]
    v_cndmask_b32 v{T+1}, v{T+1}, v{T+7}, s[16:17]
    v_mul_f32 v{T}, {INV640}, v{T}
    v_mul_f32 v{T+1}, {INV640}, v{T+1}
    v_fma_f32 v{T+1}, -v{T}, v{T}, v{T+1}
    v_max_f32 v{T+1}, 0, v{T+1}
    v_add_f32 v{T+1}, 0x3727c5ac, v{T+1}
    v_rsq_f32 v{T+1}, v{T+1}
    s_lshl_b32 s14, s3, 4
    s_add_u32 s14, s14, s{srow}
    s_lshl_b32 s14, s14, 3
    s_add_u32 s14, s14, {WS['ST']}
    v_mul_f32 v{T}, -v{T}, v{T+1}
    v_and_b32 v{R+1}, 4, v0
    v_cmp_eq_u32 vcc, 0, v{R+1}
    v_lshl_add_u32 v{R}, v{R}, 2, s14
    v_lshl_add_u32 v{R}, v{R+1}, 4, v{R}
    v_cndmask_b32 v{T}, v{T}, v{T+1}, vcc
    s_mov_b32 exec_lo, 0xff00ff
    s_mov_b32 exec_hi, 0xff00ff
    global_store_dword v{R}, v{T}, s[12:13]{SC}
    s_mov_b64 exec, -1""")

def mod_slab(a, sslab, sc, sw, ldsoff):
    R, CR, SV, ACC, U = 100, 180, 16, 56, 64
    a(f"""s_lshl_b32 s14, s3, 3
    v_lshrrev_b32 v2, 3, v0
    v_add_u32 v2, s14, v2
    v_mul_u32_u24 v3, 40, v2
    global_load_dwordx4 {vr(CR,4)}, v3, s[{sc}:{sc+1}]
    global_load_dwordx4 {vr(CR+4,4)}, v3, s[{sc}:{sc+1}] offset:16
    global_load_dwordx2 {vr(CR+8,2)}, v3, s[{sc}:{sc+1}] offset:32
    v_mul_u32_u24 v2, {20*7680}, v2
    v_and_b32 v3, 7, v0
    v_lshl_add_u32 v2, v3, 4, v2
    s_lshl_b32 s16, s{sslab}, 7""")
    add64(a, 14, sw, "s16")
    for i in range(20):
        a(f"global_load_dwordx4 {vr(R+4*i,4)}, v2, s[14:15]{NT}")
        if i < 19: add64(a, 14, 14, 7680)
        if i == 9:
            a("s_waitcnt vmcnt(10)")
            for j in range(10): a(f"v_lshlrev_b32 v{SV+4*j+1}, 16, v{CR+j}\nv_and_b32 v{SV+4*j+3}, s69, v{CR+j}")
            for j in range(20): a(f"v_mul_f32 v{SV+2*j}, 0xbfb8aa3b, v{SV+2*j+1}")
            for j in range(20): a(f"v_exp_f32 v{SV+2*j}, v{SV+2*j}")
            for j in range(20): a(f"v_add_f32 v{SV+2*j}, 1.0, v{SV+2*j}")
            for j in range(20): a(f"v_rcp_f32 v{SV+2*j}, v{SV+2*j}")
            for j in range(20): a(f"v_mul_f32 v{SV+2*j}, v{SV+2*j+1}, v{SV+2*j}")
            for j in range(10): a(f"v_cvt_pk_bf16_f32 v{SV+4*j+1}, v{SV+4*j}, v{SV+4*j+2}")
            for j in range(10): a(f"v_lshlrev_b32 v{SV+4*j}, 16, v{SV+4*j+1}\nv_and_b32 v{SV+4*j+2}, s69, v{SV+4*j+1}")
    tag_issue(a, 212)
    for i in range(20):
        a(f"s_waitcnt vmcnt({20-i if i < 19 else 0})")
        u = U + 8 * (i & 1)
        for j in range(4): a(f"v_lshlrev_b32 v{u+2*j}, 16, v{R+4*i+j}\nv_and_b32 v{u+2*j+1}, s69, v{R+4*i+j}")
        for j in range(4):
            if i == 0: a(f"v_pk_mul_f32 {vr(ACC+2*j,2)}, {vr(u+2*j,2)}, {vr(SV,2)} op_sel_hi:[1,0]")
            else: a(f"v_pk_fma_f32 {vr(ACC+2*j,2)}, {vr(u+2*j,2)}, {vr(SV+2*i,2)}, {vr(ACC+2*j,2)} op_sel_hi:[1,0,1]")
    a("s_nop 1")
    for j in range(4): a(f"v_permlane32_swap_b32 v{ACC+j}, v{ACC+4+j}")
    a("s_nop 0")
    for j in range(4): a(f"v_add_f32 v{ACC+j}, v{ACC+j}, v{ACC+4+j}")
    a("s_nop 1")
    for j in range(2): a(f"v_permlane16_swap_b32 v{ACC+j}, v{ACC+2+j}")
    a("s_nop 0")
    for j in range(2): a(f"v_add_f32 v{ACC+j}, v{ACC+j}, v{ACC+2+j}")
    a("s_nop 1")
    for j in range(2): a(f"v_add_f32_dpp v{ACC+j}, v{ACC+j}, v{ACC+j} row_ror:8 row_mask:0xf bank_mask:0xf")
    L = a.label("modfin")
    a(f"""s_lshl_b32 s14, s3, 8
    s_add_u32 s14, s14, {ldsoff}
    v_lshrrev_b32 v4, 4, v0
    v_lshlrev_b32 v3, 5, v3
    v_lshl_add_u32 v3, v4, 3, v3
    v_add_u32 v3, s14, v3
    ds_write_b64 v3, {vr(ACC,2)}
    s_waitcnt lgkmcnt(0)
    s_barrier
    s_cmp_lg_u32 s3, 0
    s_cbranch_scc1 {L}
    v_lshlrev_b32 v2, 2, v0
    v_add_u32 v3, {ldsoff}, v2
    ds_read2st64_b32 v[4:5], v3 offset0:0 offset1:1
    ds_read2st64_b32 v[6:7], v3 offset0:2 offset1:3
    s_lshl_b32 s14, s{sslab}, 8
    s_add_u32 s14, s14, {WS['MOD']}
    v_add_u32 v2, s14, v2
    s_waitcnt lgkmcnt(0)
    v_pk_add_f32 v[4:5], v[4:5], v[6:7]
    s_nop 0
    v_add_f32 v4, v4, v5""")
    rbf16(a, 4, 4)
    a(f"global_store_dword v2, v4, s[12:13]{SC}\n{L}:")

RW = 4608 + 4160 * 2
OF, OE, OO = 512, 4608, 4608 + 4160
KB = 68096; VB = KB + 17 * 1040; XB = VB + 16 * 1040; MRED = XB + 16 * 1040
WRING = 69632; STL = WRING + 65536; CSL = STL + 4096
W3L = CSL + 2048
LDS_BYTES = W3L + 20480

def tag_issue(a, vt):
    a(f"v_mov_b32 v{vt+2}, 0\ns_mov_b64 exec, 1\nglobal_load_dwordx2 {vr(vt,2)}, v{vt+2}, s[72:73]{SC}\ns_mov_b64 exec, -1")
def tag_check(a, vt):
    Ld = a.label("tagok")
    a(f"""v_readfirstlane_b32 s70, v{vt}
    v_readfirstlane_b32 s71, v{vt+1}
    s_cmp_lg_u64 s[70:71], 0
    s_cbranch_scc1 {Ld}""")
    get_tag(a, vt)
    a(f"{Ld}:")

def interleave(a, mfmas, reads, valu, vmem=()):
    n = len(mfmas)
    slots = [[] for _ in range(n)]
    cap = [2] * n
    vmem = list(vmem)
    for i, (pre, x) in enumerate(vmem):
        p = 1 + (i * (n - 1)) // len(vmem)
        if pre: slots[p - 1].append(pre)
        slots[p].insert(0, x); cap[p] = 0
    free = [i for i in range(n) if cap[i]]
    for e, p in zip(reads, free): slots[p].insert(0, e); cap[p] -= 1
    assert len(reads) <= len(free)
    valu = list(valu)
    tot = sum(cap)
    order = [i for i in range(n) for _ in range(cap[i])]
    if len(valu) < len(order):
        first = [i for i in range(n) if cap[i] == 2]
        pool = sorted(first + [i for i in range(n) if cap[i] >= 1])[:]
        step = len(pool) / max(len(valu), 1)
        order = [pool[int(i * step)] for i in range(len(valu))]
    for i, e in enumerate(valu): slots[order[i] if i < len(order) else n - 1].append(e)
    for m, sl in zip(mfmas, slots):
        a(m)
        for e in sl: a(e)

FLAG2 = f"s_mov_b64 exec, 1\nglobal_load_dwordx2 v[236:237], v240, s[12:13]{SC}\ns_mov_b64 exec, -1"
def flag2_setup(a, zero=False):
    a(f"""s_and_b32 s74, s2, 63
    s_lshl_b32 s74, s74, 7
    s_add_u32 s74, s74, {WS['FL'] + 5*256*128}
    v_mov_b32 v240, s74
    v_mov_b32 v236, s70
    v_mov_b32 v237, s71""")
    if zero: a("v_writelane_b32 v236, 0, 0")
def flag2_check(a, first=False):
    Lok, Lsl, Lld = a.label("f2_ok"), a.label("f2_slow"), a.label("f2_ld")
    a("s_mov_b32 s74, 0x100000")
    if first: a(f"s_branch {Lld}")
    a(f"""{Lsl}:
    v_cmp_ne_u64 vcc, s[70:71], v[236:237]
    s_cbranch_vccz {Lok}
    s_sleep 4
    {Lld}:
    {FLAG2}
    s_waitcnt vmcnt(0)
    s_sub_u32 s74, s74, 1
    s_cbranch_scc0 {Lsl}
    {Lok}:""")
WEL = [int(x) for x in os.environ.get("WEL", "0,2,5,8").split(",")]
NWE = WEL[3]; H2 = int(os.environ.get("H2", "32")); ELP = int(os.environ.get("ELP", "3")); HKP = int(os.environ.get("HKP", "0"))
PUBT = int(os.environ.get("PUBT", "1"))
XST = int(os.environ.get("XST", "0"))
AORD = int(os.environ.get("AORD", "0"))
HK = int(os.environ.get("HK", "4")); HKF = int(os.environ.get("HKF", "3"))
def phase_conv(a, Lg1):
    a(f"""s_load_dwordx4 s[4:7], s[0:1], {KA['x']}
    s_load_dwordx4 s[8:11], s[0:1], {KA['v']}
    s_load_dwordx4 s[36:39], s[0:1], {KA['ssm']}
    s_load_dwordx4 s[40:43], s[0:1], {KA['c']}
    s_lshr_b32 s44, s2, 4
    s_and_b32 s45, s2, 15
    v_lshrrev_b32 v4, 3, v0
    v_and_b32 v5, 7, v0
    v_mul_u32_u24 v2, 1280, v4
    v_lshl_add_u32 v2, v5, 4, v2
    s_lshl_b32 s14, s45, 4
    s_add_u32 s14, s14, s3
    s_mul_i32 s14, s14, {8*1280}
    s_lshl_b32 s15, s44, 7
    s_add_u32 s14, s14, s15
    v_add_u32 v2, s14, v2
    v_add_u32 v3, {(-8*1280) & 0xffffffff}, v2
    s_lshl_b32 s14, s3, 3
    v_add_u32 v6, s14, v4
    s_lshl_b32 s14, s44, 9
    v_lshl_add_u32 v7, v6, 4, s14
    s_mul_i32 s28, s3, 1040
    s_mov_b32 s29, {32*1280}
    s_mov_b32 s30, {64*1280}
    s_mov_b32 s31, {96*1280}
    s_waitcnt lgkmcnt(0)""")
    srd(a, 16, 6, S * D * 2); srd(a, 20, 8, S * D * 2); srd(a, 24, 4, S * D * 2)
    Lh = a.label("nohalo")
    a(f"""s_cmp_lg_u32 s3, 0
    s_cbranch_scc1 {Lh}
    s_mov_b32 m0, {KB}
    s_nop 0
    buffer_load_dwordx4 v3, s[16:19], 0 offen{NT} lds
    {Lh}:""")
    SH = 8
    so = ["0", "s29", "s30", "s31"]
    def tile_dma(base, srdb):
        for i in range(4):
            a(f"s_add_u32 m0, s28, {base + 4*1040*i}\ns_nop 0\nbuffer_load_dwordx4 v2, s[{srdb}:{srdb+3}], {so[i]} offen{NT} lds")
    tile_dma(KB + 1040, 16); tile_dma(VB, 20)
    a(f"global_load_dwordx4 {vr(SH,4)}, v7, s[10:11]")
    code_prefetch(a)
    if AORD == 0: tile_dma(XB, 24)
    else: a("v_mov_b32 v243, v2")
    a(f"""    v_mul_u32_u24 v242, 1040, v5
    v_lshl_add_u32 v242, v6, 2, v242
    v_add_u32 v242, {KB}, v242
    v_xor_b32 v3, 7, v5
    v_mul_u32_u24 v12, 1040, v3
    v_lshl_add_u32 v12, v6, 2, v12
    v_add_u32 v12, {KB}, v12
    v_lshlrev_b32 v13, 13, v6
    v_lshl_add_u32 v14, v5, 4, v13
    v_mov_b32 v13, v14
    s_lshl_b32 s14, s44, 18
    s_lshl_b32 s15, s45, 8
    s_sub_u32 s32, s14, s15
    s_add_u32 s32, s32, {WS['KVT'] + 4096 + 240*16}
    s_add_u32 s34, s14, s15
    s_add_u32 s34, s34, {WS['XTT'] + 4096}""")
    add64(a, 32, 12, "s32"); add64(a, 34, 12, "s34")
    a(f"""s_lshl_b32 s8, s2, 2
    s_add_u32 s8, s8, s3
    s_mul_i32 s9, s3, {RW}
    s_add_u32 s9, s9, 16384
    s_lshl_b32 s10, s8, 12
    v_lshlrev_b32 v2, 4, v0
    v_and_b32 v4, 15, v0
    v_lshrrev_b32 v5, 4, v0
    v_mov_b32 v216, 0
    v_mov_b32 v217, 0
    v_lshl_add_u32 v6, v0, 3, s9
    ds_write_b64 v6, v[216:217]
    v_lshl_add_u32 v6, v4, 2, s9
    ds_write_b32 v6, v216 offset:{OE+4096}
    ds_write_b32 v6, v216 offset:{OO+4096}""")
    add64(a, 36, 36, "s10")
    a(f"s_add_u32 s11, s9, {OF}")
    if AORD < 2:
        for i in range(4): dma(a, 2, 36, "s11", f" offset:{1024*i}{NT}")
    a.stamp(1)
    a(f"s_waitcnt vmcnt({9 - 4*AORD}) lgkmcnt(0)\ns_barrier")
    a.stamp(2)
    SP, KR, VR_, KP, VP, KV, OUT = 16, 24, 46, 62, 84, 100, 116
    def rdk(h, lo, hi):
        for i in range(lo, hi):
            off = 8320 * h + (640 + 128 * i if i < 3 else 1040 + 128 * (i - 3))
            a(f"ds_read_b32 v{KR+11*h+i}, v12 offset:{off}")
    def rdv(h, lo, hi, base=VB, dst=VR_):
        for i in range(lo, hi): a(f"ds_read_b32 v{dst+8*h+i}, v12 offset:{base-KB + 8320*h + 128*i}")
    rdk(0, 0, 11); rdv(0, 0, 4)
    tag_issue(a, 212)
    a(f"""s_lshl_b32 s17, s8, 1
    v_mov_b32 v218, s17
    global_load_ushort v218, v218, s[38:39]
    v_lshlrev_b32 v{SP+0}, 16, v{SH+0}
    v_lshlrev_b32 v{SP+1}, 16, v{SH+2}
    v_and_b32 v{SP+2}, s69, v{SH+0}
    v_and_b32 v{SP+3}, s69, v{SH+2}
    v_lshlrev_b32 v{SP+4}, 16, v{SH+1}
    v_lshlrev_b32 v{SP+5}, 16, v{SH+3}
    v_and_b32 v{SP+6}, s69, v{SH+1}
    v_and_b32 v{SP+7}, s69, v{SH+3}""")
    def ks(h):
        for i in range(11): a(f"v_lshlrev_b32 v{KP+2*i}, 16, v{KR+11*h+i}\nv_and_b32 v{KP+2*i+1}, s69, v{KR+11*h+i}")
        for r in range(8): a(f"v_pk_mul_f32 {vr(KV+2*r,2)}, {vr(KP+2*r,2)}, {vr(SP+6,2)}")
        for j in (2, 1, 0):
            for r in range(8): a(f"v_pk_fma_f32 {vr(KV+2*r,2)}, {vr(KP+2*(r+3-j),2)}, {vr(SP+2*j,2)}, {vr(KV+2*r,2)}")
    def kvs(h):
        for i in range(8): a(f"v_lshlrev_b32 v{VP+2*i}, 16, v{VR_+8*h+i}\nv_and_b32 v{VP+2*i+1}, s69, v{VR_+8*h+i}")
        for r in range(8): a(f"v_pk_mul_f32 {vr(KV+2*r,2)}, {vr(KV+2*r,2)}, {vr(VP+2*r,2)}")
        for ch in range(2):
            o = OUT + 8 * h + 4 * ch
            for j in range(4): a(f"v_cvt_pk_bf16_f32 v{o+j}, v{KV+2*(7-2*j)+ch}, v{KV+2*(6-2*j)+ch}")
            a(f"global_store_dwordx4 v13, {vr(o,4)}, s[32:33] offset:{-4096*(1-ch) + 128*(1-h)}{SC}")
    a("s_waitcnt lgkmcnt(4)"); rdv(0, 4, 8); rdk(1, 0, 7)
    ks(0)
    a("s_waitcnt lgkmcnt(7)"); rdk(1, 7, 11); rdv(1, 0, 4)
    kvs(0)
    a("s_waitcnt lgkmcnt(4)"); rdv(1, 4, 8)
    ks(1)
    a("s_waitcnt lgkmcnt(0)")
    kvs(1)
    a.stamp(3)
    if AORD == 2:
        for i in range(4): dma(a, 2, 36, "s11", f" offset:{1024*i}{NT}")
    if AORD:
        for i in range(4):
            a(f"s_add_u32 m0, s28, {XB + 4*1040*i}\ns_nop 0\nbuffer_load_dwordx4 v243, s[24:27], {so[i]} offen{NT} lds")
    RA, RB = 220, 224
    a(f"""v_and_b32 v6, 1, v4
    v_xor_b32 v6, 1, v6
    v_mul_u32_u24 v6, {4160-2}, v6
    v_lshl_add_u32 v6, v5, 4, v6
    v_lshlrev_b32 v7, 1, v4
    v_sub_u32 v6, v6, v7
    v_add_u32 v6, s9, v6""")
    for q2 in range(4): a(f"v_add_u32 v{RA+q2}, {OE + 2*2031 - 512*(2*q2+1) - 64*7}, v6")
    a(f"""v_lshlrev_b32 v6, 5, v4
    v_lshl_add_u32 v15, v5, 3, v6
    v_lshl_add_u32 v6, v5, 4, v6
    v_add_u32 v6, s9, v6
    v_add_u32 v{RB}, {OF - 32 - 64*7}, v6
    v_add_u32 v3, s9, v2""")
    a(f"s_waitcnt vmcnt({4 + 4*AORD})")
    tag_check(a, 212)
    publish(a, 0, 212, vm=4*AORD)
    a.stamp(4)
    def xtrans():
        for h in range(2):
            for i in range(8): a(f"ds_read_b32 v{24+8*h+i}, v242 offset:{XB-KB + 8320*h + 128*i}")
            if h == 0: a("s_waitcnt lgkmcnt(6)")
        a("s_mov_b32 s14, 0x05040100\ns_mov_b32 s15, 0x07060302")
        for h in range(2):
            a(f"s_waitcnt lgkmcnt({8 if h == 0 else 0})")
            for ch in range(2):
                o = 40 + 8 * h + 4 * ch
                for j in range(4): a(f"v_perm_b32 v{o+j}, v{24+8*h+2*j+1}, v{24+8*h+2*j}, s{14+ch}")
                a(f"global_store_dwordx4 v14, {vr(o,4)}, s[34:35] offset:{-4096*(1-ch) + 128*h}{SC}")
    if AORD == 0: xtrans()
    a(f"s_add_u32 s10, s10, {WS['KVT']}\ns_add_u32 s11, s9, {OE}")
    add64(a, 16, 12, "s10")
    KO = 176
    ACC, KD, HG, SBv, XF, XR, KVR = 16, 48, 80, 112, 144, 176, 192
    FA, FB = 0, 64
    def bread(t, q): return f"ds_read_b128 {ar(FB+32*(t&1)+4*q,4)}, v{RB} offset:{512*q + 64*(7-t)}"
    def areads(t, q):
        o = 16 * (7 - t) + (0 if q & 1 else 128)
        return [f"ds_read2_b32 {ar(FA+32*(t&1)+4*q+2*h,2)}, v{RA+q//2} offset0:{o+2*h} offset1:{o+2*h+1}" for h in range(2)]
    def reads(t):
        r = []
        for q in range(8): r += [bread(t, q)] + areads(t, q)
        return r
    a(f"""v_lshlrev_b32 v218, 16, v218
    v_sub_u32 v11, s9, v15
    v_add_u32 v11, {OE + 4088 - 512*7}, v11
    v_min_u32 v208, 4, v0
    v_mul_u32_u24 v208, 2560, v208
    v_lshrrev_b32 v209, 3, v0
    v_xor_b32 v209, v209, v0
    v_lshlrev_b32 v209, 4, v209
    v_and_b32 v12, 7, v4
    v_xor_b32 v12, v12, v5
    v_lshlrev_b32 v12, 4, v12
    v_lshl_add_u32 v12, v4, 7, v12
    v_xor_b32 v243, 64, v12
    v_lshlrev_b32 v10, 5, v4
    v_lshrrev_b32 v13, 1, v5
    v_lshl_add_u32 v10, v13, 4, v10
    v_and_b32 v13, 1, v5
    v_lshl_add_u32 v10, v13, 9, v10
    s_and_b32 s14, s2, 0xf0
    v_add_u32 v210, s14, v0
    v_add_u32 v211, {210-16}, v0
    v_cmp_gt_u32 s[18:19], 16, v0
    v_mov_b32 v212, s70
    v_mov_b32 v213, s71
    v_cndmask_b32 v210, v211, v210, s[18:19]
    v_mul_u32_u24 v211, 10, v0
    v_cmp_gt_u32 s[18:19], 48, v0
    s_sub_u32 s14, s44, {480-160}
    v_add_u32 v211, s14, v211
    v_cndmask_b32 v210, v211, v210, s[18:19]
    v_lshlrev_b32 v210, 7, v210
    v_add_u32 v210, {WS['FL'] + 256*128}, v210
    s_lshl_b32 s14, s3, 4
    s_lshl_b64 s[28:29], 0xffff, s14
    s_and_b32 s29, s29, 0x1fffff
    """)
    flag2_setup(a)
    w_setup(a)
    a.stamp(5)
    a("s_and_b32 s14, s2, 0xf0")
    poll(a, 0, "s14", 16, 232)
    a.stamp(6)
    for i in range(4): a(f"global_load_dwordx4 {vr(KO+6*i,4)}, v2, s[16:17] offset:{1024*i}{SC}")
    ny = 0
    if AORD == 0: publish(a, 1, 232, vm=4)
    else:
        a("s_barrier"); xtrans(); ny = 4
    w_early(a, 0, WEL[0]); ny += 2 * WEL[0]
    for q in range(8): a(bread(0, q))
    for i in range(4):
        a(f"s_waitcnt vmcnt({max(2-i,0)+ny})")
        a(f"ds_write_b128 v3, {vr(KO+6*i,4)} offset:{OE+1024*i}")
        if i < 3: a(f"v_readlane_b32 s14, v{KO+6*i+6}, 0")
        a(f"v_mov_b32_dpp v{KO+6*i+4}, v{KO+6*i} wave_shl:1 row_mask:0xf bank_mask:0xf bound_ctrl:0")
        if i < 3: a(f"s_nop 0\nv_writelane_b32 v{KO+6*i+4}, s14, 63")
        for j in range(4): a(f"v_alignbit_b32 v{200+4*(i&1)+j}, v{KO+6*i+j+1}, v{KO+6*i+j}, 16")
        a(f"ds_write_b128 v3, {vr(200+4*(i&1),4)} offset:{OO+1024*i}")
        if i == 1: a("s_waitcnt lgkmcnt(2)")
    a("s_waitcnt lgkmcnt(0)")
    for q in range(8):
        for r in areads(0, q): a(r)
    a.stamp(7)
    P, Q, C1 = 226, 228, 230
    unk = []
    for n in range(8):
        unk += [f"v_and_b32 v{KD+4*n}, s69, v{KVR+2*n+1}", f"v_lshlrev_b32 v{KD+4*n+1}, 16, v{KVR+2*n+1}",
                f"v_and_b32 v{KD+4*n+2}, s69, v{KVR+2*n}", f"v_lshlrev_b32 v{KD+4*n+3}, 16, v{KVR+2*n}"]
    mulk = [f"v_mul_f32 v{KD+i}, v218, v{KD+i}" for i in range(32)]
    unx = []
    for n in range(4): unx += [f"v_permlane16_swap_b32 v{XR+4*n}, v{XR+4*n+2}", f"v_permlane16_swap_b32 v{XR+4*n+1}, v{XR+4*n+3}"]
    for n in range(16): unx += [f"v_lshlrev_b32 v{XF+2*n}, 16, v{XR+n}", f"v_and_b32 v{XF+2*n+1}, s69, v{XR+n}"]
    flagld = f"s_mov_b64 exec, s[28:29]\nglobal_load_dwordx2 v[212:213], v210, s[12:13]{SC}\ns_mov_b64 exec, -1"
    eld = [(f"s_lshl_b32 s17, s8, 2\ns_add_u32 s17, s17, {WS['MOD']}\nv_add_u32 v212, s17, v208", f"s_mov_b64 exec, 0x1f\nglobal_load_dword v219, v212, s[12:13]{SC}\ns_mov_b64 exec, -1")]
    pre = f"s_lshl_b32 s16, s3, 12\ns_add_u32 s17, s16, {WS['ST']}\ns_add_u32 s14, s12, s17\ns_addc_u32 s15, s13, 0\ns_mov_b32 m0, s16"
    eld += [(pre if i == 0 else "", f"global_load_lds_dwordx4 v209, s[14:15] offset:{1024*i}{SC}") for i in range(4)]
    pre = f"s_lshl_b32 s17, s8, 12\ns_add_u32 s17, s17, {WS['XTT']}\ns_add_u32 s14, s12, s17\ns_addc_u32 s15, s13, 0"
    eld += [(pre if n == 0 else "", f"global_load_dwordx4 {vr(XR+4*n,4)}, v10, s[14:15] offset:{1024*n}{SC}") for n in range(4)]
    def wpairs(k):
        l = wd_(k); return [(l[0][1], l[1][1]), (l[2][1], l[3][1])]
    strd = []
    for n in range(8): strd += [f"ds_read_b128 {vr(HG+4*n,4)}, v12 offset:{2048*n}", f"ds_read_b128 {vr(SBv+4*n,4)}, v243 offset:{2048*n}"]
    scal = ["v_add_f32 v214, 1.0, v219", "v_readlane_b32 s20, v219, 0", "v_cvt_pk_bf16_f32 v214, v214, v214", "v_readlane_b32 s22, v219, 2",
            "v_lshlrev_b32 v214, 16, v214\ns_nop 0", "v_readlane_b32 s21, v214, 1", "v_readlane_b32 s23, v214, 4", f"v_mov_b32 v{Q}, s22\ns_nop 0",
            f"v_mul_f32 v{P}, s21, v{Q}", f"v_mul_f32 v{Q}, s20, v{Q}", f"v_mov_b32 v{C1}, s23"]
    hg1 = [f"v_fma_f32 v{HG+i}, v{XF+i}, v{HG+i}, v{SBv+i}" for i in range(32)]
    hg2 = [f"v_fma_f32 v{HG+i}, v{HG+i}, v{P}, v{Q}" for i in range(32)]
    oadr = [f"s_lshl_b32 s17, s8, 12\ns_add_u32 s17, s17, {WS['X1T']}\ns_add_u32 s14, s12, s17\ns_addc_u32 s15, s13, 0\ns_add_u32 s16, s14, {WS['X1S']-WS['X1T']}\ns_addc_u32 s17, s15, 0"]
    post = []
    assert HK == 4
    for t in range(8):
        a("s_waitcnt lgkmcnt(0)")
        if "cstamp" in EXP and 2 <= t <= 7: a.stamp(t - 1)
        if AORD and t == PUBT: publish(a, 1, 232, vm=2*WEL[t])
        rd = reads(t + 1) if t < 7 else []
        va = []; vm_ = []
        if t == 0: rd = [f"ds_read_b64 {vr(KVR+2*n,2)}, v11 offset:{512*(7-n)}" for n in range(8)] + rd
        if t == 1: va = unk[:24]
        if t == 2: va = unk[24:] + mulk[:16]
        if t == 3: va = mulk[16:]
        if t < 3:
            for k in range(WEL[t], WEL[t + 1]): vm_ += wpairs(k)
        if t == HKF: vm_ = [("", "")] * HKP + [("", flagld)]
        if t == HK:
            Lok, Lsl = a.label("hk_ok"), a.label("hk_slow")
            a(f"""s_mov_b32 s74, 0x100000
            {Lsl}:
            s_waitcnt vmcnt(0)
            v_cmp_ne_u64 vcc, s[70:71], v[212:213]
            s_cbranch_vccz {Lok}
            {flagld}
            s_sub_u32 s74, s74, 1
            s_cbranch_scc0 {Lsl}
            {Lok}:
            s_barrier""")
            vm_ = [eld[0]] + eld[5:] + eld[1:5] + [("", "")] * ELP
        if t == 6:
            a("s_waitcnt vmcnt(4)")
            va = scal + unx[:36]
        if t == 7:
            a("s_waitcnt vmcnt(0)\ns_barrier")
            rd = strd
            va = unx[36:] + oadr + [""] * 10
            for n in range(H2 // 4): va += [f"s_waitcnt lgkmcnt({max(14 - 2*n - 4, 0)})\n" + hg1[4*n]] + hg1[4*n+1:4*n+4]
            post = [f"v_pk_fma_f32 {vr(HG+2*i,2)}, {vr(XF+2*i,2)}, {vr(HG+2*i,2)}, {vr(SBv+2*i,2)}" for i in range(H2 // 2, 16)]
            post += [f"v_pk_fma_f32 {vr(HG+2*i,2)}, {vr(HG+2*i,2)}, {vr(P,2)}, {vr(Q,2)} op_sel_hi:[1,0,0]" for i in range(16)]
            vm_ = [("", FLAG2)]
        mf = []
        for q in range(8):
            for n in range(q, 8):
                c = "0" if (t == 0 and q == 0) else vr(ACC + 4 * n, 4)
                mf.append(f"v_mfma_f32_16x16x32_bf16 {vr(ACC+4*n,4)}, {ar(FA+32*(t&1)+4*q,4)}, {ar(FB+32*(t&1)+4*(n-q),4)}, {c}")
        interleave(a, mf, rd, va, vm_)
    a.stamp(8)
    a("s_waitcnt lgkmcnt(0)")
    for x in post: a(x)
    a("v_add_u32 v11, s9, v15")
    a("s_nop 3")
    for n in range(0, 8, 2):
        for m in (n, n + 1):
            for h in range(2): a(f"v_pk_add_f32 {vr(ACC+4*m+2*h,2)}, {vr(ACC+4*m+2*h,2)}, {vr(KD+4*m+2*h,2)}")
        for m in (n, n + 1):
            for h in range(2): a(f"v_pk_fma_f32 {vr(ACC+4*m+2*h,2)}, {vr(HG+4*m+2*h,2)}, {vr(ACC+4*m+2*h,2)}, {vr(XF+4*m+2*h,2)}")
        for m in (n, n + 1):
            for h in range(2): a(f"v_pk_mul_f32 {vr(KD+4*m+2*h,2)}, {vr(ACC+4*m+2*h,2)}, {vr(C1,2)} op_sel_hi:[1,0]")
        o = SBv + 2 * n
        for m in (n, n + 1):
            for h in range(2): a(f"v_cvt_pk_bf16_f32 v{o+2*(m-n)+h}, v{KD+4*m+2*h}, v{KD+4*m+2*h+1}")
        if XST:
            for m in (n, n + 1): a(f"ds_write_b64 v11, {vr(o+2*(m-n),2)} offset:{512*m}")
            if n: a(f"s_waitcnt lgkmcnt(2)\nglobal_store_dwordx4 v2, {vr(XF+2*(n-2),4)}, s[16:17] offset:{512*(n-2)}{SC}")
            a(f"ds_read_b128 {vr(XF+2*n,4)}, v3 offset:{512*n}")
        else:
            a(f"""s_nop 1
            v_permlane16_swap_b32 v{o}, v{o+2}
            v_permlane16_swap_b32 v{o+1}, v{o+3}
            global_store_dwordx4 v10, {vr(o,4)}, s[16:17] offset:{512*n}{SC}""")
    for i in range(16): a(f"v_cvt_pk_bf16_f32 v{SBv+16+i}, v{ACC+2*i}, v{ACC+2*i+1}")
    if XST:
        a(f"s_waitcnt lgkmcnt(0)\nglobal_store_dwordx4 v2, {vr(XF+12,4)}, s[16:17] offset:{512*6}{SC}")
        for m in range(8): a(f"ds_write_b64 v11, {vr(SBv+16+2*m,2)} offset:{4096+512*m}")
        for n in range(4): a(f"ds_read_b128 {vr(XF+16+4*n,4)}, v3 offset:{4096+1024*n}")
        for n in range(4): a(f"s_waitcnt lgkmcnt({3-n})\nglobal_store_dwordx4 v2, {vr(XF+16+4*n,4)}, s[14:15] offset:{1024*n}{SC}")
    else:
        for n in range(0, 8, 2):
            o = SBv + 16 + 2 * n
            a(f"""v_permlane16_swap_b32 v{o}, v{o+2}
            v_permlane16_swap_b32 v{o+1}, v{o+3}
            global_store_dwordx4 v10, {vr(o,4)}, s[14:15] offset:{512*n}{SC}""")
    a.stamp(9)
    a(f"s_branch {Lg1}")

def code_prefetch(a):
    a(f"""s_getpc_b64 s[14:15]
    s_sub_u32 s14, s14, . - {KNAME}
    s_subb_u32 s15, s15, 0
    s_lshr_b32 s17, s2, 3
    s_lshl_b32 s17, s17, 2
    s_add_u32 s17, s17, s3
    s_min_u32 s17, s17, (code_end - {KNAME}) / 1024 - 1
    s_lshl_b32 s17, s17, 10
    v_lshl_add_u32 v250, v0, 4, s17
    global_load_dwordx4 v[252:255], v250, s[14:15]""")

def phase_aux(a, Lg1):
    Lst, L2, Lnd, Lnw, Lnd2, Lnw3 = (a.label(x) for x in ("aux_st", "aux2", "aux_nod", "aux_now", "aux_nod2", "aux_now3"))
    RED, MRD = STL, CSL
    LwE, Lwd, Lmod, Lgbd, Lnp1, Ltg = (a.label(x) for x in ("aux_we", "aux_wd", "aux_mod", "aux_gbd", "aux_np1", "aux_tg"))
    a(f"""s_load_dwordx2 s[4:5], s[0:1], {KA['x']}
    s_load_dwordx4 s[36:39], s[0:1], {KA['wg']}
    s_load_dwordx2 s[6:7], s[0:1], {KA['wd']}
    s_load_dwordx4 s[40:43], s[0:1], {KA['c']}
    s_sub_u32 s8, s2, 160
    s_mov_b32 s44, s8
    v_lshlrev_b32 v9, 4, v0
    s_waitcnt lgkmcnt(0)
    s_cmp_ge_u32 s8, 82
    s_cbranch_scc1 {Lwd}
    s_cmp_ge_u32 s8, 50
    s_cbranch_scc1 {Lst}
    {Lmod}:""")
    mod_slab(a, 44, 40, 42, MRD)
    a(f"""s_cmp_ge_u32 s8, 82
    s_cbranch_scc1 {Lgbd}
    s_branch {L2}
    {Lst}:
    s_sub_u32 s45, s8, 50
    s_lshl_b32 s45, s45, 6""")
    stats_issue(a, 100, 4, 45)
    tag_issue(a, 212)
    stats_compute(a, 100, 45)
    a(f"{L2}:")
    a.stamp(3)
    a("s_waitcnt vmcnt(1)")
    tag_check(a, 212)
    a(f"""s_cmp_ge_u32 s8, 56
    s_cbranch_scc1 {Lwd}""")
    TA, RAW, MV, PK, RES = 10, 128, 16, 96, 208
    a(f"""s_and_b32 s10, s8, 3
    s_mul_i32 s10, s10, 7
    s_lshr_b32 s11, s8, 3
    s_add_u32 s10, s10, s11
    s_min_u32 s10, s10, 26
    s_bfe_u32 s9, s8, 0x10002
    s_cmp_eq_u32 s9, 1
    s_cselect_b32 s36, s38, s36
    s_cselect_b32 s37, s39, s37
    v_lshrrev_b32 v2, 3, v0
    v_bfe_u32 v3, v0, 4, 2
    v_lshlrev_b32 v3, 1, v3
    v_and_b32 v4, 7, v0
    v_xor_b32 v3, v3, v4
    v_mul_u32_u24 v2, 3456, v2
    v_lshl_add_u32 v2, v3, 4, v2
    s_lshl_b32 s11, s10, 7
    s_mul_i32 s16, s3, {32*3456}
    s_add_u32 s11, s11, s16
    v_add_u32 v2, s11, v2
    s_mul_i32 s16, s3, {5*4096}
    s_cmp_eq_u32 s3, 3
    s_cselect_b32 s16, {W3L}, s16""")
    srd(a, 20, 36, 640 * 3456)
    for io in range(5):
        for u in range(4):
            if io * 4 + u == 6:
                publish(a, 1, 16, vm=6)
                a.stamp(4)
            a(f"s_add_u32 m0, s16, {4096*io + 1024*u}\ns_mov_b32 s17, {(128*io + 8*u)*3456}\nbuffer_load_dwordx4 v2, s[20:23], s17 offen{WPOL} lds")
    a(f"""v_lshrrev_b32 v2, 2, v0
    v_bfe_u32 v3, v0, 3, 2
    v_and_b32 v4, 3, v0
    v_lshlrev_b32 v2, 7, v2
    v_lshl_add_u32 v2, v4, 3, v2
    v_add_u32 v2, s16, v2""")
    for T_ in range(4): a(f"v_xor_b32 v4, {T_}, v3\nv_lshl_add_u32 v{TA+T_}, v4, 5, v2")
    a(f"""v_lshrrev_b32 v14, 4, v0
    v_lshlrev_b32 v14, 4, v14
    s_lshl_b32 s16, s3, 7
    s_add_u32 s16, s16, 61440
    v_add_u32 v14, s16, v14
    s_mul_i32 s16, s3, 1280
    s_add_u32 s17, s16, {WS['MOD'] + 3*2560}
    v_add_u32 v15, s17, v9
    s_add_u32 s18, s16, 61440""")
    flag2_setup(a, zero=True)
    w_setup(a)
    poll(a, 1, 190, 20, 16)
    a.stamp(6)
    a(f"""s_mov_b32 m0, s18
    s_nop 0
    global_load_lds_dwordx4 v15, s[12:13]{SC}
    s_mov_b64 exec, 0xffff
    global_load_lds_dwordx4 v15, s[12:13] offset:1024{SC}
    s_mov_b64 exec, -1""")
    w_early(a, 0, 4)
    for io in range(5):
        for T_ in range(4):
            for hf in range(2): a(f"ds_read_b64_tr_b16 {vr(RAW+16*io+4*T_+2*hf,2)}, v{TA+T_} offset:{4096*io+2048*hf}")
        a("s_waitcnt lgkmcnt(4)")
    a("s_waitcnt vmcnt(8) lgkmcnt(0)\ns_barrier")
    for io in range(5):
        for hf in range(2):
            a(f"ds_read_b128 {vr(MV+16*io+4*hf,4)}, v14 offset:{512*io+64*hf}")
            a(f"ds_read_b128 {vr(MV+16*io+8+4*hf,4)}, v14 offset:{2560+512*io+64*hf}")
        if io == 2: a("s_waitcnt lgkmcnt(4)")
    w_early(a, 4, NWE)
    a("s_waitcnt lgkmcnt(0)")
    for io in range(5):
        b = MV + 16 * io; p = PK + 8 * (io & 1)
        for i in range(4): a(f"v_cvt_pk_bf16_f32 v{p+i}, v{b+2*i}, v{b+2*i+1}")
        for i in range(8): a(f"v_add_f32 v{b+8+i}, 1.0, v{b+8+i}")
        for i in range(4): a(f"v_cvt_pk_bf16_f32 v{p+4+i}, v{b+8+2*i}, v{b+8+2*i+1}")
        for T_ in range(4): a(f"v_mfma_f32_16x16x32_bf16 {vr(112+4*T_,4)}, {vr(RAW+16*io+4*T_,4)}, {vr(p,4)}, {vr(112+4*T_,4) if io else '0'}")
        for T_ in range(4): a(f"v_mfma_f32_16x16x32_bf16 {vr(RES+4*T_,4)}, {vr(RAW+16*io+4*T_,4)}, {vr(p+4,4)}, {vr(RES+4*T_,4) if io else '0'}")
    a(f"""s_lshl_b32 s16, s3, 9
    s_add_u32 s16, s16, {RED}
    v_add_u32 v2, s16, v0
    s_mov_b32 exec_lo, 0x10001
    s_mov_b32 exec_hi, 0x10001
    s_nop 2""")
    for T_ in range(4): a(f"ds_write_b128 v2, {vr(112+4*T_,4)} offset:{256+64*T_}")
    for T_ in range(4): a(f"ds_write_b128 v2, {vr(RES+4*T_,4)} offset:{64*T_}")
    a(f"""s_mov_b64 exec, -1
    s_waitcnt lgkmcnt(0)
    s_barrier
    s_cmp_ge_u32 s3, 2
    s_cbranch_scc1 {LwE}
    s_lshl_b32 s16, s3, 8
    s_add_u32 s16, s16, {RED}
    v_lshlrev_b32 v3, 2, v0
    v_add_u32 v2, s16, v3
    ds_read2st64_b32 v[4:5], v2 offset0:0 offset1:2
    ds_read2st64_b32 v[16:17], v2 offset0:4 offset1:6
    s_lshl_b32 s16, s9, 1
    s_add_u32 s16, s16, s3
    s_mul_i32 s16, s16, {1728*4}
    s_lshl_b32 s17, s10, 8
    s_add_u32 s16, s16, s17
    s_add_u32 s16, s16, {WS['CSB']}""")
    add64(a, 14, 12, "s16")
    a(f"""s_waitcnt lgkmcnt(0)
    v_add_f32 v4, v4, v5
    v_add_f32 v16, v16, v17
    v_add_f32 v4, v4, v16
    global_store_dword v3, v4, s[14:15]{SC}
    s_waitcnt vmcnt(0)
    {LwE}:""")
    a.stamp(9)
    a(f"s_branch {Lg1}")
    a(f"""{Lwd}:
    s_lshl_b32 s46, s8, 2
    s_add_u32 s46, s46, s3
    s_sub_u32 s17, s46, {4*82}
    s_sub_u32 s46, s46, {4*56-165}
    s_cmp_eq_u32 s17, 55
    s_cselect_b32 s17, 269, s17
    s_cmp_ge_u32 s8, 82
    s_cselect_b32 s46, s17, s46
    v_lshrrev_b32 v2, 4, v0
    v_and_b32 v3, 15, v0
    v_lshlrev_b32 v4, 1, v2
    v_xor_b32 v4, v4, v3
    v_mul_u32_u24 v2, 1280, v2
    v_lshl_add_u32 v5, v4, 4, v2
    v_xor_b32 v4, 8, v4
    v_lshl_add_u32 v6, v4, 4, v2
    v_add_u32 v6, {4*1280}, v6
    s_mul_i32 s16, s3, {3*8192}
    s_mul_i32 s17, s46, 52429
    s_lshr_b32 s17, s17, 18
    s_mul_i32 s11, s17, 5
    s_sub_u32 s11, s46, s11
    s_mul_i32 s17, s17, {32*1280}
    s_lshl_b32 s11, s11, 8
    s_add_u32 s17, s17, s11
    v_add_u32 v5, s17, v5
    v_add_u32 v6, s17, v6""")
    srd(a, 20, 6, 1728 * 1280)
    add64(a, 14, 12, WS['WD']); srd(a, 24, 14, 54 * 40 * 1024)
    for un in range(3):
        for u in range(8):
            if un * 8 + u == 6:
                a(f"s_cmp_ge_u32 s8, 82\ns_cbranch_scc1 {Lnp1}")
                publish(a, 1, 16, vm=6)
                a.stamp(4)
                a(f"{Lnp1}:")
            a(f"s_add_u32 m0, s16, {8192*un + 1024*u}\ns_mov_b32 s17, {(11*32*un + 8*(u>>1))*1280}\nbuffer_load_dwordx4 v{5+(u&1)}, s[20:23], s17 offen{NT} lds")
        if un == 0: a("s_cmp_ge_u32 s8, 82\ns_cselect_b32 s22, s22, 0")
    tag_issue(a, 212)
    xtile_tr_addrs(a, 48, 16)
    a("s_lshl_b32 s17, s46, 13\nv_add_u32 v7, s17, v9")
    for un in range(3):
        a("s_waitcnt vmcnt(17)")
        for q in range(3):
            if q < 2:
                for dt in range(4):
                    for hf in range(2): a(f"ds_read_b64_tr_b16 {vr(100+32*un+16*q+4*dt+2*hf,2)}, v{48+4*q+dt} offset:{8192*un+4096*hf}")
            if q:
                a(f"s_waitcnt lgkmcnt({8 if q < 2 else 0})\ns_mov_b32 s17, {55*8192*un + 4096*(q-1)}")
                for dt in range(4): a(f"buffer_store_dwordx4 {vr(100+32*un+16*(q-1)+4*dt,4)}, v7, s[24:27], s17 offen offset:{1024*dt}{SC}")
        if un == 0: a(f"s_cmp_lt_u32 s8, 82\ns_cbranch_scc1 {Ltg}")
    a(f"{Ltg}:\ns_waitcnt vmcnt(8)")
    tag_check(a, 212)
    publish(a, 0, 16)
    a.stamp(6)
    a(f"""s_cmp_lt_u32 s8, 82
    s_cbranch_scc1 {Lnw3}
    s_sub_u32 s44, s8, 32
    s_cmp_lt_u32 s8, 92
    s_cbranch_scc1 {Lmod}
    s_cmp_lg_u32 s8, 95
    s_cbranch_scc1 {Lnw3}
    s_cmp_lg_u32 s3, 0
    s_cbranch_scc1 {Lnw3}""")
    poll(a, 0, 216, 40, 20)
    a(f"v_mov_b32 v16, s70\nv_mov_b32 v17, s71\nv_mov_b32 v18, s70\nv_mov_b32 v19, s71")
    add64(a, 14, 12, WS['FL'] + 5 * 256 * 128 + 4096)
    for i in range(8): a(f"global_store_dwordx4 v9, v[16:19], s[14:15] offset:{1024*i-4096}{SC}")
    a(f"s_branch {Lnw3}\n{Lgbd}:")
    publish(a, 1, 16)
    a(f"{Lnw3}:")
    flag2_setup(a, zero=True)
    a.stamp(9)
    a("s_branch g1_idle")

def w_setup(a):
    a(f"""s_load_dwordx4 s[84:87], s[0:1], {KA['wg']}
    s_lshr_b32 s6, s2, 3
    s_and_b32 s5, s2, 3
    s_mul_i32 s5, s5, 27
    s_add_u32 s5, s5, s6
    s_lshr_b32 s6, s5, 2
    s_and_b32 s5, s5, 3
    s_and_b32 s89, s2, 4
    s_add_u32 s5, s5, s89
    v_lshrrev_b32 v244, 3, v0
    v_bfe_u32 v245, v0, 4, 2
    v_lshlrev_b32 v245, 1, v245
    v_and_b32 v246, 7, v0
    v_xor_b32 v245, v245, v246
    v_mul_u32_u24 v244, 3456, v244
    v_lshl_add_u32 v7, v245, 4, v244
    s_mul_i32 s88, s3, {8*3456}
    s_lshl_b32 s89, s6, 7
    s_add_u32 s88, s88, s89
    v_add_u32 v7, s88, v7
    s_lshl_b32 s88, s3, 10
    s_add_u32 s88, s88, {WRING}
    s_waitcnt lgkmcnt(0)""")
    srd(a, 80, 84, 640 * 3456); srd(a, 84, 86, 640 * 3456)
def wd_(k):
    out = []
    for m in range(2):
        pre = f"s_add_u32 m0, s88, {(k&7)*8192 + m*4096}" + (f"\ns_mov_b32 s89, {k*32*3456}" if not out else "")
        out += [(None, pre), (("W", k), f"buffer_load_dwordx4 v7, s[{80+4*m}:{83+4*m}], s89 offen lds")]
    return out
def w_early(a, lo, hi):
    for k in range(lo, hi):
        for t, x in wd_(k): a(x + ("" if t else "\ns_nop 0"))

def g2_setup(a):
    a(f"""s_lshr_b32 s4, s2, 3
    s_bfe_u32 s44, s2, 0x20001
    s_lshl_b32 s44, s44, 3
    s_lshr_b32 s45, s4, 2
    s_add_u32 s44, s44, s45
    s_and_b32 s45, s2, 1
    s_lshl_b32 s45, s45, 2
    s_and_b32 s9, s4, 3
    s_add_u32 s45, s45, s9
    s_mul_i32 s9, s45, 5120
    s_add_u32 s10, s9, {WS['WD']}
    v_lshlrev_b32 v9, 4, v0
    v_add_u32 v8, 4096, v9""")
    add64(a, 14, 12, "s10"); srd(a, 40, 14, 0)
    a(f"s_sub_u32 s42, {54*40960}, s9\ns_mul_i32 s46, s3, 40960")

SPREAD = int(os.environ.get("SPREAD", "1")); RDEND = int(os.environ.get("RDEND", "28"))
G2POS = int(os.environ.get("G2POS", "0"))
LEVEL = int(os.environ.get("LEVEL", "7"))
XLATE = int(os.environ.get("XLATE", "0"))
OUTT = int(os.environ.get("OUTT", "1"))
CPF = int(os.environ.get("CPF", "99"))
WSTART = int(os.environ.get("WSTART", "4"))
X1LATE = int(os.environ.get("X1LATE", "4"))
WPOL = os.environ.get("WPOL", "")
NWA = int(os.environ.get("NWA", "8"))
NWD0 = int(os.environ.get("NWD0", "26"))
NWD1 = int(os.environ.get("NWD1", "60"))
NW0 = int(os.environ.get("NW0", "8"))
WD_FIRST = int(os.environ.get("WD_FIRST", "4")); WD_LAST = int(os.environ.get("WD_LAST", "20"))
NWD2 = int(os.environ.get("NWD2", "6"))
HK3F = int(os.environ.get("HK3F", "14")); HK3 = int(os.environ.get("HK3", "16"))
def wd_reg(i):
    return ar(4 * i, 4) if i < 64 else vr(232 + 4 * (i - 64), 4)
def wd_load(i):
    st, d = divmod(i, 5)
    return f"s_add_u32 s47, s46, {st*4*40960}\nbuffer_load_dwordx4 {wd_reg(i)}, v{9 if d < 4 else 8}, s[40:43], s47 offen offset:{1024*(d&3)}{SC}"

class VM:
    def __init__(self): self.q = []
    def add(self, tag): self.q.append(tag)
    def wait(self, tags):
        idx = [i for i, t in enumerate(self.q) if t in tags]
        if not idx: return None
        n = len(self.q) - 1 - max(idx)
        self.q = self.q[max(idx) + 1:]
        assert n <= 63
        return f"s_waitcnt vmcnt({n})"

def phase_idle(a, Lg2):
    Lpub = a.label("idle_pub")
    g2_setup(a)
    IW = int(os.environ.get("IW", "62"))
    flag2_check(a)
    def wl(lo, hi):
        for i in range(lo, hi):
            a(wd_load(i))
            if i - lo == 50: a("s_waitcnt vmcnt(30)")
    wl(0, min(IW, NWD1))
    Lrest = a.label("idle_rest")
    PF0, PF1, PF2 = (int(x) for x in os.environ.get("PF", "0,0,0").split(","))
    def pf(lo, hi):
        a(f"""s_lshr_b32 s9, s2, 3
        s_sub_u32 s9, s9, 27
        s_lshl_b32 s9, s9, 2
        s_add_u32 s9, s9, s3
        s_lshl_b32 s9, s9, 12
        s_and_b32 s10, s2, 4
        s_lshl_b32 s10, s10, 9
        s_add_u32 s9, s9, s10
        s_add_u32 s9, s9, {WS['X1S'] + lo*20*4096}
        s_lshl_b32 m0, s3, 11""")
        add64(a, 14, 12, "s9")
        for i in range(lo, hi):
            a(f"global_load_lds_dwordx4 v9, s[14:15]{SC}\nglobal_load_lds_dwordx4 v9, s[14:15] offset:1024{SC}")
            add64(a, 14, 14, 20 * 4096)
    if PF1 > PF0:
        a("s_mul_i32 s9, s3, 40")
        poll(a, 2, "s9", 40, 52)
        a("s_barrier")
        pf(PF0, PF1)
    a(f"""s_sub_u32 s8, s2, 216
    s_mul_i32 s9, s3, 40
    s_add_u32 s9, s9, 1024
    v_add_u32 v55, s9, v0
    v_cmp_gt_u32 vcc, 40, v0
    v_add_u32 v56, {256+242-40}, v0
    s_nop 0
    v_cndmask_b32 v55, v56, v55, vcc""")
    poll(a, 0, None, 50, 52, idxreg=55)
    R, ACC, U = 100, 16, 32
    a(f"""s_barrier
    s_cmp_ge_u32 s8, 32
    s_cbranch_scc1 {Lrest}
    v_lshrrev_b32 v2, 3, v0
    v_lshlrev_b32 v2, 12, v2
    v_and_b32 v3, 7, v0
    v_lshl_add_u32 v2, v3, 4, v2
    s_lshl_b32 s9, s3, 15
    s_lshl_b32 s10, s8, 7
    s_add_u32 s9, s9, s10
    s_add_u32 s9, s9, {WS['X1T']}""")
    add64(a, 14, 12, "s9")
    for i in range(20):
        a(f"global_load_dwordx4 {vr(R+4*i,4)}, v2, s[14:15]{SC}")
        if i < 19: add64(a, 14, 14, 32 * 4096)
    for i in range(20):
        a(f"s_waitcnt vmcnt({19-i})")
        u = (U + 8 * (i & 1)) if i else ACC
        for j in range(4): a(f"v_lshlrev_b32 v{u+2*j}, 16, v{R+4*i+j}\nv_and_b32 v{u+2*j+1}, s69, v{R+4*i+j}")
        for j in range(4):
            if i == 0: a(f"v_pk_mul_f32 {vr(ACC+8+2*j,2)}, {vr(u+2*j,2)}, {vr(u+2*j,2)}")
            else:
                a(f"v_pk_add_f32 {vr(ACC+2*j,2)}, {vr(ACC+2*j,2)}, {vr(u+2*j,2)}")
                a(f"v_pk_fma_f32 {vr(ACC+8+2*j,2)}, {vr(u+2*j,2)}, {vr(u+2*j,2)}, {vr(ACC+8+2*j,2)}")
    a("s_nop 1")
    for b in (ACC, ACC + 8):
        for j in range(4): a(f"v_permlane32_swap_b32 v{b+j}, v{b+4+j}")
    for b in (ACC, ACC + 8):
        for j in range(4): a(f"v_add_f32 v{b+j}, v{b+j}, v{b+4+j}")
    a("s_nop 1")
    for b in (ACC, ACC + 8):
        for j in range(2): a(f"v_permlane16_swap_b32 v{b+j}, v{b+2+j}")
    for b in (ACC, ACC + 8):
        for j in range(2): a(f"v_add_f32 v{b+j}, v{b+j}, v{b+2+j}")
    a("s_nop 1")
    for b in (ACC, ACC + 8):
        for j in range(2): a(f"v_add_f32_dpp v{b+j}, v{b+j}, v{b+j} row_ror:8 row_mask:0xf bank_mask:0xf")
    a(f"""s_lshl_b32 s14, s3, 9
    v_lshrrev_b32 v4, 4, v0
    v_lshlrev_b32 v3, 5, v3
    v_lshl_add_u32 v3, v4, 3, v3
    v_add_u32 v3, s14, v3
    ds_write_b64 v3, {vr(ACC,2)}
    ds_write_b64 v3, {vr(ACC+8,2)} offset:256
    s_waitcnt lgkmcnt(0)
    s_barrier
    s_cmp_lg_u32 s3, 0
    s_cbranch_scc1 {Lpub}
    v_lshlrev_b32 v2, 2, v0""")
    for w in range(4): a(f"ds_read2st64_b32 {vr(16+2*w,2)}, v2 offset0:{2*w} offset1:{2*w+1}")
    a(f"""s_lshl_b32 s14, s8, 9
    s_add_u32 s14, s14, {WS['ST2']}
    v_lshl_add_u32 v2, v0, 3, s14
    s_waitcnt lgkmcnt(0)
    v_pk_add_f32 v[16:17], v[16:17], v[18:19]
    v_pk_add_f32 v[20:21], v[20:21], v[22:23]
    v_pk_add_f32 v[16:17], v[16:17], v[20:21]
    v_mul_f32 v16, {INV640}, v16
    v_mul_f32 v17, {INV640}, v17
    v_fma_f32 v17, -v16, v16, v17
    v_max_f32 v17, 0, v17
    v_add_f32 v17, 0x3727c5ac, v17
    v_rsq_f32 v18, v17
    s_nop 0
    v_mul_f32 v19, -v16, v18
    global_store_dwordx2 v2, v[18:19], s[12:13]{SC}
    {Lpub}:""")
    publish(a, 4, 52)
    a(f"{Lrest}:")
    wl(min(IW, NWD1), NWD1)
    a(f"s_waitcnt vmcnt(0)\ns_branch {Lg2}")

def phase_g1(a):
    Lidle, Lg2 = "g1_idle", a.label("g2")
    g2_setup(a)
    a(f"""s_and_b32 s8, s3, 1
    s_lshl_b32 s7, s6, 1
    s_add_u32 s7, s7, s8
    s_lshr_b32 s4, s3, 1""")
    a(f"""v_lshrrev_b32 v2, 4, v0
    v_and_b32 v3, 15, v0
    v_lshlrev_b32 v4, 1, v2
    v_xor_b32 v4, v4, v3
    v_lshlrev_b32 v2, 12, v2
    s_lshl_b32 s9, s3, 15
    s_lshl_b32 s10, s5, 9
    s_add_u32 s9, s9, s10
    v_add_u32 v2, s9, v2
    v_lshl_add_u32 v5, v4, 4, v2
    v_xor_b32 v4, 8, v4
    v_lshl_add_u32 v6, v4, 4, v2
    v_add_u32 v6, {4*4096}, v6
    s_lshl_b32 s26, s3, 11
    s_lshl_b32 s9, s4, 13""")
    ACC, XF, WF, TA, TW = 128, 64, 32, 10, 18
    xtile_tr_addrs(a, TA, 9)
    a(f"""v_lshrrev_b32 v2, 2, v0
    v_bfe_u32 v3, v0, 3, 2
    v_and_b32 v4, 3, v0
    v_lshlrev_b32 v2, 7, v2
    v_lshl_add_u32 v2, v4, 3, v2
    v_add_u32 v2, {WRING}, v2
    s_lshl_b32 s9, s8, 1
    v_xor_b32 v3, s9, v3
    v_lshl_add_u32 v{TW}, v3, 5, v2
    v_xor_b32 v3, 1, v3
    v_lshl_add_u32 v{TW+1}, v3, 5, v2""")
    add64(a, 14, 12, WS['X1S']); srd(a, 16, 14, 640 * 4096)
    vm = VM()
    def emit(items, nop=False):
        for t, x in items:
            a(x)
            if t: vm.add(t)
            elif nop: a("s_nop 0")
    def xd(k):
        out = []
        for rh in range(2):
            for u in range(2):
                pre = f"s_add_u32 m0, s26, {(k&3)*16384 + rh*(8192-256) + u*1024}" + (f"\ns_mov_b32 s25, {k*0x20000}" if not out else "")
                out += [(None, pre), (("X", k), f"buffer_load_dwordx4 v{5+u}, s[16:19], s25 offen offset:{256*rh}{SC} lds")]
        return out
    def trreads(k):
        x = [(None, f"ds_read_b64_tr_b16 {vr(XF+32*(k&1)+4*m+2*hf,2)}, v{TA+m} offset:{16384*(k&3)+4096*hf}") for m in range(8) for hf in range(2)]
        w = [(None, f"ds_read_b64_tr_b16 {vr(WF+16*(k&1)+4*f+2*hf,2)}, v{TW+(f>>1)} offset:{8192*(k&7)+4096*(f&1)+2048*hf}") for f in range(4) for hf in range(2)]
        return w + x
    for j in range(NWE, NWA): emit(wd_(j), True)
    publish(a, 2, 52, vm=2*(NWA-NWE) + X1LATE)
    a.stamp(10)
    for j in range(NWA, NW0): emit(wd_(j), True)
    flag2_check(a)
    for i in range(NWD0): a(wd_load(i))
    a(f"""s_lshl_b32 s9, s5, 2
    s_lshl_b32 s10, s4, 1
    s_add_u32 s9, s9, s10
    v_add_u32 v20, s9, v0
    s_mul_i32 s10, s6, 37
    s_lshr_b32 s10, s10, 8
    s_mul_i32 s10, s10, 55
    s_lshl_b32 s11, s6, 3
    s_sub_u32 s10, s11, s10
    s_add_u32 s10, s10, {(512 + 160 - 8 - 1024 - 216) & 0xffffffff}
    v_lshl_add_u32 v21, v0, 2, s10
    v_cmp_gt_u32 vcc, 2, v0
    s_lshl_b32 s9, s9, 9
    s_add_u32 s9, s9, {WS['ST2']}
    v_cndmask_b32 v20, v21, v20, vcc
    v_lshlrev_b32 v20, 7, v20
    v_add_u32 v20, {WS['FL'] + (4*256+216)*128}, v20
    v_add_u32 v21, s9, v9
    v_bfe_u32 v22, v0, 3, 2
    v_mul_u32_u24 v22, {1728*4}, v22
    v_and_b32 v23, 7, v0
    v_lshl_add_u32 v22, v23, 4, v22
    s_lshl_b32 s9, s7, 7
    s_add_u32 s9, s9, {WS['CSB']}
    v_add_u32 v22, s9, v22
    v_mov_b32 v24, s70
    v_mov_b32 v25, s71
    s_lshl_b32 s30, s3, 10
    s_add_u32 s30, s30, {STL}
    s_lshl_b32 s31, s3, 9
    s_add_u32 s31, s31, {CSL}
    v_and_b32 v26, 15, v0
    v_lshl_add_u32 v26, v26, 3, s30
    v_lshrrev_b32 v27, 4, v0
    v_lshl_add_u32 v27, v27, 4, s31
    s_mul_i32 s9, s3, 40""")
    a(f"""s_lshr_b32 s10, s2, 3
    s_and_b32 s10, s10, 1
    s_lshl_b32 s10, s10, 2
    s_add_u32 s10, s10, s3
    s_lshl_b32 s10, s10, 12
    v_lshl_add_u32 v30, v0, 6, s10
    v_min_u32 v30, code_end - g1_tail - 4, v30""")
    a.stamp(11)
    if "lazy" in EXP: a("s_mul_i32 s9, s3, 10"); poll(a, 2, "s9", 10, 52)
    elif "lazy2" in EXP: a("s_mul_i32 s9, s3, 20"); poll(a, 2, "s9", 20, 52)
    else: poll(a, 2, "s9", 40, 52)
    vm.q = []
    a("s_barrier")
    a.stamp(12)
    XE = int(os.environ.get("XE", "3"))
    for j in range(XE): emit(xd(j), True)
    emit(trreads(0)[:8])
    publish(a, 4, 28, nosync=True)
    a(vm.wait([("X", 0)]) + "\ns_barrier")
    emit(trreads(0)[8:])
    for j in range(XE, 4): emit(xd(j), True)
    a.stamp(13)
    wdi = NWD0; wnext = NW0
    fl = f"s_mov_b64 exec, 0xf\nglobal_load_dwordx2 v[24:25], v20, s[12:13]{SC}\ns_mov_b64 exec, -1"
    STV, CB = 32, 64
    for k in range(20):
        w = vm.wait([("W", k + 1), ("X", k + 1)] + (["S"] if k == 19 else []) + (["G"] if k == HK3 else []))
        a("s_waitcnt lgkmcnt(0)")
        if w: a(w)
        if k < 19: a("s_barrier")
        if "g1stamp" in EXP and k % 2 == 0 and k: a.stamp(k // 2)
        mem = []
        if k == HK3:
            Lok, Lsl = a.label("h3_ok"), a.label("h3_slow")
            a(f"""s_mov_b32 s74, 0x100000
            {Lsl}:
            v_cmp_ne_u64 vcc, s[70:71], v[24:25]
            s_cbranch_vccz {Lok}
            {fl}
            s_waitcnt vmcnt(0)
            s_sub_u32 s74, s74, 1
            s_cbranch_scc0 {Lsl}
            {Lok}:""")
            mem += [(None, "s_mov_b32 m0, s30"), ("S", f"global_load_lds_dwordx4 v21, s[12:13]{SC}"),
                    (None, "s_mov_b32 m0, s31"), ("S", f"s_mov_b32 exec_hi, 0\nglobal_load_lds_dwordx4 v22, s[12:13]{SC}\ns_mov_b64 exec, -1")]
        if k == HK3F: mem.append(("G", fl))
        if k == CPF:
            mem += [(None, f"s_getpc_b64 s[14:15]\ns_add_u32 s14, s14, g1_tail - .\ns_addc_u32 s15, s15, 0"), ("P", "global_load_dword v31, v30, s[14:15]")]
        if k == 18: a("g1_tail:")
        if k < 19: rd = trreads(k + 1)
        else:
            rd = [(None, f"ds_read_b64 {vr(STV+2*m,2)}, v26 offset:{128*m}") for m in range(8)]
            rd += [(None, f"ds_read_b128 {vr(CB+16*h+4*mt_,4)}, v27 offset:{128*mt_+64*h}") for h in range(2) for mt_ in range(4)]
        if k + 4 < 20: mem += xd(k + 4)
        if wnext < 20 and k >= WSTART: mem += wd_(wnext); wnext += 1
        cnt = lambda: sum(1 for e in mem if e[0] is not None)
        lim = LEVEL if k < 19 else 99
        while wdi < NWD1 and cnt() < lim and k >= WD_FIRST: mem.append((("D", wdi), wd_load(wdi))); wdi += 1
        slots = [[] for _ in range(32)]
        if SPREAD:
            groups = []; pend = []
            for e in mem:
                if e[0] is None: pend.append(e)
                else: groups.append((pend, e)); pend = []
            n = len(groups)
            pos = [1 + (i * 31) // n for i in range(n)] if n else []
            for (pre, e), p in zip(groups, pos):
                slots[p - 1] += pre; slots[p].insert(0, e)
            free = [i for i in range(RDEND) if i not in pos]
            order = free + [p for p in pos if p < RDEND] + free
            for e, p in zip(rd, sorted(order[:len(rd)])): slots[p].insert(1 if p in pos else 0, e)
        else:
            for i, e in enumerate(rd): slots[i].append(e)
            for i, e in enumerate(mem): slots[(32 - len(mem) + i) if len(mem) <= 20 else None].append(e)
        j = 0
        MO = os.environ.get("MORD", "m")
        if MO == "m": order_ = [(m, f) for m in range(8) for f in range(4)]
        elif MO == "ms": order_ = [(m, f if m % 2 == 0 else 3 - f) for m in range(8) for f in range(4)]
        elif MO == "f": order_ = [(m, f) for f in range(4) for m in range(8)]
        else: order_ = [(m if f % 2 == 0 else 7 - m, f) for f in range(4) for m in range(8)]
        for m, f in order_:
            if True:
                d = vr(ACC + 32 * f + 4 * m, 4)
                if "g1nomfma" in EXP: a("s_nop 0")
                else: a(f"v_mfma_f32_16x16x32_bf16 {d}, {vr(WF+16*(k&1)+4*f,4)}, {vr(XF+32*(k&1)+4*m,4)}, {d if k else '0'}")
                if "g1noload" in EXP: slots[j] = [e for e in slots[j] if "buffer_load" not in e[1]]
                if "g1notr" in EXP: slots[j] = [e for e in slots[j] if "_tr_" not in e[1]]
                emit(slots[j]); j += 1
    assert wdi == NWD1
    a.stamp(14)
    a(f"""s_lshl_b32 s9, s5, 1
    s_add_u32 s9, s9, s4
    s_mul_i32 s9, s9, {2*54}
    s_add_u32 s9, s9, s7
    s_lshl_b32 s9, s9, 12
    s_add_u32 s9, s9, {WS['HH']}""")
    add64(a, 14, 12, "s9"); add64(a, 28, 14, 54 * 4096)
    a("s_waitcnt lgkmcnt(0)")
    for m in range(8):
        st_ = vr(STV + 2 * m, 2); o = 96 + 4 * (m & 3)
        for h in range(2):
            G, U = ACC + 64 * h + 4 * m, ACC + 64 * h + 32 + 4 * m
            c = CB + 16 * h; t = 112 + 8 * h
            for p in range(2):
                a(f"v_pk_fma_f32 {vr(t+2*p,2)}, {vr(c+2*p,2)}, {st_}, {vr(c+4+2*p,2)} op_sel:[0,1,0] op_sel_hi:[1,1,1]")
                a(f"v_pk_fma_f32 {vr(t+4+2*p,2)}, {vr(c+8+2*p,2)}, {st_}, {vr(c+12+2*p,2)} op_sel:[0,1,0] op_sel_hi:[1,1,1]")
            for p in range(2):
                a(f"v_pk_fma_f32 {vr(G+2*p,2)}, {vr(G+2*p,2)}, {st_}, {vr(t+2*p,2)} op_sel_hi:[1,0,1]")
                a(f"v_pk_fma_f32 {vr(U+2*p,2)}, {vr(U+2*p,2)}, {st_}, {vr(t+4+2*p,2)} op_sel_hi:[1,0,1]")
            for r in range(4): a(f"v_max_f32 v{G+r}, 0, v{G+r}")
            for p in range(2): a(f"v_pk_mul_f32 {vr(G+2*p,2)}, {vr(G+2*p,2)}, {vr(U+2*p,2)}")
            for p in range(2): a(f"v_cvt_pk_bf16_f32 v{o+2*h+p}, v{G+2*p}, v{G+2*p+1}")
        sb_ = 14 if m < 4 else 28
        a(f"global_store_dwordx4 v9, {vr(o,4)}, s[{sb_}:{sb_+1}] offset:{1024*(m&3)}{SC}")
    a(f"s_branch {Lg2}\n{Lidle}:")
    phase_idle(a, Lg2)
    a(f"{Lg2}:")

def phase_g2(a):
    a.stamp(15)
    n1 = NWD1
    for i in range(n1, n1 + NWD2): a(wd_load(i))
    a(f"s_load_dwordx2 s[30:31], s[0:1], {KA['out']}")
    for sg in range(4):
        a(f"""s_add_u32 s7, s3, {sg}
        s_and_b32 s7, s7, 3
        s_lshl_b32 s8, s7, 10
        v_add_u32 v{10+sg}, s8, v9""")
        if sg: a(f"s_mul_i32 s8, s7, {15*1024}\ns_add_u32 s8, s8, {(sg-1)*5*1024}\nv_add_u32 v{13+sg}, s8, v9")
    a(f"s_mul_i32 s8, s44, {54*4096}\ns_add_u32 s8, s8, {WS['HH']}")
    add64(a, 14, 12, "s8"); srd(a, 16, 14, 54 * 4096)
    ACC, XR, GB, SEL, HB = 152, 20, 40, 60, 64
    NB = 5
    a(f"""v_and_b32 v2, 15, v0
    v_lshrrev_b32 v3, 4, v0
    v_lshlrev_b32 v4, 12, v2
    v_lshl_add_u32 v4, v3, 4, v4
    v_lshlrev_b32 v18, 4, v3
    s_mul_i32 s8, s45, {80*4096}
    s_lshl_b32 s9, s44, 7
    s_add_u32 s8, s8, s9
    s_lshr_b32 s9, s3, 1
    s_lshl_b32 s9, s9, 6
    s_add_u32 s8, s8, s9
    s_add_u32 s8, s8, {WS['X1T']}
    s_add_u32 s14, s12, s8
    s_addc_u32 s15, s13, 0
    s_mul_i32 s8, s45, 320
    s_add_u32 s8, s8, {WS['MOD'] + 5*2560}
    s_add_u32 s26, s12, s8
    s_addc_u32 s27, s13, 0
    s_and_b32 s8, s3, 1
    s_lshl_b32 s8, s8, 4
    v_lshlrev_b32 v5, 3, v3
    v_sub_u32 v5, v2, v5
    v_add_u32 v5, s8, v5
    v_mov_b32 v6, 0x3f80
    v_mov_b32 v7, 0x3f800000""")
    for p in range(4):
        a(f"""v_cmp_eq_u32 vcc, {2*p}, v5
        v_cmp_eq_u32 s[28:29], {2*p+1}, v5
        s_nop 1
        v_cndmask_b32 v{SEL+p}, 0, v6, vcc
        v_cndmask_b32 v{SEL+p}, v{SEL+p}, v7, s[28:29]""")
    a(f"""s_bfe_u32 s8, s44, 0x20002
    v_lshl_add_u32 v147, v0, 2, s8
    v_mul_u32_u24 v146, 2428, v147
    v_lshrrev_b32 v146, 16, v146
    v_lshlrev_b32 v147, 3, v147
    v_mul_u32_u24 v145, {8*27-1}, v146
    v_sub_u32 v147, v147, v145
    s_lshr_b32 s8, s44, 4
    s_lshl_b32 s8, s8, 2
    v_add_u32 v147, s8, v147
    s_lshl_b32 s24, s3, 12""")
    publish(a, 3, 148, vm=NWD2)
    a.stamp(16)
    for i in range(n1 + NWD2, 70): a(wd_load(i))
    a(f"""v_lshrrev_b32 v4, 2, v0
    v_lshlrev_b32 v4, 12, v4
    v_bfe_u32 v19, v0, 4, 2
    v_xor_b32 v19, v19, v0
    v_and_b32 v19, 3, v19
    v_lshl_add_u32 v4, v19, 4, v4
    s_mul_i32 s9, s3, 5120
    s_add_u32 s9, s9, {W3L}
    v_bfe_u32 v19, v0, 2, 2
    v_xor_b32 v19, v19, v3
    v_lshl_add_u32 v19, v2, 2, v19
    v_lshl_add_u32 v19, v19, 4, s9""")
    late = [(99, f"s_add_u32 m0, s9, {1024*d}\ns_nop 0\nglobal_load_lds_dwordx4 v4, s[14:15]{SC}\ns_add_u32 s14, s14, 0x10000\ns_addc_u32 s15, s15, 0") for d in range(5)]
    late += [(99, f"s_lshl_b32 s8, s3, 9\ns_add_u32 m0, s8, {CSL}\nv_add_u32 v18, m0, v18\ns_mov_b64 exec, 0xfffff\nglobal_load_lds_dwordx4 v9, s[26:27]{SC}\ns_mov_b64 exec, -1")]
    if not XLATE:
        for e in late: a(e[1])
        late = []
    OA, OB = (148, 149, 150), (151, 1, 4)
    a(f"""s_mul_i32 s8, s3, 2816
    s_add_u32 s8, s8, 65536
    v_mul_u32_u24 v5, 176, v2
    v_lshl_add_u32 v5, v3, 3, v5
    v_add_u32 v5, s8, v5""")
    for i in range(3):
        a(f"""v_add_u32 v6, {64*i}, v0
        v_min_u32 v6, 159, v6
        v_mul_u32_u24 v7, 6554, v6
        v_lshrrev_b32 v7, 16, v7
        v_lshlrev_b32 v6, 4, v6
        v_lshl_add_u32 v{OA[i]}, v7, 4, v6
        v_add_u32 v{OA[i]}, s8, v{OA[i]}
        v_mul_u32_u24 v7, {1280-160}, v7
        v_add_u32 v{OB[i]}, v6, v7""")
    a(f"""s_mul_i32 s8, s3, {15*1024}
    v_add_u32 v17, s8, v9
    s_lshl_b32 s8, s44, 2
    s_add_u32 s8, s8, s3
    s_mul_i32 s8, s8, {16*1280}
    s_mul_i32 s9, s45, 160
    s_add_u32 s8, s8, s9
    s_waitcnt lgkmcnt(0)""")
    add64(a, 30, 30, "s8")
    poll(a, 3, None, 27, 144, idxreg=147)
    a.stamp(17)
    if "opf" in EXP:
        a(f"""s_lshl_b32 s8, s44, 2
        s_add_u32 s8, s8, s3
        s_mul_i32 s8, s8, {16*1280}
        s_mul_i32 s9, s45, 160
        s_add_u32 s8, s8, s9
        v_mul_u32_u24 v19, 1280, v2
        v_mul_u32_u24 v145, 52, v3
        v_add3_u32 v19, v19, v145, s8
        s_waitcnt lgkmcnt(0)
        global_load_dword v145, v19, s[30:31]""")
    vm = VM()
    def hl(st):
        return [(st, (f"s_add_u32 s25, s24, {st*16384}\n" if sg == 0 else "") + f"buffer_load_dwordx4 {vr(HB+16*(st%NB)+4*sg,4)}, v{10+sg}, s[16:19], s25 offen{SC}") for sg in range(4)]
    rest = []
    def emit(e):
        if "g2noload" in EXP and "s[16:19]" in e[1] and e[0] >= 4: return
        if "g2norest" in EXP and "s[16:19]" not in e[1]: return
        a(e[1]); vm.add(e[0])
    for st in range(NB - 1):
        for e in hl(st): emit(e)
    for d in range(5): a(f"ds_read_b128 {vr(128+4*d,4)}, v19 offset:{1024*d}")
    for d in range(5): a(f"ds_read_b128 {vr(GB+4*d,4)}, v18 offset:{64*d}")
    a("s_waitcnt lgkmcnt(5)")
    for d in range(5): a(f"v_mfma_f32_16x16x32_bf16 {vr(20+4*d,4)}, {vr(128+4*d,4)}, {vr(SEL,4)}, 0")
    Lskip, Ljoin = a.label("g2_skip"), a.label("g2_join")
    a.retry = [f"{Lskip}:\n" + "\n".join(f"ds_write_b128 v{13+sg}, {vr(ACC+20*sg+4*d,4)} offset:{1024*d}" for sg in range(1, 4) for d in range(5)) + f"\ns_branch {Ljoin}"]
    for st in range(14):
        if st == 13: a(f"s_cmp_ge_u32 s3, 2\ns_cbranch_scc1 {Lskip}")
        a(vm.wait(list(range(st + 1))) or "s_nop 0")
        if "g2stamp" in EXP and st in (0, 1, 2, 4, 6, 8, 10, 12): a.stamp({0: 1, 1: 2, 2: 3, 4: 4, 6: 5, 8: 6, 10: 7, 12: 8}[st])
        ex = hl(st + NB - 1) if st + NB - 1 < 14 else []
        if st >= 10: ex += late[:4]; late = late[4:]
        for sg in ((0, 1, 2, 3) if st < 13 else (1, 2, 3, 0)):
            for d in range(5):
                t = vr(ACC + 20 * sg + 4 * d, 4)
                if "g2nomfma" not in EXP: a(f"v_mfma_f32_16x16x32_bf16 {t}, {wd_reg(5*st+d)}, {vr(HB+16*(st%NB)+4*sg,4)}, {t if st else '0'}")
                if ex and (d == G2POS or not SPREAD): emit(ex.pop(0))
                if st == 13 and sg in (3, 0): a(f"ds_write_b128 v{14 if sg == 3 else 15}, {vr(ACC+20*(1 if sg == 3 else 2)+4*d,4)} offset:{1024*d}")
        assert not ex
    assert not rest
    a.stamp(18)
    XD = 20
    for d in range(5): a(f"ds_write_b128 v16, {vr(ACC+60+4*d,4)} offset:{1024*d}")
    a(f"{Ljoin}:\ns_waitcnt lgkmcnt(0)")
    if "fstamp" in EXP: a.stamp(1)
    a("s_barrier")
    if "fstamp" in EXP: a.stamp(2)
    for d in range(5):
        for sg in range(1, 4): a(f"ds_read_b128 {vr(ACC+20*sg+4*d,4)}, v17 offset:{1024*(5*(sg-1)+d)}")
    for d in range(5):
        a(f"s_waitcnt lgkmcnt({12-3*d + (d if OUTT else 0)})")
        t = ACC + 4 * d
        for p in range(2):
            a(f"v_pk_add_f32 {vr(t+2*p,2)}, {vr(t+2*p,2)}, {vr(t+20+2*p,2)}")
            a(f"v_pk_add_f32 {vr(t+40+2*p,2)}, {vr(t+40+2*p,2)}, {vr(t+60+2*p,2)}")
        for p in range(2): a(f"v_pk_add_f32 {vr(t+2*p,2)}, {vr(t+2*p,2)}, {vr(t+40+2*p,2)}")
        for p in range(2): a(f"v_pk_fma_f32 {vr(t+2*p,2)}, {vr(t+2*p,2)}, {vr(GB+4*d+2*p,2)}, {vr(XD+4*d+2*p,2)}")
        a(f"v_cvt_pk_bf16_f32 v{t}, v{t}, v{t+1}\nv_cvt_pk_bf16_f32 v{t+1}, v{t+2}, v{t+3}")
        if OUTT: a(f"ds_write_b64 v5, {vr(t,2)} offset:{32*d}")
        else: a(f"global_store_dwordx2 v4, {vr(t,2)}, s[30:31] offset:{32*d}")
    if OUTT:
        for i in range(3): a(f"ds_read_b128 {vr(100+4*i,4)}, v{OA[i]}")
        for i in range(3):
            a(f"s_waitcnt lgkmcnt({2-i})")
            if i == 2: a("s_mov_b32 exec_hi, 0")
            a(f"global_store_dwordx4 v{OB[i]}, {vr(100+4*i,4)}, s[30:31]")

def build():
    a = A()
    hdr = open("cdna_kernels/" + NAME + ".s.ref").read().split("; Override launch")[0]
    a(f'.amdgcn_target "amdgcn-amd-amdhsa--gfx950"\n.text\n.globl {KNAME}\n.p2align 8\n.type {KNAME},@function\n{KNAME}:')
    Lend, Laux, Lg1, Lnt = a.label("end"), a.label("aux"), a.label("g1"), a.label("notag")
    if DIAG:
        for i in range(NSTAMP): a(f"s_mov_b32 s{48+i}, 0")
    a.stamp(0)
    a(f"""s_cmp_ge_u32 s2, 256
    s_cbranch_scc1 {Lend}
    s_load_dwordx2 s[12:13], s[0:1], {KA['ws']}
    s_load_dwordx2 s[72:73], s[0:1], {KA['dbg']}
    v_lshrrev_b32 v1, 6, v0
    v_and_b32 v0, 63, v0
    v_readfirstlane_b32 s3, v1
    s_mov_b32 s69, 0xffff0000
    s_cmp_lg_u32 s2, 255
    s_cbranch_scc1 {Lnt}
    s_cmp_lg_u32 s3, 0
    s_cbranch_scc1 {Lnt}
    s_memrealtime s[70:71]
    v_mov_b32 v4, 0
    s_waitcnt lgkmcnt(0)
    s_or_b32 s70, s70, 1
    v_mov_b32 v2, s70
    v_mov_b32 v3, s71
    s_mov_b64 exec, 1
    global_store_dwordx2 v4, v[2:3], s[72:73]{SC}
    s_mov_b64 exec, -1
    {Lnt}:""")
    if "tlb" in EXP:
        TSH = int(os.environ.get("TSH", "20"))
        Ltl = a.label("notouch")
        npg = (_off >> TSH) + 1
        assert npg <= 64
        a(f"""s_cmp_lg_u32 s3, 1
        s_cbranch_scc1 {Ltl}
        s_load_dwordx4 s[4:7], s[0:1], {KA['wg']}
        s_load_dwordx2 s[8:9], s[0:1], {KA['wd']}
        s_load_dwordx2 s[10:11], s[0:1], {KA['out']}
        v_min_u32 v2, {npg-1}, v0
        v_lshlrev_b32 v2, {TSH}, v2
        v_min_u32 v3, 0x200000, v2
        s_waitcnt lgkmcnt(0)
        global_load_dword v251, v2, s[12:13]{NT}
        global_load_dword v251, v3, s[4:5]{NT}
        global_load_dword v251, v3, s[6:7]{NT}
        global_load_dword v251, v3, s[8:9]{NT}
        global_load_dword v251, v3, s[10:11]{NT}
        {Ltl}:""")
    a(f"""s_cmp_ge_u32 s2, 160
    s_cbranch_scc1 {Laux}""")
    phase_conv(a, Lg1)
    a(f"{Laux}:")
    phase_aux(a, Lg1)
    a(f"{Lg1}:")
    phase_g1(a)
    phase_g2(a)
    if DIAG:
        if "fstamp" in EXP: a.stamp(3)
        a("s_waitcnt vmcnt(0)")
        a.stamp(19)
        AMP = os.environ.get("AMP", "")
        if AMP:
            i, wgsel = (int(x) for x in AMP.split(":"))
            Lsp, Lsk = a.label("spin"), a.label("nospin")
            a(f"""s_cmp_lg_u32 s2, {wgsel}
            s_cbranch_scc1 {Lsk}
            s_sub_u32 s4, s{48+i}, s48
            s_lshl_b32 s4, s4, 3
            {Lsp}:
            s_memrealtime s[76:77]
            s_waitcnt lgkmcnt(0)
            s_sub_u32 s5, s76, s67
            s_cmp_lt_u32 s5, s4
            s_cbranch_scc1 {Lsp}
            {Lsk}:""")
        a(f"""s_lshl_b32 s4, s2, 2
        s_add_u32 s4, s4, s3
        s_lshl_b32 s4, s4, 7
        s_add_u32 s4, s4, {TS_OFF}
        v_mov_b32 v0, s4
        s_mov_b64 exec, 1""")
        for i in range(NSTAMP): a(f"v_mov_b32 v2, s{48+i}\nglobal_store_dword v0, v2, s[12:13] offset:{4*i}\ns_nop 1")
    a(f"{Lend}:\ns_endpgm")
    for r in a.retry: a(r)
    a("code_end:")
    kd = f""".section .rodata,"a"
.p2align 6
.amdhsa_kernel {KNAME}
  .amdhsa_next_free_vgpr 512
  .amdhsa_next_free_sgpr 102
  .amdhsa_accum_offset 256
  .amdhsa_group_segment_fixed_size 0
  .amdhsa_kernarg_size 120
  .amdhsa_user_sgpr_count 2
  .amdhsa_user_sgpr_kernarg_segment_ptr 1
  .amdhsa_system_sgpr_workgroup_id_x 1
.end_amdhsa_kernel
"""
    return hdr + f"; @launch grid=(256,1,1) block=(256,1,1) lds={LDS_BYTES}\n" + a.text() + kd

if __name__ == "__main__":
    open(sys.argv[1] if len(sys.argv) > 1 else "p.s", "w").write(build())
```

```python
import sys, os
NAME = "adaLN_cond__ssm_conv_h3__glu_gated_reglu__prompt"
KNAME = NAME + "_kernel"
S, D, F = 2048, 640, 1728
KA = dict(x=0, k=8, v=16, shift=24, ssm=32, ssmD=40, bx=48, wg=56, wu=64, wd=72, c=80, wmod=88, out=96, dbg=104, ws=112)
WS = {}
_off = 0
def alloc(name, n):
    global _off
    WS[name] = _off
    _off += (n + 4095) // 4096 * 4096
alloc("FL", 6 * 256 * 128)
alloc("FR", 3 * 256 * 1024)
alloc("KVT", 640 * 4096 + 4096)
alloc("XTT", 640 * 4096)
alloc("ST", 2 * 2048 * 4)
alloc("MOD", 3840 * 4)
alloc("X1T", 640 * 4096)
alloc("X1S", 640 * 4096)
alloc("ST2", 2048 * 8)
alloc("CSB", 4 * 1728 * 4)
alloc("WD", 54 * 40 * 1024)
alloc("HH", 32 * 54 * 4096)
DIAG = bool(int(os.environ.get("DIAG", "0")))
EXP = os.environ.get("EXP", "").split(",")
TS_OFF = 64 << 20
NSTAMP = 20
SLEEP = int(os.environ.get("SLEEP", "1"))
FLMASK = os.environ.get("FLMASK", "0xffff")
REP = os.environ.get("REP", "01")
NT = " nt"
SC = " sc1"
INV640 = f"{1.0/640:#.9g}"

class A:
    def __init__(self):
        self.l = []; self.n = 0
    def __call__(self, s):
        for x in s.strip("\n").split("\n"):
            x = x.strip()
            if x: self.l.append(("" if x.endswith(":") else "    ") + x)
    def label(self, p="L"):
        self.n += 1
        return f"{p}_{self.n}"
    def stamp(self, i):
        if DIAG: self(f"{'s_memtime' if 'cyc' in EXP else 's_memrealtime'} s[76:77]\ns_waitcnt lgkmcnt(0)\ns_mov_b32 s{48+i}, s76")
    def text(self): return "\n".join(self.l) + "\n"

def vr(b, n=1, p="v"): return f"{p}{b}" if n == 1 else f"{p}[{b}:{b+n-1}]"
def ar(b, n=1): return vr(b, n, "a")
def srd(a, dst, base, nbytes):
    a(f"s_mov_b32 s{dst}, s{base}\ns_and_b32 s{dst+1}, s{base+1}, 0xffff\ns_mov_b32 s{dst+2}, {nbytes}\ns_mov_b32 s{dst+3}, 0x20000")
def add64(a, dst, base, off):
    a(f"s_add_u32 s{dst}, s{base}, {off}\ns_addc_u32 s{dst+1}, s{base+1}, 0")
def dma(a, voff, sbase, m0, extra=""):
    a(f"s_mov_b32 m0, {m0}\ns_nop 0\nglobal_load_lds_dwordx4 v{voff}, s[{sbase}:{sbase+1}]{extra}")
def rbf16(a, dst, src):
    a(f"v_cvt_pk_bf16_f32 v{dst}, v{src}, v{src}\nv_lshlrev_b32 v{dst}, 16, v{dst}")

def get_tag(a, vt):
    L, Ld = a.label("tag"), a.label("tagd")
    a(f"""s_mov_b32 s74, 0x100000
    v_mov_b32 v{vt+2}, 0
    {L}:
    s_mov_b64 exec, 1
    global_load_dwordx2 {vr(vt,2)}, v{vt+2}, s[72:73]{SC}
    s_mov_b64 exec, -1
    s_waitcnt vmcnt(0)
    v_readfirstlane_b32 s70, v{vt}
    v_readfirstlane_b32 s71, v{vt+1}
    s_sub_u32 s74, s74, 1
    s_cbranch_scc1 {Ld}
    s_cmp_eq_u64 s[70:71], 0
    s_cbranch_scc1 {L}
    {Ld}:""")

def publish(a, phase, vt, vm=0, nosync=False):
    L = a.label("pub")
    if not nosync: a(f"s_waitcnt vmcnt({vm})\ns_barrier")
    a(f"""s_cmp_lg_u32 s3, 0
    s_cbranch_scc1 {L}
    s_lshl_b32 s74, s2, 7
    s_add_u32 s74, s74, {WS['FL'] + phase*256*128}
    v_lshl_add_u32 v{vt+2}, v0, 3, s74
    v_mov_b32 v{vt}, s70
    v_mov_b32 v{vt+1}, s71
    s_mov_b64 exec, {FLMASK}
    global_store_dwordx2 v{vt+2}, {vr(vt,2)}, s[12:13]{SC}
    s_mov_b64 exec, -1
    {L}:""")

def publish_rep(a, fs, vt, vm=0):
    L = a.label("pubr")
    a(f"""s_waitcnt vmcnt({vm})
    s_barrier
    s_cmp_lg_u32 s3, 0
    s_cbranch_scc1 {L}
    s_lshl_b32 s74, s2, 10
    s_add_u32 s74, s74, {WS['FR'] + fs*256*1024}
    v_lshl_add_u32 v{vt+4}, v0, 4, s74
    v_mov_b32 v{vt}, s70
    v_mov_b32 v{vt+1}, s71
    v_mov_b32 v{vt+2}, s70
    v_mov_b32 v{vt+3}, s71
    global_store_dwordx4 v{vt+4}, {vr(vt,4)}, s[12:13]{SC}
    s_nop 1
    {L}:""")

def poll(a, phase, first, count, vt, idxreg=None, rep=None):
    L, Ld = a.label("poll"), a.label("polld")
    if idxreg is None:
        a(f"v_add_u32 v{vt+2}, {first}, v0")
        idxreg = vt + 2
    if rep is None:
        a(f"v_lshlrev_b32 v{vt+2}, 7, v{idxreg}\nv_add_u32 v{vt+2}, {WS['FL'] + phase*256*128}, v{vt+2}")
    else:
        a(f"s_and_b32 s74, s2, 7\ns_lshl_b32 s74, s74, 7\ns_add_u32 s74, s74, {WS['FR'] + rep*256*1024}\nv_lshl_add_u32 v{vt+2}, v{idxreg}, 10, s74")
    a("s_mov_b32 s74, 0x100000")
    if count < 64: a(f"s_mov_b64 exec, {(1 << count) - 1:#x}" if count <= 31 else f"s_mov_b32 exec_hi, {(1 << (count - 32)) - 1:#x}")
    a(f"""{L}:
    global_load_dwordx2 {vr(vt,2)}, v{vt+2}, s[12:13]{SC}
    s_waitcnt vmcnt(0)
    v_cmp_ne_u64 vcc, s[70:71], {vr(vt,2)}
    s_and_b64 exec, exec, vcc
    s_cbranch_execz {Ld}
    s_sleep {SLEEP}
    s_sub_u32 s74, s74, 1
    s_cbranch_scc0 {L}
    {Ld}:
    s_mov_b64 exec, -1""")

def poll_multi(a, phase, count, vt):
    L, Ld = a.label("pollm"), a.label("pollmd")
    a(f"""v_lshlrev_b32 v{vt+6}, 7, v0
    v_add_u32 v{vt+6}, {WS['FL'] + phase*256*128}, v{vt+6}
    v_add_u32 v{vt+7}, {64*128}, v{vt+6}
    v_add_u32 v{vt+8}, {128*128}, v{vt+6}
    s_mov_b64 s[38:39], -1
    s_mov_b64 s[10:11], -1
    s_mov_b32 s28, {(1 << (count - 128)) - 1:#x}
    s_mov_b32 s29, 0
    s_mov_b32 s74, 0x100000
    {L}:""")
    for i, m in enumerate(("s[38:39]", "s[10:11]", "s[28:29]")):
        Ls = a.label("pm")
        a(f"s_mov_b64 exec, {m}\ns_cbranch_execz {Ls}\nglobal_load_dwordx2 {vr(vt+2*i,2)}, v{vt+6+i}, s[12:13]{SC}\n{Ls}:")
    a("s_mov_b64 exec, -1\ns_waitcnt vmcnt(0)")
    for i, m in enumerate(("s[38:39]", "s[10:11]", "s[28:29]")):
        a(f"v_cmp_ne_u64 vcc, s[70:71], {vr(vt+2*i,2)}\ns_and_b64 {m}, {m}, vcc")
    a(f"""s_or_b64 vcc, s[38:39], s[10:11]
    s_or_b64 vcc, vcc, s[28:29]
    s_cbranch_scc0 {Ld}
    s_sleep {SLEEP}
    s_sub_u32 s74, s74, 1
    s_cbranch_scc0 {L}
    {Ld}:""")

def xtile_tr_addrs(a, dst, base_sgpr=None):
    a("""v_lshrrev_b32 v2, 2, v0
    v_and_b32 v3, 7, v2
    v_lshlrev_b32 v3, 1, v3
    v_bfe_u32 v4, v0, 1, 1
    v_or_b32 v3, v3, v4
    v_lshlrev_b32 v2, 8, v2
    v_and_b32 v4, 1, v0
    v_lshl_add_u32 v2, v4, 3, v2""")
    if base_sgpr is not None: a(f"v_add_u32 v2, s{base_sgpr}, v2")
    for m in range(8): a(f"v_xor_b32 v4, {2*m}, v3\nv_lshl_add_u32 v{dst+m}, v4, 4, v2")

def stats_issue(a, R, sx, srow):
    a(f"""s_lshl_b32 s14, s3, 4
    s_add_u32 s14, s14, s{srow}
    s_mul_i32 s14, s14, 1280
    v_lshrrev_b32 v{R+80}, 4, v0
    v_mul_u32_u24 v{R+80}, {1280-256}, v{R+80}
    v_lshl_add_u32 v{R+80}, v0, 4, v{R+80}""")
    add64(a, 14, sx, "s14")
    for gq in range(4):
        for i in range(5): a(f"global_load_dwordx4 {vr(R+20*gq+4*i,4)}, v{R+80}, s[14:15] offset:{256*i}{NT}")
        if gq < 3: add64(a, 14, 14, 4 * 1280)
def stats_compute(a, R, srow):
    T = R + 80
    a("s_mov_b32 s14, 0x3f803f80")
    for half in range(2):
        a(f"s_waitcnt vmcnt({11 if half == 0 else 1})")
        for i in range(20):
            for gq in (2 * half, 2 * half + 1):
                a(f"v_dot2_f32_bf16 v{T+2*gq}, v{R+20*gq+i}, s14, {'0' if i == 0 else f'v{T+2*gq}'}")
                a(f"v_dot2_f32_bf16 v{T+2*gq+1}, v{R+20*gq+i}, v{R+20*gq+i}, {'0' if i == 0 else f'v{T+2*gq+1}'}")
    a("s_nop 2")
    for rot in (8, 4, 2, 1):
        for j in range(8): a(f"v_add_f32_dpp v{T+j}, v{T+j}, v{T+j} row_ror:{rot} row_mask:0xf bank_mask:0xf")
    a(f"""v_and_b32 v{R}, 3, v0
    v_cmp_eq_u32 vcc, 1, v{R}
    v_cmp_eq_u32 s[14:15], 2, v{R}
    v_cmp_eq_u32 s[16:17], 3, v{R}
    v_lshrrev_b32 v{R+1}, 4, v0
    v_lshl_add_u32 v{R}, v{R}, 2, v{R+1}
    v_cndmask_b32 v{T}, v{T}, v{T+2}, vcc
    v_cndmask_b32 v{T+1}, v{T+1}, v{T+3}, vcc
    v_cndmask_b32 v{T}, v{T}, v{T+4}, s[14:15]
    v_cndmask_b32 v{T+1}, v{T+1}, v{T+5}, s[14:15]
    v_cndmask_b32 v{T}, v{T}, v{T+6}, s[16:17]
    v_cndmask_b32 v{T+1}, v{T+1}, v{T+7}, s[16:17]
    v_mul_f32 v{T}, {INV640}, v{T}
    v_mul_f32 v{T+1}, {INV640}, v{T+1}
    v_fma_f32 v{T+1}, -v{T}, v{T}, v{T+1}
    v_max_f32 v{T+1}, 0, v{T+1}
    v_add_f32 v{T+1}, 0x3727c5ac, v{T+1}
    v_rsq_f32 v{T+1}, v{T+1}
    s_lshl_b32 s14, s3, 4
    s_add_u32 s14, s14, s{srow}
    s_lshl_b32 s14, s14, 3
    s_add_u32 s14, s14, {WS['ST']}
    v_mul_f32 v{T}, -v{T}, v{T+1}
    v_and_b32 v{R+1}, 4, v0
    v_cmp_eq_u32 vcc, 0, v{R+1}
    v_lshl_add_u32 v{R}, v{R}, 2, s14
    v_lshl_add_u32 v{R}, v{R+1}, 4, v{R}
    v_cndmask_b32 v{T}, v{T}, v{T+1}, vcc
    s_mov_b32 exec_lo, 0xff00ff
    s_mov_b32 exec_hi, 0xff00ff
    global_store_dword v{R}, v{T}, s[12:13]{SC}
    s_mov_b64 exec, -1""")

def mod_slab(a, sslab, sc, sw, ldsoff):
    R, CR, SV, ACC, U = 100, 180, 16, 56, 64
    a(f"""s_lshl_b32 s14, s3, 3
    v_lshrrev_b32 v2, 3, v0
    v_add_u32 v2, s14, v2
    v_mul_u32_u24 v3, 40, v2
    global_load_dwordx4 {vr(CR,4)}, v3, s[{sc}:{sc+1}]
    global_load_dwordx4 {vr(CR+4,4)}, v3, s[{sc}:{sc+1}] offset:16
    global_load_dwordx2 {vr(CR+8,2)}, v3, s[{sc}:{sc+1}] offset:32
    v_mul_u32_u24 v2, {20*7680}, v2
    v_and_b32 v3, 7, v0
    v_lshl_add_u32 v2, v3, 4, v2
    s_lshl_b32 s16, s{sslab}, 7""")
    add64(a, 14, sw, "s16")
    for i in range(20):
        a(f"global_load_dwordx4 {vr(R+4*i,4)}, v2, s[14:15]{NT}")
        if i < 19: add64(a, 14, 14, 7680)
        if i == 9:
            a("s_waitcnt vmcnt(10)")
            for j in range(10): a(f"v_lshlrev_b32 v{SV+4*j+1}, 16, v{CR+j}\nv_and_b32 v{SV+4*j+3}, s69, v{CR+j}")
            for j in range(20): a(f"v_mul_f32 v{SV+2*j}, 0xbfb8aa3b, v{SV+2*j+1}")
            for j in range(20): a(f"v_exp_f32 v{SV+2*j}, v{SV+2*j}")
            for j in range(20): a(f"v_add_f32 v{SV+2*j}, 1.0, v{SV+2*j}")
            for j in range(20): a(f"v_rcp_f32 v{SV+2*j}, v{SV+2*j}")
            for j in range(20): a(f"v_mul_f32 v{SV+2*j}, v{SV+2*j+1}, v{SV+2*j}")
            for j in range(10): a(f"v_cvt_pk_bf16_f32 v{SV+4*j+1}, v{SV+4*j}, v{SV+4*j+2}")
            for j in range(10): a(f"v_lshlrev_b32 v{SV+4*j}, 16, v{SV+4*j+1}\nv_and_b32 v{SV+4*j+2}, s69, v{SV+4*j+1}")
    tag_issue(a, 212)
    for i in range(20):
        a(f"s_waitcnt vmcnt({20-i if i < 19 else 0})")
        u = U + 8 * (i & 1)
        for j in range(4): a(f"v_lshlrev_b32 v{u+2*j}, 16, v{R+4*i+j}\nv_and_b32 v{u+2*j+1}, s69, v{R+4*i+j}")
        for j in range(4):
            if i == 0: a(f"v_pk_mul_f32 {vr(ACC+2*j,2)}, {vr(u+2*j,2)}, {vr(SV,2)} op_sel_hi:[1,0]")
            else: a(f"v_pk_fma_f32 {vr(ACC+2*j,2)}, {vr(u+2*j,2)}, {vr(SV+2*i,2)}, {vr(ACC+2*j,2)} op_sel_hi:[1,0,1]")
    a("s_nop 1")
    for j in range(4): a(f"v_permlane32_swap_b32 v{ACC+j}, v{ACC+4+j}")
    a("s_nop 0")
    for j in range(4): a(f"v_add_f32 v{ACC+j}, v{ACC+j}, v{ACC+4+j}")
    a("s_nop 1")
    for j in range(2): a(f"v_permlane16_swap_b32 v{ACC+j}, v{ACC+2+j}")
    a("s_nop 0")
    for j in range(2): a(f"v_add_f32 v{ACC+j}, v{ACC+j}, v{ACC+2+j}")
    a("s_nop 1")
    for j in range(2): a(f"v_add_f32_dpp v{ACC+j}, v{ACC+j}, v{ACC+j} row_ror:8 row_mask:0xf bank_mask:0xf")
    L = a.label("modfin")
    a(f"""s_lshl_b32 s14, s3, 8
    s_add_u32 s14, s14, {ldsoff}
    v_lshrrev_b32 v4, 4, v0
    v_lshlrev_b32 v3, 5, v3
    v_lshl_add_u32 v3, v4, 3, v3
    v_add_u32 v3, s14, v3
    ds_write_b64 v3, {vr(ACC,2)}
    s_waitcnt lgkmcnt(0)
    s_barrier
    s_cmp_lg_u32 s3, 0
    s_cbranch_scc1 {L}
    v_lshlrev_b32 v2, 2, v0
    v_add_u32 v3, {ldsoff}, v2
    ds_read2st64_b32 v[4:5], v3 offset0:0 offset1:1
    ds_read2st64_b32 v[6:7], v3 offset0:2 offset1:3
    s_lshl_b32 s14, s{sslab}, 8
    s_add_u32 s14, s14, {WS['MOD']}
    v_add_u32 v2, s14, v2
    s_waitcnt lgkmcnt(0)
    v_pk_add_f32 v[4:5], v[4:5], v[6:7]
    s_nop 0
    v_add_f32 v4, v4, v5""")
    rbf16(a, 4, 4)
    a(f"global_store_dword v2, v4, s[12:13]{SC}\n{L}:")

RW = 4608 + 4160 * 2
OF, OE, OO = 512, 4608, 4608 + 4160
KB = 68096; VB = KB + 17 * 1040; XB = VB + 16 * 1040; MRED = XB + 16 * 1040
NSL = int(os.environ.get("NSL", "11"))
WRING = 69632; STL = 65536; CSL = WRING + 11 * 8192; REDL = CSL + 2048
W3L = WRING + 8 * 8192
LDS_BYTES = REDL + 2048

def tag_issue(a, vt):
    a(f"v_mov_b32 v{vt+2}, 0\ns_mov_b64 exec, 1\nglobal_load_dwordx2 {vr(vt,2)}, v{vt+2}, s[72:73]{SC}\ns_mov_b64 exec, -1")
def tag_check(a, vt):
    Ld = a.label("tagok")
    a(f"""v_readfirstlane_b32 s70, v{vt}
    v_readfirstlane_b32 s71, v{vt+1}
    s_cmp_lg_u64 s[70:71], 0
    s_cbranch_scc1 {Ld}""")
    get_tag(a, vt)
    a(f"{Ld}:")

def interleave(a, mfmas, reads, valu, vmem=()):
    n = len(mfmas)
    slots = [[] for _ in range(n)]
    cap = [2] * n
    vmem = list(vmem)
    for i, (pre, x) in enumerate(vmem):
        p = 1 + (i * (n - 1)) // len(vmem)
        if pre: slots[p - 1].append(pre)
        slots[p].insert(0, x); cap[p] = 0
    free = [i for i in range(n) if cap[i]]
    for e, p in zip(reads, free): slots[p].insert(0, e); cap[p] -= 1
    assert len(reads) <= len(free)
    valu = list(valu)
    tot = sum(cap)
    order = [i for i in range(n) for _ in range(cap[i])]
    if len(valu) < len(order):
        first = [i for i in range(n) if cap[i] == 2]
        pool = sorted(first + [i for i in range(n) if cap[i] >= 1])[:]
        step = len(pool) / max(len(valu), 1)
        order = [pool[int(i * step)] for i in range(len(valu))]
    for i, e in enumerate(valu): slots[order[i] if i < len(order) else n - 1].append(e)
    for m, sl in zip(mfmas, slots):
        a(m)
        for e in sl: a(e)

FLAG2 = f"s_mov_b64 exec, 1\nglobal_load_dwordx2 v[236:237], v240, s[12:13]{SC}\ns_mov_b64 exec, -1"
def flag2_setup(a, zero=False):
    a(f"""s_and_b32 s74, s2, 63
    s_lshl_b32 s74, s74, 7
    s_add_u32 s74, s74, {WS['FL'] + 5*256*128}
    v_mov_b32 v240, s74
    v_mov_b32 v236, s70
    v_mov_b32 v237, s71""")
    if zero: a("v_writelane_b32 v236, 0, 0")
def flag2_check(a, first=False):
    Lok, Lsl, Lld = a.label("f2_ok"), a.label("f2_slow"), a.label("f2_ld")
    a("s_mov_b32 s74, 0x100000")
    if first: a(f"s_branch {Lld}")
    a(f"""{Lsl}:
    v_cmp_ne_u64 vcc, s[70:71], v[236:237]
    s_cbranch_vccz {Lok}
    s_sleep 4
    {Lld}:
    {FLAG2}
    s_waitcnt vmcnt(0)
    s_sub_u32 s74, s74, 1
    s_cbranch_scc0 {Lsl}
    {Lok}:""")
WEL = [int(x) for x in os.environ.get("WEL", "0,2,5,11").split(",")]
NWE = WEL[3]; H2 = int(os.environ.get("H2", "32")); ELP = int(os.environ.get("ELP", "3")); HKP = int(os.environ.get("HKP", "0"))
PUBT = int(os.environ.get("PUBT", "1"))
XST = int(os.environ.get("XST", "0"))
AORD = int(os.environ.get("AORD", "0"))
HK = int(os.environ.get("HK", "4")); HKF = int(os.environ.get("HKF", "3"))
def phase_conv(a, Lg1):
    a(f"""s_load_dwordx4 s[4:7], s[0:1], {KA['x']}
    s_load_dwordx4 s[8:11], s[0:1], {KA['v']}
    s_load_dwordx4 s[36:39], s[0:1], {KA['ssm']}
    s_load_dwordx4 s[40:43], s[0:1], {KA['c']}
    s_lshr_b32 s44, s2, 4
    s_and_b32 s45, s2, 15
    v_lshrrev_b32 v4, 3, v0
    v_and_b32 v5, 7, v0
    v_mul_u32_u24 v2, 1280, v4
    v_lshl_add_u32 v2, v5, 4, v2
    s_lshl_b32 s14, s45, 4
    s_add_u32 s14, s14, s3
    s_mul_i32 s14, s14, {8*1280}
    s_lshl_b32 s15, s44, 7
    s_add_u32 s14, s14, s15
    v_add_u32 v2, s14, v2
    v_add_u32 v3, {(-8*1280) & 0xffffffff}, v2
    s_lshl_b32 s14, s3, 3
    v_add_u32 v6, s14, v4
    s_lshl_b32 s14, s44, 9
    v_lshl_add_u32 v7, v6, 4, s14
    s_mul_i32 s28, s3, 1040
    s_mov_b32 s29, {32*1280}
    s_mov_b32 s30, {64*1280}
    s_mov_b32 s31, {96*1280}
    s_waitcnt lgkmcnt(0)""")
    srd(a, 16, 6, S * D * 2); srd(a, 20, 8, S * D * 2); srd(a, 24, 4, S * D * 2)
    Lh = a.label("nohalo")
    a(f"""s_cmp_lg_u32 s3, 0
    s_cbranch_scc1 {Lh}
    s_mov_b32 m0, {KB}
    s_nop 0
    buffer_load_dwordx4 v3, s[16:19], 0 offen{NT} lds
    {Lh}:""")
    SH = 8
    so = ["0", "s29", "s30", "s31"]
    def tile_dma(base, srdb):
        for i in range(4):
            a(f"s_add_u32 m0, s28, {base + 4*1040*i}\ns_nop 0\nbuffer_load_dwordx4 v2, s[{srdb}:{srdb+3}], {so[i]} offen{NT} lds")
    tile_dma(KB + 1040, 16); tile_dma(VB, 20)
    a(f"global_load_dwordx4 {vr(SH,4)}, v7, s[10:11]")
    code_prefetch(a)
    if AORD == 0: tile_dma(XB, 24)
    else: a("v_mov_b32 v243, v2")
    a(f"""    v_mul_u32_u24 v242, 1040, v5
    v_lshl_add_u32 v242, v6, 2, v242
    v_add_u32 v242, {KB}, v242
    v_xor_b32 v3, 7, v5
    v_mul_u32_u24 v12, 1040, v3
    v_lshl_add_u32 v12, v6, 2, v12
    v_add_u32 v12, {KB}, v12
    v_lshlrev_b32 v13, 13, v6
    v_lshl_add_u32 v14, v5, 4, v13
    v_mov_b32 v13, v14
    s_lshl_b32 s14, s44, 18
    s_lshl_b32 s15, s45, 8
    s_sub_u32 s32, s14, s15
    s_add_u32 s32, s32, {WS['KVT'] + 4096 + 240*16}
    s_add_u32 s34, s14, s15
    s_add_u32 s34, s34, {WS['XTT'] + 4096}""")
    add64(a, 32, 12, "s32"); add64(a, 34, 12, "s34")
    a(f"""s_lshl_b32 s8, s2, 2
    s_add_u32 s8, s8, s3
    s_mul_i32 s9, s3, {RW}
    s_add_u32 s9, s9, 16384
    s_lshl_b32 s10, s8, 12
    v_lshlrev_b32 v2, 4, v0
    v_and_b32 v4, 15, v0
    v_lshrrev_b32 v5, 4, v0
    v_mov_b32 v216, 0
    v_mov_b32 v217, 0
    v_lshl_add_u32 v6, v0, 3, s9
    ds_write_b64 v6, v[216:217]
    v_lshl_add_u32 v6, v4, 2, s9
    ds_write_b32 v6, v216 offset:{OE+4096}
    ds_write_b32 v6, v216 offset:{OO+4096}""")
    add64(a, 36, 36, "s10")
    a(f"s_add_u32 s11, s9, {OF}")
    if AORD < 2:
        for i in range(4): dma(a, 2, 36, "s11", f" offset:{1024*i}{NT}")
    a.stamp(1)
    a(f"s_waitcnt vmcnt({9 - 4*AORD}) lgkmcnt(0)\ns_barrier")
    a.stamp(2)
    SP, KR, VR_, KP, VP, KV, OUT = 16, 24, 46, 62, 84, 100, 116
    def rdk(h, lo, hi):
        for i in range(lo, hi):
            off = 8320 * h + (640 + 128 * i if i < 3 else 1040 + 128 * (i - 3))
            a(f"ds_read_b32 v{KR+11*h+i}, v12 offset:{off}")
    def rdv(h, lo, hi, base=VB, dst=VR_):
        for i in range(lo, hi): a(f"ds_read_b32 v{dst+8*h+i}, v12 offset:{base-KB + 8320*h + 128*i}")
    rdk(0, 0, 11); rdv(0, 0, 4)
    tag_issue(a, 212)
    a(f"""s_lshl_b32 s17, s8, 1
    v_mov_b32 v218, s17
    global_load_ushort v218, v218, s[38:39]
    v_lshlrev_b32 v{SP+0}, 16, v{SH+0}
    v_lshlrev_b32 v{SP+1}, 16, v{SH+2}
    v_and_b32 v{SP+2}, s69, v{SH+0}
    v_and_b32 v{SP+3}, s69, v{SH+2}
    v_lshlrev_b32 v{SP+4}, 16, v{SH+1}
    v_lshlrev_b32 v{SP+5}, 16, v{SH+3}
    v_and_b32 v{SP+6}, s69, v{SH+1}
    v_and_b32 v{SP+7}, s69, v{SH+3}""")
    def ks(h):
        for i in range(11): a(f"v_lshlrev_b32 v{KP+2*i}, 16, v{KR+11*h+i}\nv_and_b32 v{KP+2*i+1}, s69, v{KR+11*h+i}")
        for r in range(8): a(f"v_pk_mul_f32 {vr(KV+2*r,2)}, {vr(KP+2*r,2)}, {vr(SP+6,2)}")
        for j in (2, 1, 0):
            for r in range(8): a(f"v_pk_fma_f32 {vr(KV+2*r,2)}, {vr(KP+2*(r+3-j),2)}, {vr(SP+2*j,2)}, {vr(KV+2*r,2)}")
    def kvs(h):
        for i in range(8): a(f"v_lshlrev_b32 v{VP+2*i}, 16, v{VR_+8*h+i}\nv_and_b32 v{VP+2*i+1}, s69, v{VR_+8*h+i}")
        for r in range(8): a(f"v_pk_mul_f32 {vr(KV+2*r,2)}, {vr(KV+2*r,2)}, {vr(VP+2*r,2)}")
        for ch in range(2):
            o = OUT + 8 * h + 4 * ch
            for j in range(4): a(f"v_cvt_pk_bf16_f32 v{o+j}, v{KV+2*(7-2*j)+ch}, v{KV+2*(6-2*j)+ch}")
            a(f"global_store_dwordx4 v13, {vr(o,4)}, s[32:33] offset:{-4096*(1-ch) + 128*(1-h)}{SC}")
    a("s_waitcnt lgkmcnt(4)"); rdv(0, 4, 8); rdk(1, 0, 7)
    ks(0)
    a("s_waitcnt lgkmcnt(7)"); rdk(1, 7, 11); rdv(1, 0, 4)
    kvs(0)
    a("s_waitcnt lgkmcnt(4)"); rdv(1, 4, 8)
    ks(1)
    a("s_waitcnt lgkmcnt(0)")
    kvs(1)
    a.stamp(3)
    if AORD == 2:
        for i in range(4): dma(a, 2, 36, "s11", f" offset:{1024*i}{NT}")
    if AORD:
        for i in range(4):
            a(f"s_add_u32 m0, s28, {XB + 4*1040*i}\ns_nop 0\nbuffer_load_dwordx4 v243, s[24:27], {so[i]} offen{NT} lds")
    RA, RB = 220, 224
    a(f"""v_and_b32 v6, 1, v4
    v_xor_b32 v6, 1, v6
    v_mul_u32_u24 v6, {4160-2}, v6
    v_lshl_add_u32 v6, v5, 4, v6
    v_lshlrev_b32 v7, 1, v4
    v_sub_u32 v6, v6, v7
    v_add_u32 v6, s9, v6""")
    for q2 in range(4): a(f"v_add_u32 v{RA+q2}, {OE + 2*2031 - 512*(2*q2+1) - 64*7}, v6")
    a(f"""v_lshlrev_b32 v6, 5, v4
    v_lshl_add_u32 v15, v5, 3, v6
    v_lshl_add_u32 v6, v5, 4, v6
    v_add_u32 v6, s9, v6
    v_add_u32 v{RB}, {OF - 32 - 64*7}, v6
    v_add_u32 v3, s9, v2""")
    a(f"s_waitcnt vmcnt({4 + 4*AORD})")
    tag_check(a, 212)
    if "0" in REP: publish_rep(a, 0, 232, vm=4*AORD)
    else: publish(a, 0, 212, vm=4*AORD)
    a.stamp(4)
    def xtrans():
        for h in range(2):
            for i in range(8): a(f"ds_read_b32 v{24+8*h+i}, v242 offset:{XB-KB + 8320*h + 128*i}")
            if h == 0: a("s_waitcnt lgkmcnt(6)")
        a("s_mov_b32 s14, 0x05040100\ns_mov_b32 s15, 0x07060302")
        for h in range(2):
            a(f"s_waitcnt lgkmcnt({8 if h == 0 else 0})")
            for ch in range(2):
                o = 40 + 8 * h + 4 * ch
                for j in range(4): a(f"v_perm_b32 v{o+j}, v{24+8*h+2*j+1}, v{24+8*h+2*j}, s{14+ch}")
                a(f"global_store_dwordx4 v14, {vr(o,4)}, s[34:35] offset:{-4096*(1-ch) + 128*h}{SC}")
    if AORD == 0: xtrans()
    a(f"s_add_u32 s10, s10, {WS['KVT']}\ns_add_u32 s11, s9, {OE}")
    add64(a, 16, 12, "s10")
    KO = 176
    ACC, KD, HG, SBv, XF, XR, KVR = 16, 48, 80, 112, 144, 176, 192
    FA, FB = 0, 64
    def bread(t, q): return f"ds_read_b128 {ar(FB+32*(t&1)+4*q,4)}, v{RB} offset:{512*q + 64*(7-t)}"
    def areads(t, q):
        o = 16 * (7 - t) + (0 if q & 1 else 128)
        return [f"ds_read2_b32 {ar(FA+32*(t&1)+4*q+2*h,2)}, v{RA+q//2} offset0:{o+2*h} offset1:{o+2*h+1}" for h in range(2)]
    def reads(t):
        r = []
        for q in range(8): r += [bread(t, q)] + areads(t, q)
        return r
    a(f"""v_lshlrev_b32 v218, 16, v218
    v_sub_u32 v11, s9, v15
    v_add_u32 v11, {OE + 4088 - 512*7}, v11
    v_min_u32 v208, 4, v0
    v_mul_u32_u24 v208, 2560, v208
    v_lshrrev_b32 v209, 3, v0
    v_xor_b32 v209, v209, v0
    v_lshlrev_b32 v209, 4, v209
    v_and_b32 v12, 7, v4
    v_xor_b32 v12, v12, v5
    v_lshlrev_b32 v12, 4, v12
    v_lshl_add_u32 v12, v4, 7, v12
    v_xor_b32 v243, 64, v12
    v_lshlrev_b32 v10, 5, v4
    v_lshrrev_b32 v13, 1, v5
    v_lshl_add_u32 v10, v13, 4, v10
    v_and_b32 v13, 1, v5
    v_lshl_add_u32 v10, v13, 9, v10
    s_and_b32 s14, s2, 0xf0
    v_add_u32 v210, s14, v0
    v_add_u32 v211, {210-16}, v0
    v_cmp_gt_u32 s[18:19], 16, v0
    v_mov_b32 v212, s70
    v_mov_b32 v213, s71
    v_cndmask_b32 v210, v211, v210, s[18:19]
    v_mul_u32_u24 v211, 10, v0
    v_cmp_gt_u32 s[18:19], 48, v0
    s_sub_u32 s14, s44, {480-160}
    v_add_u32 v211, s14, v211
    v_cndmask_b32 v210, v211, v210, s[18:19]
    v_lshlrev_b32 v210, 7, v210
    v_add_u32 v210, {WS['FL'] + 256*128}, v210
    s_lshl_b32 s14, s3, 4
    s_lshl_b64 s[28:29], 0xffff, s14
    s_and_b32 s29, s29, 0x1fffff
    """)
    flag2_setup(a)
    w_setup(a)
    a.stamp(5)
    a("s_and_b32 s14, s2, 0xf0")
    poll(a, 0, "s14", 16, 232, rep=0 if "0" in REP else None)
    a.stamp(6)
    for i in range(4): a(f"global_load_dwordx4 {vr(KO+6*i,4)}, v2, s[16:17] offset:{1024*i}{SC}")
    ny = 0
    if AORD == 0: publish(a, 1, 232, vm=4)
    else:
        a("s_barrier"); xtrans(); ny = 4
    w_early(a, 0, WEL[0]); ny += 2 * WEL[0]
    for q in range(8): a(bread(0, q))
    for i in range(4):
        a(f"s_waitcnt vmcnt({max(2-i,0)+ny})")
        a(f"ds_write_b128 v3, {vr(KO+6*i,4)} offset:{OE+1024*i}")
        if i < 3: a(f"v_readlane_b32 s14, v{KO+6*i+6}, 0")
        a(f"v_mov_b32_dpp v{KO+6*i+4}, v{KO+6*i} wave_shl:1 row_mask:0xf bank_mask:0xf bound_ctrl:0")
        if i < 3: a(f"s_nop 0\nv_writelane_b32 v{KO+6*i+4}, s14, 63")
        for j in range(4): a(f"v_alignbit_b32 v{200+4*(i&1)+j}, v{KO+6*i+j+1}, v{KO+6*i+j}, 16")
        a(f"ds_write_b128 v3, {vr(200+4*(i&1),4)} offset:{OO+1024*i}")
        if i == 1: a("s_waitcnt lgkmcnt(2)")
    a("s_waitcnt lgkmcnt(0)")
    for q in range(8):
        for r in areads(0, q): a(r)
    a.stamp(7)
    P, Q, C1 = 226, 228, 230
    unk = []
    for n in range(8):
        unk += [f"v_and_b32 v{KD+4*n}, s69, v{KVR+2*n+1}", f"v_lshlrev_b32 v{KD+4*n+1}, 16, v{KVR+2*n+1}",
                f"v_and_b32 v{KD+4*n+2}, s69, v{KVR+2*n}", f"v_lshlrev_b32 v{KD+4*n+3}, 16, v{KVR+2*n}"]
    mulk = [f"v_mul_f32 v{KD+i}, v218, v{KD+i}" for i in range(32)]
    unx = []
    for n in range(4): unx += [f"v_permlane16_swap_b32 v{XR+4*n}, v{XR+4*n+2}", f"v_permlane16_swap_b32 v{XR+4*n+1}, v{XR+4*n+3}"]
    for n in range(16): unx += [f"v_lshlrev_b32 v{XF+2*n}, 16, v{XR+n}", f"v_and_b32 v{XF+2*n+1}, s69, v{XR+n}"]
    flagld = f"s_mov_b64 exec, s[28:29]\nglobal_load_dwordx2 v[212:213], v210, s[12:13]{SC}\ns_mov_b64 exec, -1"
    eld = [(f"s_lshl_b32 s17, s8, 2\ns_add_u32 s17, s17, {WS['MOD']}\nv_add_u32 v212, s17, v208", f"s_mov_b64 exec, 0x1f\nglobal_load_dword v219, v212, s[12:13]{SC}\ns_mov_b64 exec, -1")]
    pre = f"s_lshl_b32 s16, s3, 12\ns_add_u32 s17, s16, {WS['ST']}\ns_add_u32 s14, s12, s17\ns_addc_u32 s15, s13, 0\ns_mov_b32 m0, s16"
    eld += [(pre if i == 0 else "", f"global_load_lds_dwordx4 v209, s[14:15] offset:{1024*i}{SC}") for i in range(4)]
    pre = f"s_lshl_b32 s17, s8, 12\ns_add_u32 s17, s17, {WS['XTT']}\ns_add_u32 s14, s12, s17\ns_addc_u32 s15, s13, 0"
    eld += [(pre if n == 0 else "", f"global_load_dwordx4 {vr(XR+4*n,4)}, v10, s[14:15] offset:{1024*n}{SC}") for n in range(4)]
    def wpairs(k):
        l = wd_(k); return [(l[0][1], l[1][1]), (l[2][1], l[3][1])]
    strd = []
    for n in range(8): strd += [f"ds_read_b128 {vr(HG+4*n,4)}, v12 offset:{2048*n}", f"ds_read_b128 {vr(SBv+4*n,4)}, v243 offset:{2048*n}"]
    scal = ["v_add_f32 v214, 1.0, v219", "v_readlane_b32 s20, v219, 0", "v_cvt_pk_bf16_f32 v214, v214, v214", "v_readlane_b32 s22, v219, 2",
            "v_lshlrev_b32 v214, 16, v214\ns_nop 0", "v_readlane_b32 s21, v214, 1", "v_readlane_b32 s23, v214, 4", f"v_mov_b32 v{Q}, s22\ns_nop 0",
            f"v_mul_f32 v{P}, s21, v{Q}", f"v_mul_f32 v{Q}, s20, v{Q}", f"v_mov_b32 v{C1}, s23"]
    hg1 = [f"v_fma_f32 v{HG+i}, v{XF+i}, v{HG+i}, v{SBv+i}" for i in range(32)]
    hg2 = [f"v_fma_f32 v{HG+i}, v{HG+i}, v{P}, v{Q}" for i in range(32)]
    oadr = [f"s_lshl_b32 s17, s8, 12\ns_add_u32 s17, s17, {WS['X1T']}\ns_add_u32 s14, s12, s17\ns_addc_u32 s15, s13, 0\ns_add_u32 s16, s14, {WS['X1S']-WS['X1T']}\ns_addc_u32 s17, s15, 0"]
    post = []
    assert HK == 4
    WSCH = [int(x) for x in os.environ.get("WSCH", "2,3,3,3,0,0,0,0").split(",")]
    assert sum(WSCH) == NWE and WEL[0] == 0
    KRT = int(os.environ.get("KRT", "0"))
    cvm = VM(); wk = 0
    for t in range(8):
        a("s_waitcnt lgkmcnt(0)")
        if "cstamp" in EXP and 2 <= t <= 7: a.stamp(t - 1)
        rd = reads(t + 1) if t < 7 else []
        va = []; vm_ = []; tags = []
        if t == KRT: rd = rd + [f"ds_read_b64 {vr(KVR+2*n,2)}, v11 offset:{512*(7-n)}" for n in range(8)]
        if t == KRT + 1: va = unk[:24]
        if t == KRT + 2: va = unk[24:] + mulk[:16]
        if t == (KRT + 3 if KRT + 3 != 4 else 5): va = mulk[16:]
        if t == HKF: vm_ = [("", flagld)]; tags = ["F"]
        if t == HK:
            Lok, Lsl = a.label("hk_ok"), a.label("hk_slow")
            a(cvm.wait(["F"]))
            a(f"""s_mov_b32 s74, 0x100000
            {Lsl}:
            v_cmp_ne_u64 vcc, s[70:71], v[212:213]
            s_cbranch_vccz {Lok}
            {flagld}
            s_waitcnt vmcnt(0)
            s_sub_u32 s74, s74, 1
            s_cbranch_scc0 {Lsl}
            {Lok}:
            s_barrier""")
            vm_ = [eld[0]] + eld[5:] + eld[1:5]; tags = ["X"] * 5 + ["S"] * 4
            if not WSCH[t]: vm_ += [("", "")] * ELP
        if t == 6:
            a(cvm.wait(["X"]))
            va = scal + unx[:36]
        if t == 7:
            a(cvm.wait(["S"]) + "\ns_barrier")
            rd = strd
            va = unx[36:] + oadr + [""] * 10
            for n in range(H2 // 4): va += [f"s_waitcnt lgkmcnt({max(14 - 2*n - 4, 0)})\n" + hg1[4*n]] + hg1[4*n+1:4*n+4]
            post = [f"v_pk_fma_f32 {vr(HG+2*i,2)}, {vr(XF+2*i,2)}, {vr(HG+2*i,2)}, {vr(SBv+2*i,2)}" for i in range(H2 // 2, 16)]
            post += [f"v_pk_fma_f32 {vr(HG+2*i,2)}, {vr(HG+2*i,2)}, {vr(P,2)}, {vr(Q,2)} op_sel_hi:[1,0,0]" for i in range(16)]
            vm_ = [("", FLAG2)]
        for _ in range(WSCH[t]): vm_ += wpairs(wk); tags += ["W", "W"]; wk += 1
        for x in tags: cvm.add(x)
        mf = []
        for q in range(8):
            for n in range(q, 8):
                c = "0" if (t == 0 and q == 0) else vr(ACC + 4 * n, 4)
                mf.append(f"v_mfma_f32_16x16x32_bf16 {vr(ACC+4*n,4)}, {ar(FA+32*(t&1)+4*q,4)}, {ar(FB+32*(t&1)+4*(n-q),4)}, {c}")
        interleave(a, mf, rd, va, vm_)
    a.stamp(8)
    a("s_waitcnt lgkmcnt(0)")
    for x in post: a(x)
    a("v_add_u32 v11, s9, v15")
    a("s_nop 3")
    for n in range(0, 8, 2):
        for m in (n, n + 1):
            for h in range(2): a(f"v_pk_add_f32 {vr(ACC+4*m+2*h,2)}, {vr(ACC+4*m+2*h,2)}, {vr(KD+4*m+2*h,2)}")
        for m in (n, n + 1):
            for h in range(2): a(f"v_pk_fma_f32 {vr(ACC+4*m+2*h,2)}, {vr(HG+4*m+2*h,2)}, {vr(ACC+4*m+2*h,2)}, {vr(XF+4*m+2*h,2)}")
        for m in (n, n + 1):
            for h in range(2): a(f"v_pk_mul_f32 {vr(KD+4*m+2*h,2)}, {vr(ACC+4*m+2*h,2)}, {vr(C1,2)} op_sel_hi:[1,0]")
        o = SBv + 2 * n
        for m in (n, n + 1):
            for h in range(2): a(f"v_cvt_pk_bf16_f32 v{o+2*(m-n)+h}, v{KD+4*m+2*h}, v{KD+4*m+2*h+1}")
        if XST:
            for m in (n, n + 1): a(f"ds_write_b64 v11, {vr(o+2*(m-n),2)} offset:{512*m}")
            if n: a(f"s_waitcnt lgkmcnt(2)\nglobal_store_dwordx4 v2, {vr(XF+2*(n-2),4)}, s[16:17] offset:{512*(n-2)}{SC}")
            a(f"ds_read_b128 {vr(XF+2*n,4)}, v3 offset:{512*n}")
        else:
            a(f"""s_nop 1
            v_permlane16_swap_b32 v{o}, v{o+2}
            v_permlane16_swap_b32 v{o+1}, v{o+3}
            global_store_dwordx4 v10, {vr(o,4)}, s[16:17] offset:{512*n}{SC}""")
    for i in range(16): a(f"v_cvt_pk_bf16_f32 v{SBv+16+i}, v{ACC+2*i}, v{ACC+2*i+1}")
    if XST:
        a(f"s_waitcnt lgkmcnt(0)\nglobal_store_dwordx4 v2, {vr(XF+12,4)}, s[16:17] offset:{512*6}{SC}")
        for m in range(8): a(f"ds_write_b64 v11, {vr(SBv+16+2*m,2)} offset:{4096+512*m}")
        for n in range(4): a(f"ds_read_b128 {vr(XF+16+4*n,4)}, v3 offset:{4096+1024*n}")
        for n in range(4): a(f"s_waitcnt lgkmcnt({3-n})\nglobal_store_dwordx4 v2, {vr(XF+16+4*n,4)}, s[14:15] offset:{1024*n}{SC}")
    else:
        for n in range(0, 8, 2):
            o = SBv + 16 + 2 * n
            a(f"""v_permlane16_swap_b32 v{o}, v{o+2}
            v_permlane16_swap_b32 v{o+1}, v{o+3}
            global_store_dwordx4 v10, {vr(o,4)}, s[14:15] offset:{512*n}{SC}""")
    a.stamp(9)
    a(f"s_branch {Lg1}")

def code_prefetch(a):
    a(f"""s_getpc_b64 s[14:15]
    s_sub_u32 s14, s14, . - {KNAME}
    s_subb_u32 s15, s15, 0
    s_lshr_b32 s17, s2, 3
    s_lshl_b32 s17, s17, 2
    s_add_u32 s17, s17, s3
    s_min_u32 s17, s17, (code_end - {KNAME}) / 1024 - 1
    s_lshl_b32 s17, s17, 10
    v_lshl_add_u32 v250, v0, 4, s17
    global_load_dwordx4 v[252:255], v250, s[14:15]""")

def phase_aux(a, Lg1):
    Lst, L2, Lnd, Lnw, Lnd2, Lnw3 = (a.label(x) for x in ("aux_st", "aux2", "aux_nod", "aux_now", "aux_nod2", "aux_now3"))
    RED, MRD = REDL, CSL
    LwE, Lwd, Lmod, Lgbd, Lnp1, Ltg = (a.label(x) for x in ("aux_we", "aux_wd", "aux_mod", "aux_gbd", "aux_np1", "aux_tg"))
    a(f"""s_load_dwordx2 s[4:5], s[0:1], {KA['x']}
    s_load_dwordx4 s[36:39], s[0:1], {KA['wg']}
    s_load_dwordx2 s[6:7], s[0:1], {KA['wd']}
    s_load_dwordx4 s[40:43], s[0:1], {KA['c']}
    s_sub_u32 s8, s2, 160
    s_mov_b32 s44, s8
    v_lshlrev_b32 v9, 4, v0
    s_waitcnt lgkmcnt(0)
    s_cmp_ge_u32 s8, 82
    s_cbranch_scc1 {Lwd}
    s_cmp_ge_u32 s8, 50
    s_cbranch_scc1 {Lst}
    {Lmod}:""")
    mod_slab(a, 44, 40, 42, MRD)
    a(f"""s_cmp_ge_u32 s8, 82
    s_cbranch_scc1 {Lgbd}
    s_branch {L2}
    {Lst}:
    s_sub_u32 s45, s8, 50
    s_lshl_b32 s45, s45, 6""")
    stats_issue(a, 100, 4, 45)
    tag_issue(a, 212)
    stats_compute(a, 100, 45)
    a(f"{L2}:")
    a.stamp(3)
    a("s_waitcnt vmcnt(1)")
    tag_check(a, 212)
    a(f"""s_cmp_ge_u32 s8, 56
    s_cbranch_scc1 {Lwd}""")
    TA, RAW, MV, PK, RES = 10, 128, 16, 96, 208
    a(f"""s_and_b32 s10, s8, 3
    s_mul_i32 s10, s10, 7
    s_lshr_b32 s11, s8, 3
    s_add_u32 s10, s10, s11
    s_min_u32 s10, s10, 26
    s_bfe_u32 s9, s8, 0x10002
    s_cmp_eq_u32 s9, 1
    s_cselect_b32 s36, s38, s36
    s_cselect_b32 s37, s39, s37
    v_lshrrev_b32 v2, 3, v0
    v_bfe_u32 v3, v0, 4, 2
    v_lshlrev_b32 v3, 1, v3
    v_and_b32 v4, 7, v0
    v_xor_b32 v3, v3, v4
    v_mul_u32_u24 v2, 3456, v2
    v_lshl_add_u32 v2, v3, 4, v2
    s_lshl_b32 s11, s10, 7
    s_mul_i32 s16, s3, {32*3456}
    s_add_u32 s11, s11, s16
    v_add_u32 v2, s11, v2
    s_mul_i32 s16, s3, {5*4096}
    s_cmp_eq_u32 s3, 3
    s_cselect_b32 s16, {W3L}, s16""")
    srd(a, 20, 36, 640 * 3456)
    for io in range(5):
        for u in range(4):
            if io * 4 + u == 6:
                publish(a, 1, 16, vm=6)
                a.stamp(4)
            a(f"s_add_u32 m0, s16, {4096*io + 1024*u}\ns_mov_b32 s17, {(128*io + 8*u)*3456}\nbuffer_load_dwordx4 v2, s[20:23], s17 offen{WPOL} lds")
    a(f"""v_lshrrev_b32 v2, 2, v0
    v_bfe_u32 v3, v0, 3, 2
    v_and_b32 v4, 3, v0
    v_lshlrev_b32 v2, 7, v2
    v_lshl_add_u32 v2, v4, 3, v2
    v_add_u32 v2, s16, v2""")
    for T_ in range(4): a(f"v_xor_b32 v4, {T_}, v3\nv_lshl_add_u32 v{TA+T_}, v4, 5, v2")
    a(f"""v_lshrrev_b32 v14, 4, v0
    v_lshlrev_b32 v14, 4, v14
    s_lshl_b32 s16, s3, 7
    s_add_u32 s16, s16, 61440
    v_add_u32 v14, s16, v14
    s_mul_i32 s16, s3, 1280
    s_add_u32 s17, s16, {WS['MOD'] + 3*2560}
    v_add_u32 v15, s17, v9
    s_add_u32 s18, s16, 61440""")
    flag2_setup(a, zero=True)
    w_setup(a)
    poll(a, 1, 190, 20, 16)
    a.stamp(6)
    a(f"""s_mov_b32 m0, s18
    s_nop 0
    global_load_lds_dwordx4 v15, s[12:13]{SC}
    s_mov_b64 exec, 0xffff
    global_load_lds_dwordx4 v15, s[12:13] offset:1024{SC}
    s_mov_b64 exec, -1""")
    w_early(a, 0, 4)
    for io in range(5):
        for T_ in range(4):
            for hf in range(2): a(f"ds_read_b64_tr_b16 {vr(RAW+16*io+4*T_+2*hf,2)}, v{TA+T_} offset:{4096*io+2048*hf}")
        a("s_waitcnt lgkmcnt(4)")
    a("s_waitcnt vmcnt(8) lgkmcnt(0)\ns_barrier")
    for io in range(5):
        for hf in range(2):
            a(f"ds_read_b128 {vr(MV+16*io+4*hf,4)}, v14 offset:{512*io+64*hf}")
            a(f"ds_read_b128 {vr(MV+16*io+8+4*hf,4)}, v14 offset:{2560+512*io+64*hf}")
        if io == 2: a("s_waitcnt lgkmcnt(4)")
    w_early(a, 4, NWE)
    a("s_waitcnt lgkmcnt(0)")
    for io in range(5):
        b = MV + 16 * io; p = PK + 8 * (io & 1)
        for i in range(4): a(f"v_cvt_pk_bf16_f32 v{p+i}, v{b+2*i}, v{b+2*i+1}")
        for i in range(8): a(f"v_add_f32 v{b+8+i}, 1.0, v{b+8+i}")
        for i in range(4): a(f"v_cvt_pk_bf16_f32 v{p+4+i}, v{b+8+2*i}, v{b+8+2*i+1}")
        for T_ in range(4): a(f"v_mfma_f32_16x16x32_bf16 {vr(112+4*T_,4)}, {vr(RAW+16*io+4*T_,4)}, {vr(p,4)}, {vr(112+4*T_,4) if io else '0'}")
        for T_ in range(4): a(f"v_mfma_f32_16x16x32_bf16 {vr(RES+4*T_,4)}, {vr(RAW+16*io+4*T_,4)}, {vr(p+4,4)}, {vr(RES+4*T_,4) if io else '0'}")
    a(f"""s_lshl_b32 s16, s3, 9
    s_add_u32 s16, s16, {RED}
    v_add_u32 v2, s16, v0
    s_mov_b32 exec_lo, 0x10001
    s_mov_b32 exec_hi, 0x10001
    s_nop 2""")
    for T_ in range(4): a(f"ds_write_b128 v2, {vr(112+4*T_,4)} offset:{256+64*T_}")
    for T_ in range(4): a(f"ds_write_b128 v2, {vr(RES+4*T_,4)} offset:{64*T_}")
    a(f"""s_mov_b64 exec, -1
    s_waitcnt lgkmcnt(0)
    s_barrier
    s_cmp_ge_u32 s3, 2
    s_cbranch_scc1 {LwE}
    s_lshl_b32 s16, s3, 8
    s_add_u32 s16, s16, {RED}
    v_lshlrev_b32 v3, 2, v0
    v_add_u32 v2, s16, v3
    ds_read2st64_b32 v[4:5], v2 offset0:0 offset1:2
    ds_read2st64_b32 v[16:17], v2 offset0:4 offset1:6
    s_lshl_b32 s16, s9, 1
    s_add_u32 s16, s16, s3
    s_mul_i32 s16, s16, {1728*4}
    s_lshl_b32 s17, s10, 8
    s_add_u32 s16, s16, s17
    s_add_u32 s16, s16, {WS['CSB']}""")
    add64(a, 14, 12, "s16")
    a(f"""s_waitcnt lgkmcnt(0)
    v_add_f32 v4, v4, v5
    v_add_f32 v16, v16, v17
    v_add_f32 v4, v4, v16
    global_store_dword v3, v4, s[14:15]{SC}
    s_waitcnt vmcnt(0)
    {LwE}:""")
    a.stamp(9)
    a(f"s_branch {Lg1}")
    a(f"""{Lwd}:
    s_lshl_b32 s46, s8, 2
    s_add_u32 s46, s46, s3
    s_sub_u32 s17, s46, {4*82}
    s_sub_u32 s46, s46, {4*56-165}
    s_cmp_eq_u32 s17, 55
    s_cselect_b32 s17, 269, s17
    s_cmp_ge_u32 s8, 82
    s_cselect_b32 s46, s17, s46
    v_lshrrev_b32 v2, 4, v0
    v_and_b32 v3, 15, v0
    v_lshlrev_b32 v4, 1, v2
    v_xor_b32 v4, v4, v3
    v_mul_u32_u24 v2, 1280, v2
    v_lshl_add_u32 v5, v4, 4, v2
    v_xor_b32 v4, 8, v4
    v_lshl_add_u32 v6, v4, 4, v2
    v_add_u32 v6, {4*1280}, v6
    s_mul_i32 s16, s3, {3*8192}
    s_mul_i32 s17, s46, 52429
    s_lshr_b32 s17, s17, 18
    s_mul_i32 s11, s17, 5
    s_sub_u32 s11, s46, s11
    s_mul_i32 s17, s17, {32*1280}
    s_lshl_b32 s11, s11, 8
    s_add_u32 s17, s17, s11
    v_add_u32 v5, s17, v5
    v_add_u32 v6, s17, v6""")
    srd(a, 20, 6, 1728 * 1280)
    add64(a, 14, 12, WS['WD']); srd(a, 24, 14, 54 * 40 * 1024)
    for un in range(3):
        for u in range(8):
            if un * 8 + u == 6:
                a(f"s_cmp_ge_u32 s8, 82\ns_cbranch_scc1 {Lnp1}")
                publish(a, 1, 16, vm=6)
                a.stamp(4)
                a(f"{Lnp1}:")
            a(f"s_add_u32 m0, s16, {8192*un + 1024*u}\ns_mov_b32 s17, {(11*32*un + 8*(u>>1))*1280}\nbuffer_load_dwordx4 v{5+(u&1)}, s[20:23], s17 offen{NT} lds")
        if un == 0: a("s_cmp_ge_u32 s8, 82\ns_cselect_b32 s22, s22, 0")
    tag_issue(a, 212)
    xtile_tr_addrs(a, 48, 16)
    a("s_lshl_b32 s17, s46, 13\nv_add_u32 v7, s17, v9")
    for un in range(3):
        a("s_waitcnt vmcnt(17)")
        for q in range(3):
            if q < 2:
                for dt in range(4):
                    for hf in range(2): a(f"ds_read_b64_tr_b16 {vr(100+32*un+16*q+4*dt+2*hf,2)}, v{48+4*q+dt} offset:{8192*un+4096*hf}")
            if q:
                a(f"s_waitcnt lgkmcnt({8 if q < 2 else 0})\ns_mov_b32 s17, {55*8192*un + 4096*(q-1)}")
                for dt in range(4): a(f"buffer_store_dwordx4 {vr(100+32*un+16*(q-1)+4*dt,4)}, v7, s[24:27], s17 offen offset:{1024*dt}{SC}")
        if un == 0: a(f"s_cmp_lt_u32 s8, 82\ns_cbranch_scc1 {Ltg}")
    a(f"{Ltg}:\ns_waitcnt vmcnt(8)")
    tag_check(a, 212)
    publish(a, 0, 16)
    a.stamp(6)
    a(f"""s_cmp_lt_u32 s8, 82
    s_cbranch_scc1 {Lnw3}
    s_sub_u32 s44, s8, 32
    s_cmp_lt_u32 s8, 92
    s_cbranch_scc1 {Lmod}
    s_cmp_lg_u32 s8, 95
    s_cbranch_scc1 {Lnw3}
    s_cmp_lg_u32 s3, 0
    s_cbranch_scc1 {Lnw3}""")
    poll(a, 0, 216, 40, 20)
    a(f"v_mov_b32 v16, s70\nv_mov_b32 v17, s71\nv_mov_b32 v18, s70\nv_mov_b32 v19, s71")
    add64(a, 14, 12, WS['FL'] + 5 * 256 * 128 + 4096)
    for i in range(8): a(f"global_store_dwordx4 v9, v[16:19], s[14:15] offset:{1024*i-4096}{SC}")
    a(f"s_branch {Lnw3}\n{Lgbd}:")
    publish(a, 1, 16)
    a(f"{Lnw3}:")
    flag2_setup(a, zero=True)
    a.stamp(9)
    a("s_branch g1_idle")

def w_setup(a):
    a(f"""s_load_dwordx4 s[84:87], s[0:1], {KA['wg']}
    s_lshr_b32 s6, s2, 3
    s_and_b32 s5, s2, 3
    s_mul_i32 s5, s5, 27
    s_add_u32 s5, s5, s6
    s_lshr_b32 s6, s5, 2
    s_and_b32 s5, s5, 3
    s_and_b32 s89, s2, 4
    s_add_u32 s5, s5, s89
    v_lshrrev_b32 v244, 3, v0
    v_bfe_u32 v245, v0, 4, 2
    v_lshlrev_b32 v245, 1, v245
    v_and_b32 v246, 7, v0
    v_xor_b32 v245, v245, v246
    v_mul_u32_u24 v244, 3456, v244
    v_lshl_add_u32 v7, v245, 4, v244
    s_mul_i32 s88, s3, {8*3456}
    s_lshl_b32 s89, s6, 7
    s_add_u32 s88, s88, s89
    v_add_u32 v7, s88, v7
    s_lshl_b32 s88, s3, 10
    s_add_u32 s88, s88, {WRING}
    s_waitcnt lgkmcnt(0)""")
    srd(a, 80, 84, 640 * 3456); srd(a, 84, 86, 640 * 3456)
def wd_(k):
    out = []
    for m in range(2):
        pre = f"s_add_u32 m0, s88, {(k%NSL)*8192 + m*4096}" + (f"\ns_mov_b32 s89, {k*32*3456}" if not out else "")
        out += [(None, pre), (("W", k), f"buffer_load_dwordx4 v7, s[{80+4*m}:{83+4*m}], s89 offen lds")]
    return out
def w_early(a, lo, hi):
    for k in range(lo, hi):
        for t, x in wd_(k): a(x + ("" if t else "\ns_nop 0"))

def g2_setup(a):
    a(f"""s_lshr_b32 s4, s2, 3
    s_bfe_u32 s44, s2, 0x20001
    s_lshl_b32 s44, s44, 3
    s_lshr_b32 s45, s4, 2
    s_add_u32 s44, s44, s45
    s_and_b32 s45, s2, 1
    s_lshl_b32 s45, s45, 2
    s_and_b32 s9, s4, 3
    s_add_u32 s45, s45, s9
    s_mul_i32 s9, s45, 5120
    s_add_u32 s10, s9, {WS['WD']}
    v_lshlrev_b32 v9, 4, v0
    v_add_u32 v8, 4096, v9""")
    add64(a, 14, 12, "s10"); srd(a, 40, 14, 0)
    a(f"s_sub_u32 s42, {54*40960}, s9\ns_mul_i32 s46, s3, 40960")

SPREAD = int(os.environ.get("SPREAD", "1")); RDEND = int(os.environ.get("RDEND", "28"))
G2POS = int(os.environ.get("G2POS", "0"))
LEVEL = int(os.environ.get("LEVEL", "7"))
XLATE = int(os.environ.get("XLATE", "0"))
OUTT = int(os.environ.get("OUTT", "1"))
CPF = int(os.environ.get("CPF", "99"))
WSTART = int(os.environ.get("WSTART", "4"))
NWDP = int(os.environ.get("NWDP", "12"))
X1LATE = int(os.environ.get("X1LATE", "4"))
WPOL = os.environ.get("WPOL", "")
NWA = int(os.environ.get("NWA", "11"))
NWD0 = int(os.environ.get("NWD0", "22"))
NWD1 = int(os.environ.get("NWD1", "62"))
NW0 = int(os.environ.get("NW0", "11"))
WD_FIRST = int(os.environ.get("WD_FIRST", "4")); WD_LAST = int(os.environ.get("WD_LAST", "20"))
NWD2 = int(os.environ.get("NWD2", "6"))
HK3F = int(os.environ.get("HK3F", "14")); HK3 = int(os.environ.get("HK3", "16"))
def wd_reg(i):
    return ar(4 * i, 4) if i < 64 else vr(232 + 4 * (i - 64), 4)
def wd_load(i):
    st, d = divmod(i, 5)
    return f"s_add_u32 s47, s46, {st*4*40960}\nbuffer_load_dwordx4 {wd_reg(i)}, v{9 if d < 4 else 8}, s[40:43], s47 offen offset:{1024*(d&3)}{SC}"

class VM:
    def __init__(self): self.q = []
    def add(self, tag): self.q.append(tag)
    def wait(self, tags):
        idx = [i for i, t in enumerate(self.q) if t in tags]
        if not idx: return None
        n = len(self.q) - 1 - max(idx)
        self.q = self.q[max(idx) + 1:]
        assert n <= 63
        return f"s_waitcnt vmcnt({n})"

def phase_idle(a, Lg2):
    Lpub = a.label("idle_pub")
    g2_setup(a)
    IW = int(os.environ.get("IW", "62"))
    flag2_check(a)
    def wl(lo, hi):
        for i in range(lo, hi):
            a(wd_load(i))
            if i - lo == 50: a("s_waitcnt vmcnt(30)")
    wl(0, min(IW, NWD1))
    Lrest = a.label("idle_rest")
    PF0, PF1, PF2 = (int(x) for x in os.environ.get("PF", "0,0,0").split(","))
    def pf(lo, hi):
        a(f"""s_lshr_b32 s9, s2, 3
        s_sub_u32 s9, s9, 27
        s_lshl_b32 s9, s9, 2
        s_add_u32 s9, s9, s3
        s_lshl_b32 s9, s9, 12
        s_and_b32 s10, s2, 4
        s_lshl_b32 s10, s10, 9
        s_add_u32 s9, s9, s10
        s_add_u32 s9, s9, {WS['X1S'] + lo*20*4096}
        s_lshl_b32 m0, s3, 11""")
        add64(a, 14, 12, "s9")
        for i in range(lo, hi):
            a(f"global_load_lds_dwordx4 v9, s[14:15]{SC}\nglobal_load_lds_dwordx4 v9, s[14:15] offset:1024{SC}")
            add64(a, 14, 14, 20 * 4096)
    if PF1 > PF0:
        a("s_mul_i32 s9, s3, 40")
        poll(a, 2, "s9", 40, 52)
        a("s_barrier")
        pf(PF0, PF1)
    a(f"""s_sub_u32 s8, s2, 216
    s_mul_i32 s9, s3, 40
    s_add_u32 s9, s9, 1024
    v_add_u32 v55, s9, v0
    v_cmp_gt_u32 vcc, 40, v0
    v_add_u32 v56, {256+242-40}, v0
    s_nop 0
    v_cndmask_b32 v55, v56, v55, vcc""")
    poll(a, 0, None, 50, 52, idxreg=55)
    R, ACC, U = 100, 16, 32
    a(f"""s_barrier
    s_cmp_ge_u32 s8, 32
    s_cbranch_scc1 {Lrest}
    v_lshrrev_b32 v2, 3, v0
    v_lshlrev_b32 v2, 12, v2
    v_and_b32 v3, 7, v0
    v_lshl_add_u32 v2, v3, 4, v2
    s_lshl_b32 s9, s3, 15
    s_lshl_b32 s10, s8, 7
    s_add_u32 s9, s9, s10
    s_add_u32 s9, s9, {WS['X1T']}""")
    add64(a, 14, 12, "s9")
    for i in range(20):
        a(f"global_load_dwordx4 {vr(R+4*i,4)}, v2, s[14:15]{SC}")
        if i < 19: add64(a, 14, 14, 32 * 4096)
    for i in range(20):
        a(f"s_waitcnt vmcnt({19-i})")
        u = (U + 8 * (i & 1)) if i else ACC
        for j in range(4): a(f"v_lshlrev_b32 v{u+2*j}, 16, v{R+4*i+j}\nv_and_b32 v{u+2*j+1}, s69, v{R+4*i+j}")
        for j in range(4):
            if i == 0: a(f"v_pk_mul_f32 {vr(ACC+8+2*j,2)}, {vr(u+2*j,2)}, {vr(u+2*j,2)}")
            else:
                a(f"v_pk_add_f32 {vr(ACC+2*j,2)}, {vr(ACC+2*j,2)}, {vr(u+2*j,2)}")
                a(f"v_pk_fma_f32 {vr(ACC+8+2*j,2)}, {vr(u+2*j,2)}, {vr(u+2*j,2)}, {vr(ACC+8+2*j,2)}")
    a("s_nop 1")
    for b in (ACC, ACC + 8):
        for j in range(4): a(f"v_permlane32_swap_b32 v{b+j}, v{b+4+j}")
    for b in (ACC, ACC + 8):
        for j in range(4): a(f"v_add_f32 v{b+j}, v{b+j}, v{b+4+j}")
    a("s_nop 1")
    for b in (ACC, ACC + 8):
        for j in range(2): a(f"v_permlane16_swap_b32 v{b+j}, v{b+2+j}")
    for b in (ACC, ACC + 8):
        for j in range(2): a(f"v_add_f32 v{b+j}, v{b+j}, v{b+2+j}")
    a("s_nop 1")
    for b in (ACC, ACC + 8):
        for j in range(2): a(f"v_add_f32_dpp v{b+j}, v{b+j}, v{b+j} row_ror:8 row_mask:0xf bank_mask:0xf")
    a(f"""s_lshl_b32 s14, s3, 9
    v_lshrrev_b32 v4, 4, v0
    v_lshlrev_b32 v3, 5, v3
    v_lshl_add_u32 v3, v4, 3, v3
    v_add_u32 v3, s14, v3
    ds_write_b64 v3, {vr(ACC,2)}
    ds_write_b64 v3, {vr(ACC+8,2)} offset:256
    s_waitcnt lgkmcnt(0)
    s_barrier
    s_cmp_lg_u32 s3, 0
    s_cbranch_scc1 {Lpub}
    v_lshlrev_b32 v2, 2, v0""")
    for w in range(4): a(f"ds_read2st64_b32 {vr(16+2*w,2)}, v2 offset0:{2*w} offset1:{2*w+1}")
    a(f"""s_lshl_b32 s14, s8, 9
    s_add_u32 s14, s14, {WS['ST2']}
    v_lshl_add_u32 v2, v0, 3, s14
    s_waitcnt lgkmcnt(0)
    v_pk_add_f32 v[16:17], v[16:17], v[18:19]
    v_pk_add_f32 v[20:21], v[20:21], v[22:23]
    v_pk_add_f32 v[16:17], v[16:17], v[20:21]
    v_mul_f32 v16, {INV640}, v16
    v_mul_f32 v17, {INV640}, v17
    v_fma_f32 v17, -v16, v16, v17
    v_max_f32 v17, 0, v17
    v_add_f32 v17, 0x3727c5ac, v17
    v_rsq_f32 v18, v17
    s_nop 0
    v_mul_f32 v19, -v16, v18
    global_store_dwordx2 v2, v[18:19], s[12:13]{SC}
    {Lpub}:""")
    publish(a, 4, 52)
    a(f"{Lrest}:")
    wl(min(IW, NWD1), NWD1)
    a(f"s_waitcnt vmcnt(0)\ns_branch {Lg2}")

def phase_g1(a):
    Lidle, Lg2 = "g1_idle", a.label("g2")
    assert NWE == NWA == NW0
    g2_setup(a)
    if "1" in REP:
        publish_rep(a, 1, 52, vm=X1LATE)
        publish(a, 2, 58, nosync=True)
    else: publish(a, 2, 52, vm=X1LATE)
    a.stamp(10)
    flag2_check(a)
    for i in range(NWDP): a(wd_load(i))
    a(f"""s_and_b32 s8, s3, 1
    s_lshl_b32 s7, s6, 1
    s_add_u32 s7, s7, s8
    s_lshr_b32 s4, s3, 1""")
    a(f"""v_lshrrev_b32 v2, 4, v0
    v_and_b32 v3, 15, v0
    v_lshlrev_b32 v4, 1, v2
    v_xor_b32 v4, v4, v3
    v_lshlrev_b32 v2, 12, v2
    s_lshl_b32 s9, s3, 15
    s_lshl_b32 s10, s5, 9
    s_add_u32 s9, s9, s10
    v_add_u32 v2, s9, v2
    v_lshl_add_u32 v5, v4, 4, v2
    v_xor_b32 v4, 8, v4
    v_lshl_add_u32 v6, v4, 4, v2
    v_add_u32 v6, {4*4096}, v6
    s_lshl_b32 s26, s3, 11
    s_lshl_b32 s9, s4, 13""")
    ACC, XF, WF, TA, TW = 128, 64, 32, 10, 18
    xtile_tr_addrs(a, TA, 9)
    a(f"""v_lshrrev_b32 v2, 2, v0
    v_bfe_u32 v3, v0, 3, 2
    v_and_b32 v4, 3, v0
    v_lshlrev_b32 v2, 7, v2
    v_lshl_add_u32 v2, v4, 3, v2
    v_add_u32 v2, {WRING}, v2
    s_lshl_b32 s9, s8, 1
    v_xor_b32 v3, s9, v3
    v_lshl_add_u32 v{TW}, v3, 5, v2
    v_xor_b32 v3, 1, v3
    v_lshl_add_u32 v{TW+1}, v3, 5, v2
    v_add_u32 v28, 0x10000, v{TW}
    v_add_u32 v29, 0x10000, v{TW+1}""")
    add64(a, 14, 12, WS['X1S']); srd(a, 16, 14, 640 * 4096)
    vm = VM()
    def emit(items, nop=False):
        for t, x in items:
            a(x)
            if t: vm.add(t)
            elif nop: a("s_nop 0")
    def xd(k):
        out = []
        for rh in range(2):
            for u in range(2):
                pre = f"s_add_u32 m0, s26, {(k&3)*16384 + rh*(8192-256) + u*1024}" + (f"\ns_mov_b32 s25, {k*0x20000}" if not out else "")
                out += [(None, pre), (("X", k), f"buffer_load_dwordx4 v{5+u}, s[16:19], s25 offen offset:{256*rh}{SC} lds")]
        return out
    def trreads(k):
        x = [(None, f"ds_read_b64_tr_b16 {vr(XF+32*(k&1)+4*m+2*hf,2)}, v{TA+m} offset:{16384*(k&3)+4096*hf}") for m in range(8) for hf in range(2)]
        w = [(None, f"ds_read_b64_tr_b16 {vr(WF+16*(k&1)+4*f+2*hf,2)}, v{(TW if k%NSL < 8 else 28)+(f>>1)} offset:{8192*((k%NSL)&7)+4096*(f&1)+2048*hf}") for f in range(4) for hf in range(2)]
        return w + x
    a(f"""s_lshl_b32 s9, s5, 2
    s_lshl_b32 s10, s4, 1
    s_add_u32 s9, s9, s10
    v_add_u32 v20, s9, v0
    s_mul_i32 s10, s6, 37
    s_lshr_b32 s10, s10, 8
    s_mul_i32 s10, s10, 55
    s_lshl_b32 s11, s6, 3
    s_sub_u32 s10, s11, s10
    s_add_u32 s10, s10, {(512 + 160 - 8 - 1024 - 216) & 0xffffffff}
    v_lshl_add_u32 v21, v0, 2, s10
    v_cmp_gt_u32 vcc, 2, v0
    s_lshl_b32 s9, s9, 9
    s_add_u32 s9, s9, {WS['ST2']}
    v_cndmask_b32 v20, v21, v20, vcc
    v_lshlrev_b32 v20, 7, v20
    v_add_u32 v20, {WS['FL'] + (4*256+216)*128}, v20
    v_add_u32 v21, s9, v9
    v_bfe_u32 v22, v0, 3, 2
    v_mul_u32_u24 v22, {1728*4}, v22
    v_and_b32 v23, 7, v0
    v_lshl_add_u32 v22, v23, 4, v22
    s_lshl_b32 s9, s7, 7
    s_add_u32 s9, s9, {WS['CSB']}
    v_add_u32 v22, s9, v22
    v_mov_b32 v24, s70
    v_mov_b32 v25, s71
    s_lshl_b32 s30, s3, 10
    s_add_u32 s30, s30, {STL}
    s_lshl_b32 s31, s3, 9
    s_add_u32 s31, s31, {CSL}
    v_and_b32 v26, 15, v0
    v_lshl_add_u32 v26, v26, 3, s30
    v_lshrrev_b32 v27, 4, v0
    v_lshl_add_u32 v27, v27, 4, s31
    s_mul_i32 s9, s3, 40""")
    a(f"""s_lshr_b32 s10, s2, 3
    s_and_b32 s10, s10, 1
    s_lshl_b32 s10, s10, 2
    s_add_u32 s10, s10, s3
    s_lshl_b32 s10, s10, 12
    v_lshl_add_u32 v30, v0, 6, s10
    v_min_u32 v30, code_end - g1_tail - 4, v30""")
    for i in range(NWDP, NWD0): a(wd_load(i))
    a.stamp(11)
    if "lazy" in EXP: a("s_mul_i32 s9, s3, 10"); poll(a, 2, "s9", 10, 52)
    elif "lazy2" in EXP: a("s_mul_i32 s9, s3, 20"); poll(a, 2, "s9", 20, 52)
    else: poll(a, 2, "s9", 40, 52, rep=1 if "1" in REP else None)
    vm.q = []
    a("s_barrier")
    a.stamp(12)
    XE = int(os.environ.get("XE", "3"))
    for j in range(XE): emit(xd(j), True)
    emit(trreads(0)[:8])
    publish(a, 4, 2, nosync=True)
    a(vm.wait([("X", 0)]) + "\ns_barrier")
    emit(trreads(0)[8:])
    for j in range(XE, 4): emit(xd(j), True)
    a.stamp(13)
    wdi = NWD0; wnext = NW0
    fl = f"s_mov_b64 exec, 0xf\nglobal_load_dwordx2 v[24:25], v20, s[12:13]{SC}\ns_mov_b64 exec, -1"
    STV, CB = 32, 64
    for k in range(20):
        w = vm.wait([("W", k + 1), ("X", k + 1)] + (["S"] if k == 19 else []) + (["G"] if k == HK3 else []))
        a("s_waitcnt lgkmcnt(0)")
        if w: a(w)
        if k < 19: a("s_barrier")
        if "g1stamp" in EXP and k % 2 == 0 and k: a.stamp(k // 2)
        mem = []
        if k == HK3:
            Lok, Lsl = a.label("h3_ok"), a.label("h3_slow")
            a(f"""s_mov_b32 s74, 0x100000
            {Lsl}:
            v_cmp_ne_u64 vcc, s[70:71], v[24:25]
            s_cbranch_vccz {Lok}
            {fl}
            s_waitcnt vmcnt(0)
            s_sub_u32 s74, s74, 1
            s_cbranch_scc0 {Lsl}
            {Lok}:""")
            mem += [(None, "s_mov_b32 m0, s30"), ("S", f"global_load_lds_dwordx4 v21, s[12:13]{SC}"),
                    (None, "s_mov_b32 m0, s31"), ("S", f"s_mov_b32 exec_hi, 0\nglobal_load_lds_dwordx4 v22, s[12:13]{SC}\ns_mov_b64 exec, -1")]
        if k == HK3F: mem.append(("G", fl))
        if k == CPF:
            mem += [(None, f"s_getpc_b64 s[14:15]\ns_add_u32 s14, s14, g1_tail - .\ns_addc_u32 s15, s15, 0"), ("P", "global_load_dword v31, v30, s[14:15]")]
        if k == 18: a("g1_tail:")
        if k < 19: rd = trreads(k + 1)
        else:
            rd = [(None, f"ds_read_b64 {vr(STV+2*m,2)}, v26 offset:{128*m}") for m in range(8)]
            rd += [(None, f"ds_read_b128 {vr(CB+16*h+4*mt_,4)}, v27 offset:{128*mt_+64*h}") for h in range(2) for mt_ in range(4)]
        if k + 4 < 20: mem += xd(k + 4)
        if wnext < 20 and k >= WSTART: mem += wd_(wnext); wnext += 1
        cnt = lambda: sum(1 for e in mem if e[0] is not None)
        lim = LEVEL if k < 19 else 99
        while wdi < NWD1 and cnt() < lim and k >= WD_FIRST: mem.append((("D", wdi), wd_load(wdi))); wdi += 1
        slots = [[] for _ in range(32)]
        if SPREAD:
            groups = []; pend = []
            for e in mem:
                if e[0] is None: pend.append(e)
                else: groups.append((pend, e)); pend = []
            n = len(groups)
            pos = [1 + (i * 31) // n for i in range(n)] if n else []
            for (pre, e), p in zip(groups, pos):
                slots[p - 1] += pre; slots[p].insert(0, e)
            free = [i for i in range(RDEND) if i not in pos]
            order = free + [p for p in pos if p < RDEND] + free
            for e, p in zip(rd, sorted(order[:len(rd)])): slots[p].insert(1 if p in pos else 0, e)
        else:
            for i, e in enumerate(rd): slots[i].append(e)
            for i, e in enumerate(mem): slots[(32 - len(mem) + i) if len(mem) <= 20 else None].append(e)
        j = 0
        MO = os.environ.get("MORD", "m")
        if MO == "m": order_ = [(m, f) for m in range(8) for f in range(4)]
        elif MO == "ms": order_ = [(m, f if m % 2 == 0 else 3 - f) for m in range(8) for f in range(4)]
        elif MO == "f": order_ = [(m, f) for f in range(4) for m in range(8)]
        else: order_ = [(m if f % 2 == 0 else 7 - m, f) for f in range(4) for m in range(8)]
        for m, f in order_:
            if True:
                d = vr(ACC + 32 * f + 4 * m, 4)
                if "g1nomfma" in EXP: a("s_nop 0")
                else: a(f"v_mfma_f32_16x16x32_bf16 {d}, {vr(WF+16*(k&1)+4*f,4)}, {vr(XF+32*(k&1)+4*m,4)}, {d if k else '0'}")
                if "g1noload" in EXP: slots[j] = [e for e in slots[j] if "buffer_load" not in e[1]]
                if "g1notr" in EXP: slots[j] = [e for e in slots[j] if "_tr_" not in e[1]]
                emit(slots[j]); j += 1
    assert wdi == NWD1
    a.stamp(14)
    a(f"""s_lshl_b32 s9, s5, 1
    s_add_u32 s9, s9, s4
    s_mul_i32 s9, s9, {2*54}
    s_add_u32 s9, s9, s7
    s_lshl_b32 s9, s9, 12
    s_add_u32 s9, s9, {WS['HH']}""")
    add64(a, 14, 12, "s9"); add64(a, 28, 14, 54 * 4096)
    a("s_waitcnt lgkmcnt(0)")
    for m in range(8):
        st_ = vr(STV + 2 * m, 2); o = 96 + 4 * (m & 3)
        for h in range(2):
            G, U = ACC + 64 * h + 4 * m, ACC + 64 * h + 32 + 4 * m
            c = CB + 16 * h; t = 112 + 8 * h
            for p in range(2):
                a(f"v_pk_fma_f32 {vr(t+2*p,2)}, {vr(c+2*p,2)}, {st_}, {vr(c+4+2*p,2)} op_sel:[0,1,0] op_sel_hi:[1,1,1]")
                a(f"v_pk_fma_f32 {vr(t+4+2*p,2)}, {vr(c+8+2*p,2)}, {st_}, {vr(c+12+2*p,2)} op_sel:[0,1,0] op_sel_hi:[1,1,1]")
            for p in range(2):
                a(f"v_pk_fma_f32 {vr(G+2*p,2)}, {vr(G+2*p,2)}, {st_}, {vr(t+2*p,2)} op_sel_hi:[1,0,1]")
                a(f"v_pk_fma_f32 {vr(U+2*p,2)}, {vr(U+2*p,2)}, {st_}, {vr(t+4+2*p,2)} op_sel_hi:[1,0,1]")
            for r in range(4): a(f"v_max_f32 v{G+r}, 0, v{G+r}")
            for p in range(2): a(f"v_pk_mul_f32 {vr(G+2*p,2)}, {vr(G+2*p,2)}, {vr(U+2*p,2)}")
            for p in range(2): a(f"v_cvt_pk_bf16_f32 v{o+2*h+p}, v{G+2*p}, v{G+2*p+1}")
        sb_ = 14 if m < 4 else 28
        a(f"global_store_dwordx4 v9, {vr(o,4)}, s[{sb_}:{sb_+1}] offset:{1024*(m&3)}{SC}")
    a(f"s_branch {Lg2}\n{Lidle}:")
    phase_idle(a, Lg2)
    a(f"{Lg2}:")

def phase_g2(a):
    a.stamp(15)
    n1 = NWD1
    for i in range(n1, n1 + NWD2): a(wd_load(i))
    a(f"s_load_dwordx2 s[30:31], s[0:1], {KA['out']}")
    for sg in range(4):
        a(f"""s_add_u32 s7, s3, {sg}
        s_and_b32 s7, s7, 3
        s_lshl_b32 s8, s7, 10
        v_add_u32 v{10+sg}, s8, v9""")
        if sg: a(f"s_mul_i32 s8, s7, {15*1024}\ns_add_u32 s8, s8, {(sg-1)*5*1024}\nv_add_u32 v{13+sg}, s8, v9")
    a(f"s_mul_i32 s8, s44, {54*4096}\ns_add_u32 s8, s8, {WS['HH']}")
    add64(a, 14, 12, "s8"); srd(a, 16, 14, 54 * 4096)
    ACC, XR, GB, SEL, HB = 152, 20, 40, 60, 64
    NB = 5
    a(f"""v_and_b32 v2, 15, v0
    v_lshrrev_b32 v3, 4, v0
    v_lshlrev_b32 v4, 12, v2
    v_lshl_add_u32 v4, v3, 4, v4
    v_lshlrev_b32 v18, 4, v3
    s_mul_i32 s8, s45, {80*4096}
    s_lshl_b32 s9, s44, 7
    s_add_u32 s8, s8, s9
    s_lshr_b32 s9, s3, 1
    s_lshl_b32 s9, s9, 6
    s_add_u32 s8, s8, s9
    s_add_u32 s8, s8, {WS['X1T']}
    s_add_u32 s14, s12, s8
    s_addc_u32 s15, s13, 0
    s_mul_i32 s8, s45, 320
    s_add_u32 s8, s8, {WS['MOD'] + 5*2560}
    s_add_u32 s26, s12, s8
    s_addc_u32 s27, s13, 0
    s_and_b32 s8, s3, 1
    s_lshl_b32 s8, s8, 4
    v_lshlrev_b32 v5, 3, v3
    v_sub_u32 v5, v2, v5
    v_add_u32 v5, s8, v5
    v_mov_b32 v6, 0x3f80
    v_mov_b32 v7, 0x3f800000""")
    for p in range(4):
        a(f"""v_cmp_eq_u32 vcc, {2*p}, v5
        v_cmp_eq_u32 s[28:29], {2*p+1}, v5
        s_nop 1
        v_cndmask_b32 v{SEL+p}, 0, v6, vcc
        v_cndmask_b32 v{SEL+p}, v{SEL+p}, v7, s[28:29]""")
    a(f"""s_bfe_u32 s8, s44, 0x20002
    v_lshl_add_u32 v147, v0, 2, s8
    v_mul_u32_u24 v146, 2428, v147
    v_lshrrev_b32 v146, 16, v146
    v_lshlrev_b32 v147, 3, v147
    v_mul_u32_u24 v145, {8*27-1}, v146
    v_sub_u32 v147, v147, v145
    s_lshr_b32 s8, s44, 4
    s_lshl_b32 s8, s8, 2
    v_add_u32 v147, s8, v147
    s_lshl_b32 s24, s3, 12""")
    if "2" in REP: publish_rep(a, 2, 136, vm=NWD2)
    else: publish(a, 3, 148, vm=NWD2)
    a.stamp(16)
    for i in range(n1 + NWD2, 70): a(wd_load(i))
    a(f"""v_lshrrev_b32 v4, 2, v0
    v_lshlrev_b32 v4, 12, v4
    v_bfe_u32 v19, v0, 4, 2
    v_xor_b32 v19, v19, v0
    v_and_b32 v19, 3, v19
    v_lshl_add_u32 v4, v19, 4, v4
    s_mul_i32 s9, s3, 5120
    s_add_u32 s9, s9, {W3L}
    v_bfe_u32 v19, v0, 2, 2
    v_xor_b32 v19, v19, v3
    v_lshl_add_u32 v19, v2, 2, v19
    v_lshl_add_u32 v19, v19, 4, s9""")
    late = [(99, f"s_add_u32 m0, s9, {1024*d}\ns_nop 0\nglobal_load_lds_dwordx4 v4, s[14:15]{SC}\ns_add_u32 s14, s14, 0x10000\ns_addc_u32 s15, s15, 0") for d in range(5)]
    late += [(99, f"s_lshl_b32 s8, s3, 9\ns_add_u32 m0, s8, {CSL}\nv_add_u32 v18, m0, v18\ns_mov_b64 exec, 0xfffff\nglobal_load_lds_dwordx4 v9, s[26:27]{SC}\ns_mov_b64 exec, -1")]
    if not XLATE:
        for e in late: a(e[1])
        late = []
    OA, OB = (148, 149, 150), (151, 1, 4)
    a(f"""s_mul_i32 s8, s3, 2816
    s_add_u32 s8, s8, 65536
    v_mul_u32_u24 v5, 176, v2
    v_lshl_add_u32 v5, v3, 3, v5
    v_add_u32 v5, s8, v5""")
    for i in range(3):
        a(f"""v_add_u32 v6, {64*i}, v0
        v_min_u32 v6, 159, v6
        v_mul_u32_u24 v7, 6554, v6
        v_lshrrev_b32 v7, 16, v7
        v_lshlrev_b32 v6, 4, v6
        v_lshl_add_u32 v{OA[i]}, v7, 4, v6
        v_add_u32 v{OA[i]}, s8, v{OA[i]}
        v_mul_u32_u24 v7, {1280-160}, v7
        v_add_u32 v{OB[i]}, v6, v7""")
    a(f"""s_mul_i32 s8, s3, {15*1024}
    v_add_u32 v17, s8, v9
    s_lshl_b32 s8, s44, 2
    s_add_u32 s8, s8, s3
    s_mul_i32 s8, s8, {16*1280}
    s_mul_i32 s9, s45, 160
    s_add_u32 s8, s8, s9
    s_waitcnt lgkmcnt(0)""")
    add64(a, 30, 30, "s8")
    poll(a, 3, None, 27, 144, idxreg=147, rep=2 if "2" in REP else None)
    a.stamp(17)
    if "opf" in EXP:
        a(f"""s_lshl_b32 s8, s44, 2
        s_add_u32 s8, s8, s3
        s_mul_i32 s8, s8, {16*1280}
        s_mul_i32 s9, s45, 160
        s_add_u32 s8, s8, s9
        v_mul_u32_u24 v19, 1280, v2
        v_mul_u32_u24 v145, 52, v3
        v_add3_u32 v19, v19, v145, s8
        s_waitcnt lgkmcnt(0)
        global_load_dword v145, v19, s[30:31]""")
    vm = VM()
    def hl(st):
        return [(st, (f"s_add_u32 s25, s24, {st*16384}\n" if sg == 0 else "") + f"buffer_load_dwordx4 {vr(HB+16*(st%NB)+4*sg,4)}, v{10+sg}, s[16:19], s25 offen{SC}") for sg in range(4)]
    rest = []
    def emit(e):
        if "g2noload" in EXP and "s[16:19]" in e[1] and e[0] >= 4: return
        if "g2norest" in EXP and "s[16:19]" not in e[1]: return
        a(e[1]); vm.add(e[0])
    for st in range(NB - 1):
        for e in hl(st): emit(e)
    for d in range(5): a(f"ds_read_b128 {vr(128+4*d,4)}, v19 offset:{1024*d}")
    for d in range(5): a(f"ds_read_b128 {vr(GB+4*d,4)}, v18 offset:{64*d}")
    a("s_waitcnt lgkmcnt(5)")
    for d in range(5): a(f"v_mfma_f32_16x16x32_bf16 {vr(20+4*d,4)}, {vr(128+4*d,4)}, {vr(SEL,4)}, 0")
    Lskip, Ljoin = a.label("g2_skip"), a.label("g2_join")
    a.retry = [f"{Lskip}:\n" + "\n".join(f"ds_write_b128 v{13+sg}, {vr(ACC+20*sg+4*d,4)} offset:{1024*d}" for sg in range(1, 4) for d in range(5)) + f"\ns_branch {Ljoin}"]
    for st in range(14):
        if st == 13: a(f"s_cmp_ge_u32 s3, 2\ns_cbranch_scc1 {Lskip}")
        a(vm.wait(list(range(st + 1))) or "s_nop 0")
        if "g2stamp" in EXP and st in (0, 1, 2, 4, 6, 8, 10, 12): a.stamp({0: 1, 1: 2, 2: 3, 4: 4, 6: 5, 8: 6, 10: 7, 12: 8}[st])
        ex = hl(st + NB - 1) if st + NB - 1 < 14 else []
        if st >= 10: ex += late[:4]; late = late[4:]
        for sg in ((0, 1, 2, 3) if st < 13 else (1, 2, 3, 0)):
            for d in range(5):
                t = vr(ACC + 20 * sg + 4 * d, 4)
                if "g2nomfma" not in EXP: a(f"v_mfma_f32_16x16x32_bf16 {t}, {wd_reg(5*st+d)}, {vr(HB+16*(st%NB)+4*sg,4)}, {t if st else '0'}")
                if ex and (d == G2POS or not SPREAD): emit(ex.pop(0))
                if st == 13 and sg in (3, 0): a(f"ds_write_b128 v{14 if sg == 3 else 15}, {vr(ACC+20*(1 if sg == 3 else 2)+4*d,4)} offset:{1024*d}")
        assert not ex
    assert not rest
    a.stamp(18)
    XD = 20
    for d in range(5): a(f"ds_write_b128 v16, {vr(ACC+60+4*d,4)} offset:{1024*d}")
    a(f"{Ljoin}:\ns_waitcnt lgkmcnt(0)")
    if "fstamp" in EXP: a.stamp(1)
    a("s_barrier")
    if "fstamp" in EXP: a.stamp(2)
    for d in range(5):
        for sg in range(1, 4): a(f"ds_read_b128 {vr(ACC+20*sg+4*d,4)}, v17 offset:{1024*(5*(sg-1)+d)}")
    for d in range(5):
        a(f"s_waitcnt lgkmcnt({12-3*d + (d if OUTT else 0)})")
        t = ACC + 4 * d
        for p in range(2):
            a(f"v_pk_add_f32 {vr(t+2*p,2)}, {vr(t+2*p,2)}, {vr(t+20+2*p,2)}")
            a(f"v_pk_add_f32 {vr(t+40+2*p,2)}, {vr(t+40+2*p,2)}, {vr(t+60+2*p,2)}")
        for p in range(2): a(f"v_pk_add_f32 {vr(t+2*p,2)}, {vr(t+2*p,2)}, {vr(t+40+2*p,2)}")
        for p in range(2): a(f"v_pk_fma_f32 {vr(t+2*p,2)}, {vr(t+2*p,2)}, {vr(GB+4*d+2*p,2)}, {vr(XD+4*d+2*p,2)}")
        a(f"v_cvt_pk_bf16_f32 v{t}, v{t}, v{t+1}\nv_cvt_pk_bf16_f32 v{t+1}, v{t+2}, v{t+3}")
        if OUTT: a(f"ds_write_b64 v5, {vr(t,2)} offset:{32*d}")
        else: a(f"global_store_dwordx2 v4, {vr(t,2)}, s[30:31] offset:{32*d}")
    if OUTT:
        for i in range(3): a(f"ds_read_b128 {vr(100+4*i,4)}, v{OA[i]}")
        for i in range(3):
            a(f"s_waitcnt lgkmcnt({2-i})")
            if i == 2: a("s_mov_b32 exec_hi, 0")
            a(f"global_store_dwordx4 v{OB[i]}, {vr(100+4*i,4)}, s[30:31]")

DOC = """; ---------------------------------------------------------------------------------------------
;  wg >= 160 : modulation GEMV, LN1 statistics, W_down fragment layout, column sums for folded LN2
; ---------------------------------------------------------------------------------------------
"""
def build():
    a = A()
    hdr = open("cdna_kernels/" + NAME + ".s.ref").read().split("; Override launch")[0]
    a(f'.amdgcn_target "amdgcn-amd-amdhsa--gfx950"\n.text\n.globl {KNAME}\n.p2align 8\n.type {KNAME},@function\n{KNAME}:')
    Lend, Laux, Lg1, Lnt = a.label("end"), a.label("aux"), a.label("g1"), a.label("notag")
    if DIAG:
        for i in range(NSTAMP): a(f"s_mov_b32 s{48+i}, 0")
    a.stamp(0)
    a(f"""s_cmp_ge_u32 s2, 256
    s_cbranch_scc1 {Lend}
    s_load_dwordx2 s[12:13], s[0:1], {KA['ws']}
    s_load_dwordx2 s[72:73], s[0:1], {KA['dbg']}
    v_lshrrev_b32 v1, 6, v0
    v_and_b32 v0, 63, v0
    v_readfirstlane_b32 s3, v1
    s_mov_b32 s69, 0xffff0000
    s_cmp_lg_u32 s2, 255
    s_cbranch_scc1 {Lnt}
    s_cmp_lg_u32 s3, 0
    s_cbranch_scc1 {Lnt}
    s_memrealtime s[70:71]
    v_mov_b32 v4, 0
    s_waitcnt lgkmcnt(0)
    s_or_b32 s70, s70, 1
    v_mov_b32 v2, s70
    v_mov_b32 v3, s71
    s_mov_b64 exec, 1
    global_store_dwordx2 v4, v[2:3], s[72:73]{SC}
    s_mov_b64 exec, -1
    {Lnt}:""")
    if "tlb" in EXP:
        TSH = int(os.environ.get("TSH", "20"))
        Ltl = a.label("notouch")
        npg = (_off >> TSH) + 1
        assert npg <= 64
        a(f"""s_cmp_lg_u32 s3, 1
        s_cbranch_scc1 {Ltl}
        s_load_dwordx4 s[4:7], s[0:1], {KA['wg']}
        s_load_dwordx2 s[8:9], s[0:1], {KA['wd']}
        s_load_dwordx2 s[10:11], s[0:1], {KA['out']}
        v_min_u32 v2, {npg-1}, v0
        v_lshlrev_b32 v2, {TSH}, v2
        v_min_u32 v3, 0x200000, v2
        s_waitcnt lgkmcnt(0)
        global_load_dword v251, v2, s[12:13]{NT}
        global_load_dword v251, v3, s[4:5]{NT}
        global_load_dword v251, v3, s[6:7]{NT}
        global_load_dword v251, v3, s[8:9]{NT}
        global_load_dword v251, v3, s[10:11]{NT}
        {Ltl}:""")
    a(f"""s_cmp_ge_u32 s2, 160
    s_cbranch_scc1 {Laux}""")
    phase_conv(a, Lg1)
    a(f"{Laux}:")
    phase_aux(a, Lg1)
    a(f"{Lg1}:")
    phase_g1(a)
    phase_g2(a)
    if DIAG:
        if "fstamp" in EXP: a.stamp(3)
        a("s_waitcnt vmcnt(0)")
        a.stamp(19)
        AMP = os.environ.get("AMP", "")
        if AMP:
            i, wgsel = (int(x) for x in AMP.split(":"))
            Lsp, Lsk = a.label("spin"), a.label("nospin")
            a(f"""s_cmp_lg_u32 s2, {wgsel}
            s_cbranch_scc1 {Lsk}
            s_sub_u32 s4, s{48+i}, s48
            s_lshl_b32 s4, s4, 3
            {Lsp}:
            s_memrealtime s[76:77]
            s_waitcnt lgkmcnt(0)
            s_sub_u32 s5, s76, s67
            s_cmp_lt_u32 s5, s4
            s_cbranch_scc1 {Lsp}
            {Lsk}:""")
        a(f"""s_lshl_b32 s4, s2, 2
        s_add_u32 s4, s4, s3
        s_lshl_b32 s4, s4, 7
        s_add_u32 s4, s4, {TS_OFF}
        v_mov_b32 v0, s4
        s_mov_b64 exec, 1""")
        for i in range(NSTAMP): a(f"v_mov_b32 v2, s{48+i}\nglobal_store_dword v0, v2, s[12:13] offset:{4*i}\ns_nop 1")
    a(f"{Lend}:\ns_endpgm")
    for r in a.retry: a(r)
    a("code_end:")
    kd = f""".section .rodata,"a"
.p2align 6
.amdhsa_kernel {KNAME}
  .amdhsa_next_free_vgpr 512
  .amdhsa_next_free_sgpr 102
  .amdhsa_accum_offset 256
  .amdhsa_group_segment_fixed_size 0
  .amdhsa_kernarg_size 120
  .amdhsa_user_sgpr_count 2
  .amdhsa_user_sgpr_kernarg_segment_ptr 1
  .amdhsa_system_sgpr_workgroup_id_x 1
.end_amdhsa_kernel
"""
    return hdr + f"; @launch grid=(256,1,1) block=(256,1,1) lds={LDS_BYTES}\n" + DOC + a.text() + kd

if __name__ == "__main__":
    open(sys.argv[1] if len(sys.argv) > 1 else "p.s", "w").write(build())
```

```python
import sys, os
NAME = "adaLN_cond__ssm_conv_h3__glu_gated_reglu__prompt"
KNAME = NAME + "_kernel"
S, D, F = 2048, 640, 1728
KA = dict(x=0, k=8, v=16, shift=24, ssm=32, ssmD=40, bx=48, wg=56, wu=64, wd=72, c=80, wmod=88, out=96, dbg=104, ws=112)
WS = {}
_off = 0
def alloc(name, n):
    global _off
    WS[name] = _off
    _off += (n + 4095) // 4096 * 4096
alloc("FL", 6 * 256 * 128)
alloc("FR", 3 * 256 * 1024)
alloc("KVT", 640 * 4096 + 4096)
alloc("XTT", 640 * 4096)
alloc("ST", 2 * 2048 * 4)
alloc("MOD", 3840 * 4)
alloc("X1T", 640 * 4096)
alloc("X1S", 640 * 4096)
alloc("ST2", 2048 * 8)
alloc("CSB", 4 * 1728 * 4)
alloc("WD", 54 * 40 * 1024)
alloc("HH", 32 * 54 * 4096)
DIAG = bool(int(os.environ.get("DIAG", "0")))
EXP = os.environ.get("EXP", "").split(",")
TS_OFF = 64 << 20
NSTAMP = 20
SLEEP = int(os.environ.get("SLEEP", "1"))
FLMASK = os.environ.get("FLMASK", "0xffff")
REP = os.environ.get("REP", "01")
NT = " nt"
SC = " sc1"
INV640 = f"{1.0/640:#.9g}"

class A:
    def __init__(self):
        self.l = []; self.n = 0
    def __call__(self, s):
        for x in s.strip("\n").split("\n"):
            x = x.strip()
            if x: self.l.append(("" if x.endswith(":") else "    ") + x)
    def label(self, p="L"):
        self.n += 1
        return f"{p}_{self.n}"
    def stamp(self, i):
        J = os.environ.get("JIT")
        if J and i not in (0, 19):
            seed, mode = (int(x) for x in J.split(":"))
            L, Ld = self.label("jit"), self.label("jitd")
            self(f"""s_lshl_b32 s78, s2, 2
            s_add_u32 s78, s78, {'s3' if mode & 1 else 0}
            s_add_u32 s78, s78, {seed * 977 + i * 131}
            s_mul_i32 s78, s78, 0x9E3779B1
            s_lshr_b32 s79, s78, 29
            s_cmp_lg_u32 s79, 0
            s_cbranch_scc1 {Ld}
            s_bfe_u32 s78, s78, 0x40014
            {L}:
            s_sleep 32
            s_sub_u32 s78, s78, 1
            s_cbranch_scc0 {L}
            {Ld}:""")
            return
        if DIAG: self(f"{'s_memtime' if 'cyc' in EXP else 's_memrealtime'} s[76:77]\ns_waitcnt lgkmcnt(0)\ns_mov_b32 s{48+i}, s76")
    def text(self): return "\n".join(self.l) + "\n"

def vr(b, n=1, p="v"): return f"{p}{b}" if n == 1 else f"{p}[{b}:{b+n-1}]"
def ar(b, n=1): return vr(b, n, "a")
def srd(a, dst, base, nbytes):
    a(f"s_mov_b32 s{dst}, s{base}\ns_and_b32 s{dst+1}, s{base+1}, 0xffff\ns_mov_b32 s{dst+2}, {nbytes}\ns_mov_b32 s{dst+3}, 0x20000")
def add64(a, dst, base, off):
    a(f"s_add_u32 s{dst}, s{base}, {off}\ns_addc_u32 s{dst+1}, s{base+1}, 0")
def dma(a, voff, sbase, m0, extra=""):
    a(f"s_mov_b32 m0, {m0}\ns_nop 0\nglobal_load_lds_dwordx4 v{voff}, s[{sbase}:{sbase+1}]{extra}")
def rbf16(a, dst, src):
    a(f"v_cvt_pk_bf16_f32 v{dst}, v{src}, v{src}\nv_lshlrev_b32 v{dst}, 16, v{dst}")

def get_tag(a, vt):
    L, Ld = a.label("tag"), a.label("tagd")
    a(f"""s_mov_b32 s74, 0x100000
    v_mov_b32 v{vt+2}, 0
    {L}:
    s_mov_b64 exec, 1
    global_load_dwordx2 {vr(vt,2)}, v{vt+2}, s[72:73]{SC}
    s_mov_b64 exec, -1
    s_waitcnt vmcnt(0)
    v_readfirstlane_b32 s70, v{vt}
    v_readfirstlane_b32 s71, v{vt+1}
    s_sub_u32 s74, s74, 1
    s_cbranch_scc1 {Ld}
    s_cmp_eq_u64 s[70:71], 0
    s_cbranch_scc1 {L}
    {Ld}:""")

def publish(a, phase, vt, vm=0, nosync=False):
    L = a.label("pub")
    if not nosync: a(f"s_waitcnt vmcnt({vm})\ns_barrier")
    a(f"""s_cmp_lg_u32 s3, 0
    s_cbranch_scc1 {L}
    s_lshl_b32 s74, s2, 7
    s_add_u32 s74, s74, {WS['FL'] + phase*256*128}
    v_lshl_add_u32 v{vt+2}, v0, 3, s74
    v_mov_b32 v{vt}, s70
    v_mov_b32 v{vt+1}, s71
    s_mov_b64 exec, {FLMASK}
    global_store_dwordx2 v{vt+2}, {vr(vt,2)}, s[12:13]{SC}
    s_mov_b64 exec, -1
    {L}:""")

def publish_rep(a, fs, vt, vm=0):
    L = a.label("pubr")
    a(f"""s_waitcnt vmcnt({vm})
    s_barrier
    s_cmp_lg_u32 s3, 0
    s_cbranch_scc1 {L}
    s_lshl_b32 s74, s2, 10
    s_add_u32 s74, s74, {WS['FR'] + fs*256*1024}
    v_lshl_add_u32 v{vt+4}, v0, 4, s74
    v_mov_b32 v{vt}, s70
    v_mov_b32 v{vt+1}, s71
    v_mov_b32 v{vt+2}, s70
    v_mov_b32 v{vt+3}, s71
    global_store_dwordx4 v{vt+4}, {vr(vt,4)}, s[12:13]{SC}
    s_nop 1
    {L}:""")

def publish_wave(a, fs, vt, vm=0):
    a(f"""s_lshl_b32 s74, s2, 3
    s_add_u32 s74, s74, s3
    s_lshl_b32 s74, s74, 7
    s_add_u32 s74, s74, {WS['FR'] + fs*256*1024}
    v_lshl_add_u32 v{vt+2}, v0, 3, s74
    v_mov_b32 v{vt}, s70
    v_mov_b32 v{vt+1}, s71
    s_mov_b64 exec, 0xffff
    s_waitcnt vmcnt({vm})
    global_store_dwordx2 v{vt+2}, {vr(vt,2)}, s[12:13]{SC}
    s_mov_b64 exec, -1""")

def poll(a, phase, first, count, vt, idxreg=None, rep=None, sub=None):
    L, Ld = a.label("poll"), a.label("polld")
    if idxreg is None:
        a(f"v_add_u32 v{vt+2}, {first}, v0")
        idxreg = vt + 2
    if rep is None:
        a(f"v_lshlrev_b32 v{vt+2}, 7, v{idxreg}\nv_add_u32 v{vt+2}, {WS['FL'] + phase*256*128}, v{vt+2}")
    else:
        a("s_and_b32 s74, s2, 7" if sub is None else f"s_mov_b32 s74, {sub}")
        a(f"s_lshl_b32 s74, s74, 7\ns_add_u32 s74, s74, {WS['FR'] + rep*256*1024}\nv_lshl_add_u32 v{vt+2}, v{idxreg}, 10, s74")
    a("s_mov_b32 s74, 0x100000")
    if count < 64: a(f"s_mov_b64 exec, {(1 << count) - 1:#x}" if count <= 31 else f"s_mov_b32 exec_hi, {(1 << (count - 32)) - 1:#x}")
    a(f"""{L}:
    global_load_dwordx2 {vr(vt,2)}, v{vt+2}, s[12:13]{SC}
    s_waitcnt vmcnt(0)
    v_cmp_ne_u64 vcc, s[70:71], {vr(vt,2)}
    s_and_b64 exec, exec, vcc
    s_cbranch_execz {Ld}
    s_sleep {SLEEP}
    s_sub_u32 s74, s74, 1
    s_cbranch_scc0 {L}
    {Ld}:
    s_mov_b64 exec, -1""")

def poll_multi(a, phase, count, vt):
    L, Ld = a.label("pollm"), a.label("pollmd")
    a(f"""v_lshlrev_b32 v{vt+6}, 7, v0
    v_add_u32 v{vt+6}, {WS['FL'] + phase*256*128}, v{vt+6}
    v_add_u32 v{vt+7}, {64*128}, v{vt+6}
    v_add_u32 v{vt+8}, {128*128}, v{vt+6}
    s_mov_b64 s[38:39], -1
    s_mov_b64 s[10:11], -1
    s_mov_b32 s28, {(1 << (count - 128)) - 1:#x}
    s_mov_b32 s29, 0
    s_mov_b32 s74, 0x100000
    {L}:""")
    for i, m in enumerate(("s[38:39]", "s[10:11]", "s[28:29]")):
        Ls = a.label("pm")
        a(f"s_mov_b64 exec, {m}\ns_cbranch_execz {Ls}\nglobal_load_dwordx2 {vr(vt+2*i,2)}, v{vt+6+i}, s[12:13]{SC}\n{Ls}:")
    a("s_mov_b64 exec, -1\ns_waitcnt vmcnt(0)")
    for i, m in enumerate(("s[38:39]", "s[10:11]", "s[28:29]")):
        a(f"v_cmp_ne_u64 vcc, s[70:71], {vr(vt+2*i,2)}\ns_and_b64 {m}, {m}, vcc")
    a(f"""s_or_b64 vcc, s[38:39], s[10:11]
    s_or_b64 vcc, vcc, s[28:29]
    s_cbranch_scc0 {Ld}
    s_sleep {SLEEP}
    s_sub_u32 s74, s74, 1
    s_cbranch_scc0 {L}
    {Ld}:""")

def xtile_tr_addrs(a, dst, base_sgpr=None):
    a("""v_lshrrev_b32 v2, 2, v0
    v_and_b32 v3, 7, v2
    v_lshlrev_b32 v3, 1, v3
    v_bfe_u32 v4, v0, 1, 1
    v_or_b32 v3, v3, v4
    v_lshlrev_b32 v2, 8, v2
    v_and_b32 v4, 1, v0
    v_lshl_add_u32 v2, v4, 3, v2""")
    if base_sgpr is not None: a(f"v_add_u32 v2, s{base_sgpr}, v2")
    for m in range(8): a(f"v_xor_b32 v4, {2*m}, v3\nv_lshl_add_u32 v{dst+m}, v4, 4, v2")

def stats_issue(a, R, sx, srow):
    a(f"""s_lshl_b32 s14, s3, 4
    s_add_u32 s14, s14, s{srow}
    s_mul_i32 s14, s14, 1280
    v_lshrrev_b32 v{R+80}, 4, v0
    v_mul_u32_u24 v{R+80}, {1280-256}, v{R+80}
    v_lshl_add_u32 v{R+80}, v0, 4, v{R+80}""")
    add64(a, 14, sx, "s14")
    for gq in range(4):
        for i in range(5): a(f"global_load_dwordx4 {vr(R+20*gq+4*i,4)}, v{R+80}, s[14:15] offset:{256*i}{NT}")
        if gq < 3: add64(a, 14, 14, 4 * 1280)
def stats_compute(a, R, srow):
    T = R + 80
    a("s_mov_b32 s14, 0x3f803f80")
    for half in range(2):
        a(f"s_waitcnt vmcnt({11 if half == 0 else 1})")
        for i in range(20):
            for gq in (2 * half, 2 * half + 1):
                a(f"v_dot2_f32_bf16 v{T+2*gq}, v{R+20*gq+i}, s14, {'0' if i == 0 else f'v{T+2*gq}'}")
                a(f"v_dot2_f32_bf16 v{T+2*gq+1}, v{R+20*gq+i}, v{R+20*gq+i}, {'0' if i == 0 else f'v{T+2*gq+1}'}")
    a("s_nop 2")
    for rot in (8, 4, 2, 1):
        for j in range(8): a(f"v_add_f32_dpp v{T+j}, v{T+j}, v{T+j} row_ror:{rot} row_mask:0xf bank_mask:0xf")
    a(f"""v_and_b32 v{R}, 3, v0
    v_cmp_eq_u32 vcc, 1, v{R}
    v_cmp_eq_u32 s[14:15], 2, v{R}
    v_cmp_eq_u32 s[16:17], 3, v{R}
    v_lshrrev_b32 v{R+1}, 4, v0
    v_lshl_add_u32 v{R}, v{R}, 2, v{R+1}
    v_cndmask_b32 v{T}, v{T}, v{T+2}, vcc
    v_cndmask_b32 v{T+1}, v{T+1}, v{T+3}, vcc
    v_cndmask_b32 v{T}, v{T}, v{T+4}, s[14:15]
    v_cndmask_b32 v{T+1}, v{T+1}, v{T+5}, s[14:15]
    v_cndmask_b32 v{T}, v{T}, v{T+6}, s[16:17]
    v_cndmask_b32 v{T+1}, v{T+1}, v{T+7}, s[16:17]
    v_mul_f32 v{T}, {INV640}, v{T}
    v_mul_f32 v{T+1}, {INV640}, v{T+1}
    v_fma_f32 v{T+1}, -v{T}, v{T}, v{T+1}
    v_max_f32 v{T+1}, 0, v{T+1}
    v_add_f32 v{T+1}, 0x3727c5ac, v{T+1}
    v_rsq_f32 v{T+1}, v{T+1}
    s_lshl_b32 s14, s3, 4
    s_add_u32 s14, s14, s{srow}
    s_lshl_b32 s14, s14, 3
    s_add_u32 s14, s14, {WS['ST']}
    v_mul_f32 v{T}, -v{T}, v{T+1}
    v_and_b32 v{R+1}, 4, v0
    v_cmp_eq_u32 vcc, 0, v{R+1}
    v_lshl_add_u32 v{R}, v{R}, 2, s14
    v_lshl_add_u32 v{R}, v{R+1}, 4, v{R}
    v_cndmask_b32 v{T}, v{T}, v{T+1}, vcc
    s_mov_b32 exec_lo, 0xff00ff
    s_mov_b32 exec_hi, 0xff00ff
    global_store_dword v{R}, v{T}, s[12:13]{SC}
    s_mov_b64 exec, -1""")

def mod_slab(a, sslab, sc, sw, ldsoff):
    R, CR, SV, ACC, U = 100, 180, 16, 56, 64
    a(f"""s_lshl_b32 s14, s3, 3
    v_lshrrev_b32 v2, 3, v0
    v_add_u32 v2, s14, v2
    v_mul_u32_u24 v3, 40, v2
    global_load_dwordx4 {vr(CR,4)}, v3, s[{sc}:{sc+1}]
    global_load_dwordx4 {vr(CR+4,4)}, v3, s[{sc}:{sc+1}] offset:16
    global_load_dwordx2 {vr(CR+8,2)}, v3, s[{sc}:{sc+1}] offset:32
    v_mul_u32_u24 v2, {20*7680}, v2
    v_and_b32 v3, 7, v0
    v_lshl_add_u32 v2, v3, 4, v2
    s_lshl_b32 s16, s{sslab}, 7""")
    add64(a, 14, sw, "s16")
    for i in range(20):
        a(f"global_load_dwordx4 {vr(R+4*i,4)}, v2, s[14:15]{NT}")
        if i < 19: add64(a, 14, 14, 7680)
        if i == 9:
            a("s_waitcnt vmcnt(10)")
            for j in range(10): a(f"v_lshlrev_b32 v{SV+4*j+1}, 16, v{CR+j}\nv_and_b32 v{SV+4*j+3}, s69, v{CR+j}")
            for j in range(20): a(f"v_mul_f32 v{SV+2*j}, 0xbfb8aa3b, v{SV+2*j+1}")
            for j in range(20): a(f"v_exp_f32 v{SV+2*j}, v{SV+2*j}")
            for j in range(20): a(f"v_add_f32 v{SV+2*j}, 1.0, v{SV+2*j}")
            for j in range(20): a(f"v_rcp_f32 v{SV+2*j}, v{SV+2*j}")
            for j in range(20): a(f"v_mul_f32 v{SV+2*j}, v{SV+2*j+1}, v{SV+2*j}")
            for j in range(10): a(f"v_cvt_pk_bf16_f32 v{SV+4*j+1}, v{SV+4*j}, v{SV+4*j+2}")
            for j in range(10): a(f"v_lshlrev_b32 v{SV+4*j}, 16, v{SV+4*j+1}\nv_and_b32 v{SV+4*j+2}, s69, v{SV+4*j+1}")
    tag_issue(a, 212)
    for i in range(20):
        a(f"s_waitcnt vmcnt({20-i if i < 19 else 0})")
        u = U + 8 * (i & 1)
        for j in range(4): a(f"v_lshlrev_b32 v{u+2*j}, 16, v{R+4*i+j}\nv_and_b32 v{u+2*j+1}, s69, v{R+4*i+j}")
        for j in range(4):
            if i == 0: a(f"v_pk_mul_f32 {vr(ACC+2*j,2)}, {vr(u+2*j,2)}, {vr(SV,2)} op_sel_hi:[1,0]")
            else: a(f"v_pk_fma_f32 {vr(ACC+2*j,2)}, {vr(u+2*j,2)}, {vr(SV+2*i,2)}, {vr(ACC+2*j,2)} op_sel_hi:[1,0,1]")
    a("s_nop 1")
    for j in range(4): a(f"v_permlane32_swap_b32 v{ACC+j}, v{ACC+4+j}")
    a("s_nop 0")
    for j in range(4): a(f"v_add_f32 v{ACC+j}, v{ACC+j}, v{ACC+4+j}")
    a("s_nop 1")
    for j in range(2): a(f"v_permlane16_swap_b32 v{ACC+j}, v{ACC+2+j}")
    a("s_nop 0")
    for j in range(2): a(f"v_add_f32 v{ACC+j}, v{ACC+j}, v{ACC+2+j}")
    a("s_nop 1")
    for j in range(2): a(f"v_add_f32_dpp v{ACC+j}, v{ACC+j}, v{ACC+j} row_ror:8 row_mask:0xf bank_mask:0xf")
    L = a.label("modfin")
    a(f"""s_lshl_b32 s14, s3, 8
    s_add_u32 s14, s14, {ldsoff}
    v_lshrrev_b32 v4, 4, v0
    v_lshlrev_b32 v3, 5, v3
    v_lshl_add_u32 v3, v4, 3, v3
    v_add_u32 v3, s14, v3
    ds_write_b64 v3, {vr(ACC,2)}
    s_waitcnt lgkmcnt(0)
    s_barrier
    s_cmp_lg_u32 s3, 0
    s_cbranch_scc1 {L}
    v_lshlrev_b32 v2, 2, v0
    v_add_u32 v3, {ldsoff}, v2
    ds_read2st64_b32 v[4:5], v3 offset0:0 offset1:1
    ds_read2st64_b32 v[6:7], v3 offset0:2 offset1:3
    s_lshl_b32 s14, s{sslab}, 8
    s_add_u32 s14, s14, {WS['MOD']}
    v_add_u32 v2, s14, v2
    s_waitcnt lgkmcnt(0)
    v_pk_add_f32 v[4:5], v[4:5], v[6:7]
    s_nop 0
    v_add_f32 v4, v4, v5""")
    rbf16(a, 4, 4)
    a(f"global_store_dword v2, v4, s[12:13]{SC}\n{L}:")

RW = 4608 + 4160 * 2
OF, OE, OO = 512, 4608, 4608 + 4160
KB = 68096; VB = KB + 17 * 1040; XB = VB + 16 * 1040; MRED = XB + 16 * 1040
NSL = int(os.environ.get("NSL", "11"))
WRING = 69632; STL = 65536; CSL = WRING + 11 * 8192; REDL = CSL + 2048
W3L = WRING + 8 * 8192
LDS_BYTES = REDL + 2048

def tag_issue(a, vt):
    a(f"v_mov_b32 v{vt+2}, 0\ns_mov_b64 exec, 1\nglobal_load_dwordx2 {vr(vt,2)}, v{vt+2}, s[72:73]{SC}\ns_mov_b64 exec, -1")
def tag_check(a, vt):
    Ld = a.label("tagok")
    a(f"""v_readfirstlane_b32 s70, v{vt}
    v_readfirstlane_b32 s71, v{vt+1}
    s_cmp_lg_u64 s[70:71], 0
    s_cbranch_scc1 {Ld}""")
    get_tag(a, vt)
    a(f"{Ld}:")

def interleave(a, mfmas, reads, valu, vmem=()):
    n = len(mfmas)
    slots = [[] for _ in range(n)]
    cap = [2] * n
    vmem = list(vmem)
    for i, (pre, x) in enumerate(vmem):
        p = 1 + (i * (n - 1)) // len(vmem)
        if pre: slots[p - 1].append(pre)
        slots[p].insert(0, x); cap[p] = 0
    free = [i for i in range(n) if cap[i]]
    for e, p in zip(reads, free): slots[p].insert(0, e); cap[p] -= 1
    assert len(reads) <= len(free)
    valu = list(valu)
    tot = sum(cap)
    order = [i for i in range(n) for _ in range(cap[i])]
    if len(valu) < len(order):
        first = [i for i in range(n) if cap[i] == 2]
        pool = sorted(first + [i for i in range(n) if cap[i] >= 1])[:]
        step = len(pool) / max(len(valu), 1)
        order = [pool[int(i * step)] for i in range(len(valu))]
    for i, e in enumerate(valu): slots[order[i] if i < len(order) else n - 1].append(e)
    for m, sl in zip(mfmas, slots):
        a(m)
        for e in sl: a(e)

FLAG2 = f"s_mov_b64 exec, 1\nglobal_load_dwordx2 v[236:237], v240, s[12:13]{SC}\ns_mov_b64 exec, -1"
def flag2_setup(a, zero=False):
    a(f"""s_and_b32 s74, s2, 63
    s_lshl_b32 s74, s74, 7
    s_add_u32 s74, s74, {WS['FL'] + 5*256*128}
    v_mov_b32 v240, s74
    v_mov_b32 v236, s70
    v_mov_b32 v237, s71""")
    if zero: a("v_writelane_b32 v236, 0, 0")
def flag2_check(a, first=False):
    Lok, Lsl, Lld = a.label("f2_ok"), a.label("f2_slow"), a.label("f2_ld")
    a("s_mov_b32 s74, 0x100000")
    if first: a(f"s_branch {Lld}")
    a(f"""{Lsl}:
    v_cmp_ne_u64 vcc, s[70:71], v[236:237]
    s_cbranch_vccz {Lok}
    s_sleep 4
    {Lld}:
    {FLAG2}
    s_waitcnt vmcnt(0)
    s_sub_u32 s74, s74, 1
    s_cbranch_scc0 {Lsl}
    {Lok}:""")
WEL = [int(x) for x in os.environ.get("WEL", "0,2,5,11").split(",")]
NWE = WEL[3]; H2 = int(os.environ.get("H2", "32")); ELP = int(os.environ.get("ELP", "3")); HKP = int(os.environ.get("HKP", "0"))
PUBT = int(os.environ.get("PUBT", "1"))
XST = int(os.environ.get("XST", "0"))
AORD = int(os.environ.get("AORD", "0"))
HK = int(os.environ.get("HK", "4")); HKF = int(os.environ.get("HKF", "3"))
def phase_conv(a, Lg1):
    a(f"""s_load_dwordx4 s[4:7], s[0:1], {KA['x']}
    s_load_dwordx4 s[8:11], s[0:1], {KA['v']}
    s_load_dwordx4 s[36:39], s[0:1], {KA['ssm']}
    s_load_dwordx4 s[40:43], s[0:1], {KA['c']}
    s_lshr_b32 s44, s2, 4
    s_and_b32 s45, s2, 15
    v_lshrrev_b32 v4, 3, v0
    v_and_b32 v5, 7, v0
    v_mul_u32_u24 v2, 1280, v4
    v_lshl_add_u32 v2, v5, 4, v2
    s_lshl_b32 s14, s45, 4
    s_add_u32 s14, s14, s3
    s_mul_i32 s14, s14, {8*1280}
    s_lshl_b32 s15, s44, 7
    s_add_u32 s14, s14, s15
    v_add_u32 v2, s14, v2
    v_add_u32 v3, {(-8*1280) & 0xffffffff}, v2
    s_lshl_b32 s14, s3, 3
    v_add_u32 v6, s14, v4
    s_lshl_b32 s14, s44, 9
    v_lshl_add_u32 v7, v6, 4, s14
    s_mul_i32 s28, s3, 1040
    s_mov_b32 s29, {32*1280}
    s_mov_b32 s30, {64*1280}
    s_mov_b32 s31, {96*1280}
    s_waitcnt lgkmcnt(0)""")
    srd(a, 16, 6, S * D * 2); srd(a, 20, 8, S * D * 2); srd(a, 24, 4, S * D * 2)
    Lh = a.label("nohalo")
    a(f"""s_cmp_lg_u32 s3, 0
    s_cbranch_scc1 {Lh}
    s_mov_b32 m0, {KB}
    s_nop 0
    buffer_load_dwordx4 v3, s[16:19], 0 offen{NT} lds
    {Lh}:""")
    SH = 8
    so = ["0", "s29", "s30", "s31"]
    def tile_dma(base, srdb):
        for i in range(4):
            a(f"s_add_u32 m0, s28, {base + 4*1040*i}\ns_nop 0\nbuffer_load_dwordx4 v2, s[{srdb}:{srdb+3}], {so[i]} offen{NT} lds")
    tile_dma(KB + 1040, 16); tile_dma(VB, 20)
    a(f"global_load_dwordx4 {vr(SH,4)}, v7, s[10:11]")
    code_prefetch(a)
    if AORD == 0: tile_dma(XB, 24)
    else: a("v_mov_b32 v243, v2")
    a(f"""    v_mul_u32_u24 v242, 1040, v5
    v_lshl_add_u32 v242, v6, 2, v242
    v_add_u32 v242, {KB}, v242
    v_xor_b32 v3, 7, v5
    v_mul_u32_u24 v12, 1040, v3
    v_lshl_add_u32 v12, v6, 2, v12
    v_add_u32 v12, {KB}, v12
    v_lshlrev_b32 v13, 13, v6
    v_lshl_add_u32 v14, v5, 4, v13
    v_mov_b32 v13, v14
    s_lshl_b32 s14, s44, 18
    s_lshl_b32 s15, s45, 8
    s_sub_u32 s32, s14, s15
    s_add_u32 s32, s32, {WS['KVT'] + 4096 + 240*16}
    s_add_u32 s34, s14, s15
    s_add_u32 s34, s34, {WS['XTT'] + 4096}""")
    add64(a, 32, 12, "s32"); add64(a, 34, 12, "s34")
    a(f"""s_lshl_b32 s8, s2, 2
    s_add_u32 s8, s8, s3
    s_mul_i32 s9, s3, {RW}
    s_add_u32 s9, s9, 16384
    s_lshl_b32 s10, s8, 12
    v_lshlrev_b32 v2, 4, v0
    v_and_b32 v4, 15, v0
    v_lshrrev_b32 v5, 4, v0
    v_mov_b32 v216, 0
    v_mov_b32 v217, 0
    v_lshl_add_u32 v6, v0, 3, s9
    ds_write_b64 v6, v[216:217]
    v_lshl_add_u32 v6, v4, 2, s9
    ds_write_b32 v6, v216 offset:{OE+4096}
    ds_write_b32 v6, v216 offset:{OO+4096}""")
    add64(a, 36, 36, "s10")
    a(f"s_add_u32 s11, s9, {OF}")
    if AORD < 2:
        for i in range(4): dma(a, 2, 36, "s11", f" offset:{1024*i}{NT}")
    a.stamp(1)
    a(f"s_waitcnt vmcnt({9 - 4*AORD}) lgkmcnt(0)\ns_barrier")
    a.stamp(2)
    SP, KR, VR_, KP, VP, KV, OUT = 16, 24, 46, 62, 84, 100, 116
    def rdk(h, lo, hi):
        for i in range(lo, hi):
            off = 8320 * h + (640 + 128 * i if i < 3 else 1040 + 128 * (i - 3))
            a(f"ds_read_b32 v{KR+11*h+i}, v12 offset:{off}")
    def rdv(h, lo, hi, base=VB, dst=VR_):
        for i in range(lo, hi): a(f"ds_read_b32 v{dst+8*h+i}, v12 offset:{base-KB + 8320*h + 128*i}")
    rdk(0, 0, 11); rdv(0, 0, 4)
    tag_issue(a, 212)
    a(f"""s_lshl_b32 s17, s8, 1
    v_mov_b32 v218, s17
    global_load_ushort v218, v218, s[38:39]
    v_lshlrev_b32 v{SP+0}, 16, v{SH+0}
    v_lshlrev_b32 v{SP+1}, 16, v{SH+2}
    v_and_b32 v{SP+2}, s69, v{SH+0}
    v_and_b32 v{SP+3}, s69, v{SH+2}
    v_lshlrev_b32 v{SP+4}, 16, v{SH+1}
    v_lshlrev_b32 v{SP+5}, 16, v{SH+3}
    v_and_b32 v{SP+6}, s69, v{SH+1}
    v_and_b32 v{SP+7}, s69, v{SH+3}""")
    def ks(h):
        for i in range(11): a(f"v_lshlrev_b32 v{KP+2*i}, 16, v{KR+11*h+i}\nv_and_b32 v{KP+2*i+1}, s69, v{KR+11*h+i}")
        for r in range(8): a(f"v_pk_mul_f32 {vr(KV+2*r,2)}, {vr(KP+2*r,2)}, {vr(SP+6,2)}")
        for j in (2, 1, 0):
            for r in range(8): a(f"v_pk_fma_f32 {vr(KV+2*r,2)}, {vr(KP+2*(r+3-j),2)}, {vr(SP+2*j,2)}, {vr(KV+2*r,2)}")
    def kvs(h):
        for i in range(8): a(f"v_lshlrev_b32 v{VP+2*i}, 16, v{VR_+8*h+i}\nv_and_b32 v{VP+2*i+1}, s69, v{VR_+8*h+i}")
        for r in range(8): a(f"v_pk_mul_f32 {vr(KV+2*r,2)}, {vr(KV+2*r,2)}, {vr(VP+2*r,2)}")
        for ch in range(2):
            o = OUT + 8 * h + 4 * ch
            for j in range(4): a(f"v_cvt_pk_bf16_f32 v{o+j}, v{KV+2*(7-2*j)+ch}, v{KV+2*(6-2*j)+ch}")
            a(f"global_store_dwordx4 v13, {vr(o,4)}, s[32:33] offset:{-4096*(1-ch) + 128*(1-h)}{SC}")
    a("s_waitcnt lgkmcnt(4)"); rdv(0, 4, 8); rdk(1, 0, 7)
    ks(0)
    a("s_waitcnt lgkmcnt(7)"); rdk(1, 7, 11); rdv(1, 0, 4)
    kvs(0)
    a("s_waitcnt lgkmcnt(4)"); rdv(1, 4, 8)
    ks(1)
    a("s_waitcnt lgkmcnt(0)")
    kvs(1)
    a.stamp(3)
    if AORD == 2:
        for i in range(4): dma(a, 2, 36, "s11", f" offset:{1024*i}{NT}")
    if AORD:
        for i in range(4):
            a(f"s_add_u32 m0, s28, {XB + 4*1040*i}\ns_nop 0\nbuffer_load_dwordx4 v243, s[24:27], {so[i]} offen{NT} lds")
    RA, RB = 220, 224
    a(f"""v_and_b32 v6, 1, v4
    v_xor_b32 v6, 1, v6
    v_mul_u32_u24 v6, {4160-2}, v6
    v_lshl_add_u32 v6, v5, 4, v6
    v_lshlrev_b32 v7, 1, v4
    v_sub_u32 v6, v6, v7
    v_add_u32 v6, s9, v6""")
    for q2 in range(4): a(f"v_add_u32 v{RA+q2}, {OE + 2*2031 - 512*(2*q2+1) - 64*7}, v6")
    a(f"""v_lshlrev_b32 v6, 5, v4
    v_lshl_add_u32 v15, v5, 3, v6
    v_lshl_add_u32 v6, v5, 4, v6
    v_add_u32 v6, s9, v6
    v_add_u32 v{RB}, {OF - 32 - 64*7}, v6
    v_add_u32 v3, s9, v2""")
    a(f"s_waitcnt vmcnt({4 + 4*AORD})")
    tag_check(a, 212)
    if "a" in REP: publish_wave(a, 0, 232); a("s_barrier")
    elif "0" in REP: publish_rep(a, 0, 232, vm=4*AORD)
    else: publish(a, 0, 212, vm=4*AORD)
    a.stamp(4)
    def xtrans():
        for h in range(2):
            for i in range(8): a(f"ds_read_b32 v{24+8*h+i}, v242 offset:{XB-KB + 8320*h + 128*i}")
            if h == 0: a("s_waitcnt lgkmcnt(6)")
        a("s_mov_b32 s14, 0x05040100\ns_mov_b32 s15, 0x07060302")
        for h in range(2):
            a(f"s_waitcnt lgkmcnt({8 if h == 0 else 0})")
            for ch in range(2):
                o = 40 + 8 * h + 4 * ch
                for j in range(4): a(f"v_perm_b32 v{o+j}, v{24+8*h+2*j+1}, v{24+8*h+2*j}, s{14+ch}")
                a(f"global_store_dwordx4 v14, {vr(o,4)}, s[34:35] offset:{-4096*(1-ch) + 128*h}{SC}")
    if AORD == 0: xtrans()
    a(f"s_add_u32 s10, s10, {WS['KVT']}\ns_add_u32 s11, s9, {OE}")
    add64(a, 16, 12, "s10")
    KO = 176
    ACC, KD, HG, SBv, XF, XR, KVR = 16, 48, 80, 112, 144, 176, 192
    FA, FB = 0, 64
    def bread(t, q): return f"ds_read_b128 {ar(FB+32*(t&1)+4*q,4)}, v{RB} offset:{512*q + 64*(7-t)}"
    def areads(t, q):
        o = 16 * (7 - t) + (0 if q & 1 else 128)
        return [f"ds_read2_b32 {ar(FA+32*(t&1)+4*q+2*h,2)}, v{RA+q//2} offset0:{o+2*h} offset1:{o+2*h+1}" for h in range(2)]
    def reads(t):
        r = []
        for q in range(8): r += [bread(t, q)] + areads(t, q)
        return r
    a(f"""v_lshlrev_b32 v218, 16, v218
    v_sub_u32 v11, s9, v15
    v_add_u32 v11, {OE + 4088 - 512*7}, v11
    v_min_u32 v208, 4, v0
    v_mul_u32_u24 v208, 2560, v208
    v_lshrrev_b32 v209, 3, v0
    v_xor_b32 v209, v209, v0
    v_lshlrev_b32 v209, 4, v209
    v_and_b32 v12, 7, v4
    v_xor_b32 v12, v12, v5
    v_lshlrev_b32 v12, 4, v12
    v_lshl_add_u32 v12, v4, 7, v12
    v_xor_b32 v243, 64, v12
    v_lshlrev_b32 v10, 5, v4
    v_lshrrev_b32 v13, 1, v5
    v_lshl_add_u32 v10, v13, 4, v10
    v_and_b32 v13, 1, v5
    v_lshl_add_u32 v10, v13, 9, v10
    s_and_b32 s14, s2, 0xf0
    v_add_u32 v210, s14, v0
    v_add_u32 v211, {210-16}, v0
    v_cmp_gt_u32 s[18:19], 16, v0
    v_mov_b32 v212, s70
    v_mov_b32 v213, s71
    v_cndmask_b32 v210, v211, v210, s[18:19]
    v_mul_u32_u24 v211, 10, v0
    v_cmp_gt_u32 s[18:19], 48, v0
    s_sub_u32 s14, s44, {480-160}
    v_add_u32 v211, s14, v211
    v_cndmask_b32 v210, v211, v210, s[18:19]
    v_lshlrev_b32 v210, 7, v210
    v_add_u32 v210, {WS['FL'] + 256*128}, v210
    s_lshl_b32 s14, s3, 4
    s_lshl_b64 s[28:29], 0xffff, s14
    s_and_b32 s29, s29, 0x1fffff
    """)
    flag2_setup(a)
    w_setup(a)
    a.stamp(5)
    a("s_and_b32 s14, s2, 0xf0")
    if "a" in REP: a("s_bfe_u32 s15, s2, 0x20002"); poll(a, 0, "s14", 16, 232, rep=0, sub="s15")
    else: poll(a, 0, "s14", 16, 232, rep=0 if "0" in REP else None)
    a.stamp(6)
    for i in range(4): a(f"global_load_dwordx4 {vr(KO+6*i,4)}, v2, s[16:17] offset:{1024*i}{SC}")
    ny = 0
    if AORD == 0: publish(a, 1, 232, vm=4)
    else:
        a("s_barrier"); xtrans(); ny = 4
    w_early(a, 0, WEL[0]); ny += 2 * WEL[0]
    for q in range(8): a(bread(0, q))
    for i in range(4):
        a(f"s_waitcnt vmcnt({max(2-i,0)+ny})")
        a(f"ds_write_b128 v3, {vr(KO+6*i,4)} offset:{OE+1024*i}")
        if i < 3: a(f"v_readlane_b32 s14, v{KO+6*i+6}, 0")
        a(f"v_mov_b32_dpp v{KO+6*i+4}, v{KO+6*i} wave_shl:1 row_mask:0xf bank_mask:0xf bound_ctrl:0")
        if i < 3: a(f"s_nop 0\nv_writelane_b32 v{KO+6*i+4}, s14, 63")
        for j in range(4): a(f"v_alignbit_b32 v{200+4*(i&1)+j}, v{KO+6*i+j+1}, v{KO+6*i+j}, 16")
        a(f"ds_write_b128 v3, {vr(200+4*(i&1),4)} offset:{OO+1024*i}")
        if i == 1: a("s_waitcnt lgkmcnt(2)")
    a("s_waitcnt lgkmcnt(0)")
    for q in range(8):
        for r in areads(0, q): a(r)
    a.stamp(7)
    P, Q, C1 = 226, 228, 230
    unk = []
    for n in range(8):
        unk += [f"v_and_b32 v{KD+4*n}, s69, v{KVR+2*n+1}", f"v_lshlrev_b32 v{KD+4*n+1}, 16, v{KVR+2*n+1}",
                f"v_and_b32 v{KD+4*n+2}, s69, v{KVR+2*n}", f"v_lshlrev_b32 v{KD+4*n+3}, 16, v{KVR+2*n}"]
    mulk = [f"v_mul_f32 v{KD+i}, v218, v{KD+i}" for i in range(32)]
    unx = []
    for n in range(4): unx += [f"v_permlane16_swap_b32 v{XR+4*n}, v{XR+4*n+2}", f"v_permlane16_swap_b32 v{XR+4*n+1}, v{XR+4*n+3}"]
    for n in range(16): unx += [f"v_lshlrev_b32 v{XF+2*n}, 16, v{XR+n}", f"v_and_b32 v{XF+2*n+1}, s69, v{XR+n}"]
    flagld = f"s_mov_b64 exec, s[28:29]\nglobal_load_dwordx2 v[212:213], v210, s[12:13]{SC}\ns_mov_b64 exec, -1"
    eld = [(f"s_lshl_b32 s17, s8, 2\ns_add_u32 s17, s17, {WS['MOD']}\nv_add_u32 v212, s17, v208", f"s_mov_b64 exec, 0x1f\nglobal_load_dword v219, v212, s[12:13]{SC}\ns_mov_b64 exec, -1")]
    pre = f"s_lshl_b32 s16, s3, 12\ns_add_u32 s17, s16, {WS['ST']}\ns_add_u32 s14, s12, s17\ns_addc_u32 s15, s13, 0\ns_mov_b32 m0, s16"
    eld += [(pre if i == 0 else "", f"global_load_lds_dwordx4 v209, s[14:15] offset:{1024*i}{SC}") for i in range(4)]
    pre = f"s_lshl_b32 s17, s8, 12\ns_add_u32 s17, s17, {WS['XTT']}\ns_add_u32 s14, s12, s17\ns_addc_u32 s15, s13, 0"
    eld += [(pre if n == 0 else "", f"global_load_dwordx4 {vr(XR+4*n,4)}, v10, s[14:15] offset:{1024*n}{SC}") for n in range(4)]
    def wpairs(k):
        l = wd_(k); return [(l[0][1], l[1][1]), (l[2][1], l[3][1])]
    strd = []
    for n in range(8): strd += [f"ds_read_b128 {vr(HG+4*n,4)}, v12 offset:{2048*n}", f"ds_read_b128 {vr(SBv+4*n,4)}, v243 offset:{2048*n}"]
    scal = ["v_add_f32 v214, 1.0, v219", "v_readlane_b32 s20, v219, 0", "v_cvt_pk_bf16_f32 v214, v214, v214", "v_readlane_b32 s22, v219, 2",
            "v_lshlrev_b32 v214, 16, v214\ns_nop 0", "v_readlane_b32 s21, v214, 1", "v_readlane_b32 s23, v214, 4", f"v_mov_b32 v{Q}, s22\ns_nop 0",
            f"v_mul_f32 v{P}, s21, v{Q}", f"v_mul_f32 v{Q}, s20, v{Q}", f"v_mov_b32 v{C1}, s23"]
    hg1 = [f"v_fma_f32 v{HG+i}, v{XF+i}, v{HG+i}, v{SBv+i}" for i in range(32)]
    hg2 = [f"v_fma_f32 v{HG+i}, v{HG+i}, v{P}, v{Q}" for i in range(32)]
    oadr = [f"s_lshl_b32 s17, s8, 12\ns_add_u32 s17, s17, {WS['X1T']}\ns_add_u32 s14, s12, s17\ns_addc_u32 s15, s13, 0\ns_add_u32 s16, s14, {WS['X1S']-WS['X1T']}\ns_addc_u32 s17, s15, 0"]
    post = []
    assert HK == 4
    WSCH = [int(x) for x in os.environ.get("WSCH", "2,3,3,3,0,0,0,0").split(",")]
    assert sum(WSCH) == NWE and WEL[0] == 0
    KRT = int(os.environ.get("KRT", "0"))
    cvm = VM(); wk = 0
    for t in range(8):
        a("s_waitcnt lgkmcnt(0)")
        if "cstamp" in EXP and 2 <= t <= 7: a.stamp(t - 1)
        rd = reads(t + 1) if t < 7 else []
        va = []; vm_ = []; tags = []
        if t == KRT: rd = rd + [f"ds_read_b64 {vr(KVR+2*n,2)}, v11 offset:{512*(7-n)}" for n in range(8)]
        if t == KRT + 1: va = unk[:24]
        if t == KRT + 2: va = unk[24:] + mulk[:16]
        if t == (KRT + 3 if KRT + 3 != 4 else 5): va = mulk[16:]
        if t == HKF: vm_ = [("", flagld)]; tags = ["F"]
        if t == HK:
            Lok, Lsl = a.label("hk_ok"), a.label("hk_slow")
            a(cvm.wait(["F"]))
            a(f"""s_mov_b32 s74, 0x100000
            {Lsl}:
            v_cmp_ne_u64 vcc, s[70:71], v[212:213]
            s_cbranch_vccz {Lok}
            {flagld}
            s_waitcnt vmcnt(0)
            s_sub_u32 s74, s74, 1
            s_cbranch_scc0 {Lsl}
            {Lok}:
            s_barrier""")
            vm_ = [eld[0]] + eld[5:] + eld[1:5]; tags = ["X"] * 5 + ["S"] * 4
            if not WSCH[t]: vm_ += [("", "")] * ELP
        if t == 6:
            a(cvm.wait(["X"]))
            va = scal + unx[:36]
        if t == 7:
            a(cvm.wait(["S"]) + "\ns_barrier")
            rd = strd
            va = unx[36:] + oadr + [""] * 10
            for n in range(H2 // 4): va += [f"s_waitcnt lgkmcnt({max(14 - 2*n - 4, 0)})\n" + hg1[4*n]] + hg1[4*n+1:4*n+4]
            post = [f"v_pk_fma_f32 {vr(HG+2*i,2)}, {vr(XF+2*i,2)}, {vr(HG+2*i,2)}, {vr(SBv+2*i,2)}" for i in range(H2 // 2, 16)]
            post += [f"v_pk_fma_f32 {vr(HG+2*i,2)}, {vr(HG+2*i,2)}, {vr(P,2)}, {vr(Q,2)} op_sel_hi:[1,0,0]" for i in range(16)]
            vm_ = [("", FLAG2)]
        for _ in range(WSCH[t]): vm_ += wpairs(wk); tags += ["W", "W"]; wk += 1
        for x in tags: cvm.add(x)
        mf = []
        for q in range(8):
            for n in range(q, 8):
                c = "0" if (t == 0 and q == 0) else vr(ACC + 4 * n, 4)
                mf.append(f"v_mfma_f32_16x16x32_bf16 {vr(ACC+4*n,4)}, {ar(FA+32*(t&1)+4*q,4)}, {ar(FB+32*(t&1)+4*(n-q),4)}, {c}")
        interleave(a, mf, rd, va, vm_)
    a.stamp(8)
    a("s_waitcnt lgkmcnt(0)")
    for x in post: a(x)
    a("v_add_u32 v11, s9, v15")
    a("s_nop 3")
    for n in range(0, 8, 2):
        for m in (n, n + 1):
            for h in range(2): a(f"v_pk_add_f32 {vr(ACC+4*m+2*h,2)}, {vr(ACC+4*m+2*h,2)}, {vr(KD+4*m+2*h,2)}")
        for m in (n, n + 1):
            for h in range(2): a(f"v_pk_fma_f32 {vr(ACC+4*m+2*h,2)}, {vr(HG+4*m+2*h,2)}, {vr(ACC+4*m+2*h,2)}, {vr(XF+4*m+2*h,2)}")
        for m in (n, n + 1):
            for h in range(2): a(f"v_pk_mul_f32 {vr(KD+4*m+2*h,2)}, {vr(ACC+4*m+2*h,2)}, {vr(C1,2)} op_sel_hi:[1,0]")
        o = SBv + 2 * n
        for m in (n, n + 1):
            for h in range(2): a(f"v_cvt_pk_bf16_f32 v{o+2*(m-n)+h}, v{KD+4*m+2*h}, v{KD+4*m+2*h+1}")
        if XST:
            for m in (n, n + 1): a(f"ds_write_b64 v11, {vr(o+2*(m-n),2)} offset:{512*m}")
            if n: a(f"s_waitcnt lgkmcnt(2)\nglobal_store_dwordx4 v2, {vr(XF+2*(n-2),4)}, s[16:17] offset:{512*(n-2)}{SC}")
            a(f"ds_read_b128 {vr(XF+2*n,4)}, v3 offset:{512*n}")
        else:
            a(f"""s_nop 1
            v_permlane16_swap_b32 v{o}, v{o+2}
            v_permlane16_swap_b32 v{o+1}, v{o+3}
            global_store_dwordx4 v10, {vr(o,4)}, s[16:17] offset:{512*n}{SC}""")
    for i in range(16): a(f"v_cvt_pk_bf16_f32 v{SBv+16+i}, v{ACC+2*i}, v{ACC+2*i+1}")
    if XST:
        a(f"s_waitcnt lgkmcnt(0)\nglobal_store_dwordx4 v2, {vr(XF+12,4)}, s[16:17] offset:{512*6}{SC}")
        for m in range(8): a(f"ds_write_b64 v11, {vr(SBv+16+2*m,2)} offset:{4096+512*m}")
        for n in range(4): a(f"ds_read_b128 {vr(XF+16+4*n,4)}, v3 offset:{4096+1024*n}")
        for n in range(4): a(f"s_waitcnt lgkmcnt({3-n})\nglobal_store_dwordx4 v2, {vr(XF+16+4*n,4)}, s[14:15] offset:{1024*n}{SC}")
    else:
        for n in range(0, 8, 2):
            o = SBv + 16 + 2 * n
            a(f"""v_permlane16_swap_b32 v{o}, v{o+2}
            v_permlane16_swap_b32 v{o+1}, v{o+3}
            global_store_dwordx4 v10, {vr(o,4)}, s[14:15] offset:{512*n}{SC}""")
    a.stamp(9)
    a(f"s_branch {Lg1}")

def code_prefetch(a):
    a(f"""s_getpc_b64 s[14:15]
    s_sub_u32 s14, s14, . - {KNAME}
    s_subb_u32 s15, s15, 0
    s_lshr_b32 s17, s2, 3
    s_lshl_b32 s17, s17, 2
    s_add_u32 s17, s17, s3
    s_min_u32 s17, s17, (code_end - {KNAME}) / 1024 - 1
    s_lshl_b32 s17, s17, 10
    v_lshl_add_u32 v250, v0, 4, s17
    global_load_dwordx4 v[252:255], v250, s[14:15]""")

def phase_aux(a, Lg1):
    Lst, L2, Lnd, Lnw, Lnd2, Lnw3 = (a.label(x) for x in ("aux_st", "aux2", "aux_nod", "aux_now", "aux_nod2", "aux_now3"))
    RED, MRD = REDL, CSL
    LwE, Lwd, Lmod, Lgbd, Lnp1, Ltg = (a.label(x) for x in ("aux_we", "aux_wd", "aux_mod", "aux_gbd", "aux_np1", "aux_tg"))
    a(f"""s_load_dwordx2 s[4:5], s[0:1], {KA['x']}
    s_load_dwordx4 s[36:39], s[0:1], {KA['wg']}
    s_load_dwordx2 s[6:7], s[0:1], {KA['wd']}
    s_load_dwordx4 s[40:43], s[0:1], {KA['c']}
    s_sub_u32 s8, s2, 160
    s_mov_b32 s44, s8
    v_lshlrev_b32 v9, 4, v0
    s_waitcnt lgkmcnt(0)
    s_cmp_ge_u32 s8, 82
    s_cbranch_scc1 {Lwd}
    s_cmp_ge_u32 s8, 50
    s_cbranch_scc1 {Lst}
    {Lmod}:""")
    mod_slab(a, 44, 40, 42, MRD)
    a(f"""s_cmp_ge_u32 s8, 82
    s_cbranch_scc1 {Lgbd}
    s_branch {L2}
    {Lst}:
    s_sub_u32 s45, s8, 50
    s_lshl_b32 s45, s45, 6""")
    stats_issue(a, 100, 4, 45)
    tag_issue(a, 212)
    stats_compute(a, 100, 45)
    a(f"{L2}:")
    a.stamp(3)
    a("s_waitcnt vmcnt(1)")
    tag_check(a, 212)
    a(f"""s_cmp_ge_u32 s8, 56
    s_cbranch_scc1 {Lwd}""")
    TA, RAW, MV, PK, RES = 10, 128, 16, 96, 208
    a(f"""s_and_b32 s10, s8, 3
    s_mul_i32 s10, s10, 7
    s_lshr_b32 s11, s8, 3
    s_add_u32 s10, s10, s11
    s_min_u32 s10, s10, 26
    s_bfe_u32 s9, s8, 0x10002
    s_cmp_eq_u32 s9, 1
    s_cselect_b32 s36, s38, s36
    s_cselect_b32 s37, s39, s37
    v_lshrrev_b32 v2, 3, v0
    v_bfe_u32 v3, v0, 4, 2
    v_lshlrev_b32 v3, 1, v3
    v_and_b32 v4, 7, v0
    v_xor_b32 v3, v3, v4
    v_mul_u32_u24 v2, 3456, v2
    v_lshl_add_u32 v2, v3, 4, v2
    s_lshl_b32 s11, s10, 7
    s_mul_i32 s16, s3, {32*3456}
    s_add_u32 s11, s11, s16
    v_add_u32 v2, s11, v2
    s_mul_i32 s16, s3, {5*4096}
    s_cmp_eq_u32 s3, 3
    s_cselect_b32 s16, {W3L}, s16""")
    srd(a, 20, 36, 640 * 3456)
    for io in range(5):
        for u in range(4):
            if io * 4 + u == 6:
                publish(a, 1, 16, vm=6)
                a.stamp(4)
            a(f"s_add_u32 m0, s16, {4096*io + 1024*u}\ns_mov_b32 s17, {(128*io + 8*u)*3456}\nbuffer_load_dwordx4 v2, s[20:23], s17 offen{WPOL} lds")
    a(f"""v_lshrrev_b32 v2, 2, v0
    v_bfe_u32 v3, v0, 3, 2
    v_and_b32 v4, 3, v0
    v_lshlrev_b32 v2, 7, v2
    v_lshl_add_u32 v2, v4, 3, v2
    v_add_u32 v2, s16, v2""")
    for T_ in range(4): a(f"v_xor_b32 v4, {T_}, v3\nv_lshl_add_u32 v{TA+T_}, v4, 5, v2")
    a(f"""v_lshrrev_b32 v14, 4, v0
    v_lshlrev_b32 v14, 4, v14
    s_lshl_b32 s16, s3, 7
    s_add_u32 s16, s16, 61440
    v_add_u32 v14, s16, v14
    s_mul_i32 s16, s3, 1280
    s_add_u32 s17, s16, {WS['MOD'] + 3*2560}
    v_add_u32 v15, s17, v9
    s_add_u32 s18, s16, 61440""")
    flag2_setup(a, zero=True)
    w_setup(a)
    poll(a, 1, 190, 20, 16)
    a.stamp(6)
    a(f"""s_mov_b32 m0, s18
    s_nop 0
    global_load_lds_dwordx4 v15, s[12:13]{SC}
    s_mov_b64 exec, 0xffff
    global_load_lds_dwordx4 v15, s[12:13] offset:1024{SC}
    s_mov_b64 exec, -1""")
    w_early(a, 0, 4)
    for io in range(5):
        for T_ in range(4):
            for hf in range(2): a(f"ds_read_b64_tr_b16 {vr(RAW+16*io+4*T_+2*hf,2)}, v{TA+T_} offset:{4096*io+2048*hf}")
        a("s_waitcnt lgkmcnt(4)")
    a("s_waitcnt vmcnt(8) lgkmcnt(0)\ns_barrier")
    for io in range(5):
        for hf in range(2):
            a(f"ds_read_b128 {vr(MV+16*io+4*hf,4)}, v14 offset:{512*io+64*hf}")
            a(f"ds_read_b128 {vr(MV+16*io+8+4*hf,4)}, v14 offset:{2560+512*io+64*hf}")
        if io == 2: a("s_waitcnt lgkmcnt(4)")
    w_early(a, 4, NWE)
    a("s_waitcnt lgkmcnt(0)")
    for io in range(5):
        b = MV + 16 * io; p = PK + 8 * (io & 1)
        for i in range(4): a(f"v_cvt_pk_bf16_f32 v{p+i}, v{b+2*i}, v{b+2*i+1}")
        for i in range(8): a(f"v_add_f32 v{b+8+i}, 1.0, v{b+8+i}")
        for i in range(4): a(f"v_cvt_pk_bf16_f32 v{p+4+i}, v{b+8+2*i}, v{b+8+2*i+1}")
        for T_ in range(4): a(f"v_mfma_f32_16x16x32_bf16 {vr(112+4*T_,4)}, {vr(RAW+16*io+4*T_,4)}, {vr(p,4)}, {vr(112+4*T_,4) if io else '0'}")
        for T_ in range(4): a(f"v_mfma_f32_16x16x32_bf16 {vr(RES+4*T_,4)}, {vr(RAW+16*io+4*T_,4)}, {vr(p+4,4)}, {vr(RES+4*T_,4) if io else '0'}")
    a(f"""s_lshl_b32 s16, s3, 9
    s_add_u32 s16, s16, {RED}
    v_add_u32 v2, s16, v0
    s_mov_b32 exec_lo, 0x10001
    s_mov_b32 exec_hi, 0x10001
    s_nop 2""")
    for T_ in range(4): a(f"ds_write_b128 v2, {vr(112+4*T_,4)} offset:{256+64*T_}")
    for T_ in range(4): a(f"ds_write_b128 v2, {vr(RES+4*T_,4)} offset:{64*T_}")
    a(f"""s_mov_b64 exec, -1
    s_waitcnt lgkmcnt(0)
    s_barrier
    s_cmp_ge_u32 s3, 2
    s_cbranch_scc1 {LwE}
    s_lshl_b32 s16, s3, 8
    s_add_u32 s16, s16, {RED}
    v_lshlrev_b32 v3, 2, v0
    v_add_u32 v2, s16, v3
    ds_read2st64_b32 v[4:5], v2 offset0:0 offset1:2
    ds_read2st64_b32 v[16:17], v2 offset0:4 offset1:6
    s_lshl_b32 s16, s9, 1
    s_add_u32 s16, s16, s3
    s_mul_i32 s16, s16, {1728*4}
    s_lshl_b32 s17, s10, 8
    s_add_u32 s16, s16, s17
    s_add_u32 s16, s16, {WS['CSB']}""")
    add64(a, 14, 12, "s16")
    a(f"""s_waitcnt lgkmcnt(0)
    v_add_f32 v4, v4, v5
    v_add_f32 v16, v16, v17
    v_add_f32 v4, v4, v16
    global_store_dword v3, v4, s[14:15]{SC}
    s_waitcnt vmcnt(0)
    {LwE}:""")
    a.stamp(9)
    a(f"s_branch {Lg1}")
    a(f"""{Lwd}:
    s_lshl_b32 s46, s8, 2
    s_add_u32 s46, s46, s3
    s_sub_u32 s17, s46, {4*82}
    s_sub_u32 s46, s46, {4*56-165}
    s_cmp_eq_u32 s17, 55
    s_cselect_b32 s17, 269, s17
    s_cmp_ge_u32 s8, 82
    s_cselect_b32 s46, s17, s46
    v_lshrrev_b32 v2, 4, v0
    v_and_b32 v3, 15, v0
    v_lshlrev_b32 v4, 1, v2
    v_xor_b32 v4, v4, v3
    v_mul_u32_u24 v2, 1280, v2
    v_lshl_add_u32 v5, v4, 4, v2
    v_xor_b32 v4, 8, v4
    v_lshl_add_u32 v6, v4, 4, v2
    v_add_u32 v6, {4*1280}, v6
    s_mul_i32 s16, s3, {3*8192}
    s_mul_i32 s17, s46, 52429
    s_lshr_b32 s17, s17, 18
    s_mul_i32 s11, s17, 5
    s_sub_u32 s11, s46, s11
    s_mul_i32 s17, s17, {32*1280}
    s_lshl_b32 s11, s11, 8
    s_add_u32 s17, s17, s11
    v_add_u32 v5, s17, v5
    v_add_u32 v6, s17, v6""")
    srd(a, 20, 6, 1728 * 1280)
    add64(a, 14, 12, WS['WD']); srd(a, 24, 14, 54 * 40 * 1024)
    for un in range(3):
        for u in range(8):
            if un * 8 + u == 6:
                a(f"s_cmp_ge_u32 s8, 82\ns_cbranch_scc1 {Lnp1}")
                publish(a, 1, 16, vm=6)
                a.stamp(4)
                a(f"{Lnp1}:")
            a(f"s_add_u32 m0, s16, {8192*un + 1024*u}\ns_mov_b32 s17, {(11*32*un + 8*(u>>1))*1280}\nbuffer_load_dwordx4 v{5+(u&1)}, s[20:23], s17 offen{NT} lds")
        if un == 0: a("s_cmp_ge_u32 s8, 82\ns_cselect_b32 s22, s22, 0")
    tag_issue(a, 212)
    xtile_tr_addrs(a, 48, 16)
    a("s_lshl_b32 s17, s46, 13\nv_add_u32 v7, s17, v9")
    for un in range(3):
        a("s_waitcnt vmcnt(17)")
        for q in range(3):
            if q < 2:
                for dt in range(4):
                    for hf in range(2): a(f"ds_read_b64_tr_b16 {vr(100+32*un+16*q+4*dt+2*hf,2)}, v{48+4*q+dt} offset:{8192*un+4096*hf}")
            if q:
                a(f"s_waitcnt lgkmcnt({8 if q < 2 else 0})\ns_mov_b32 s17, {55*8192*un + 4096*(q-1)}")
                for dt in range(4): a(f"buffer_store_dwordx4 {vr(100+32*un+16*(q-1)+4*dt,4)}, v7, s[24:27], s17 offen offset:{1024*dt}{SC}")
        if un == 0: a(f"s_cmp_lt_u32 s8, 82\ns_cbranch_scc1 {Ltg}")
    a(f"{Ltg}:\ns_waitcnt vmcnt(8)")
    tag_check(a, 212)
    publish(a, 0, 16)
    a.stamp(6)
    a(f"""s_cmp_lt_u32 s8, 82
    s_cbranch_scc1 {Lnw3}
    s_sub_u32 s44, s8, 32
    s_cmp_lt_u32 s8, 92
    s_cbranch_scc1 {Lmod}
    s_cmp_lg_u32 s8, 95
    s_cbranch_scc1 {Lnw3}
    s_cmp_lg_u32 s3, 0
    s_cbranch_scc1 {Lnw3}""")
    poll(a, 0, 216, 40, 20)
    a(f"v_mov_b32 v16, s70\nv_mov_b32 v17, s71\nv_mov_b32 v18, s70\nv_mov_b32 v19, s71")
    add64(a, 14, 12, WS['FL'] + 5 * 256 * 128 + 4096)
    for i in range(8): a(f"global_store_dwordx4 v9, v[16:19], s[14:15] offset:{1024*i-4096}{SC}")
    a(f"s_branch {Lnw3}\n{Lgbd}:")
    publish(a, 1, 16)
    a(f"{Lnw3}:")
    flag2_setup(a, zero=True)
    a.stamp(9)
    a("s_branch g1_idle")

def w_setup(a):
    a(f"""s_load_dwordx4 s[84:87], s[0:1], {KA['wg']}
    s_lshr_b32 s6, s2, 3
    s_and_b32 s5, s2, 3
    s_mul_i32 s5, s5, 27
    s_add_u32 s5, s5, s6
    s_lshr_b32 s6, s5, 2
    s_and_b32 s5, s5, 3
    s_and_b32 s89, s2, 4
    s_add_u32 s5, s5, s89
    v_lshrrev_b32 v244, 3, v0
    v_bfe_u32 v245, v0, 4, 2
    v_lshlrev_b32 v245, 1, v245
    v_and_b32 v246, 7, v0
    v_xor_b32 v245, v245, v246
    v_mul_u32_u24 v244, 3456, v244
    v_lshl_add_u32 v7, v245, 4, v244
    s_mul_i32 s88, s3, {8*3456}
    s_lshl_b32 s89, s6, 7
    s_add_u32 s88, s88, s89
    v_add_u32 v7, s88, v7
    s_lshl_b32 s88, s3, 10
    s_add_u32 s88, s88, {WRING}
    s_waitcnt lgkmcnt(0)""")
    srd(a, 80, 84, 640 * 3456); srd(a, 84, 86, 640 * 3456)
def wd_(k):
    out = []
    for m in range(2):
        pre = f"s_add_u32 m0, s88, {(k%NSL)*8192 + m*4096}" + (f"\ns_mov_b32 s89, {k*32*3456}" if not out else "")
        out += [(None, pre), (("W", k), f"buffer_load_dwordx4 v7, s[{80+4*m}:{83+4*m}], s89 offen lds")]
    return out
def w_early(a, lo, hi):
    for k in range(lo, hi):
        for t, x in wd_(k): a(x + ("" if t else "\ns_nop 0"))

def g2_setup(a):
    a(f"""s_lshr_b32 s4, s2, 3
    s_bfe_u32 s44, s2, 0x20001
    s_lshl_b32 s44, s44, 3
    s_lshr_b32 s45, s4, 2
    s_add_u32 s44, s44, s45
    s_and_b32 s45, s2, 1
    s_lshl_b32 s45, s45, 2
    s_and_b32 s9, s4, 3
    s_add_u32 s45, s45, s9
    s_mul_i32 s9, s45, 5120
    s_add_u32 s10, s9, {WS['WD']}
    v_lshlrev_b32 v9, 4, v0
    v_add_u32 v8, 4096, v9""")
    add64(a, 14, 12, "s10"); srd(a, 40, 14, 0)
    a(f"s_sub_u32 s42, {54*40960}, s9\ns_mul_i32 s46, s3, 40960")

SPREAD = int(os.environ.get("SPREAD", "1")); RDEND = int(os.environ.get("RDEND", "28"))
G2POS = int(os.environ.get("G2POS", "0"))
LEVEL = int(os.environ.get("LEVEL", "7"))
XLATE = int(os.environ.get("XLATE", "0"))
OUTT = int(os.environ.get("OUTT", "1"))
CPF = int(os.environ.get("CPF", "99"))
WSTART = int(os.environ.get("WSTART", "4"))
NWDP = int(os.environ.get("NWDP", "12"))
LAZY = int(os.environ.get("LAZY", "0"))
X1LATE = int(os.environ.get("X1LATE", "4"))
WPOL = os.environ.get("WPOL", "")
NWA = int(os.environ.get("NWA", "11"))
NWD0 = int(os.environ.get("NWD0", "22"))
NWD1 = int(os.environ.get("NWD1", "62"))
NW0 = int(os.environ.get("NW0", "11"))
WD_FIRST = int(os.environ.get("WD_FIRST", "4")); WD_LAST = int(os.environ.get("WD_LAST", "20"))
NWD2 = int(os.environ.get("NWD2", "6"))
HK3F = int(os.environ.get("HK3F", "14")); HK3 = int(os.environ.get("HK3", "16"))
def wd_reg(i):
    return ar(4 * i, 4) if i < 64 else vr(232 + 4 * (i - 64), 4)
def wd_load(i):
    st, d = divmod(i, 5)
    return f"s_add_u32 s47, s46, {st*4*40960}\nbuffer_load_dwordx4 {wd_reg(i)}, v{9 if d < 4 else 8}, s[40:43], s47 offen offset:{1024*(d&3)}{SC}"

class VM:
    def __init__(self): self.q = []
    def add(self, tag): self.q.append(tag)
    def wait(self, tags):
        idx = [i for i, t in enumerate(self.q) if t in tags]
        if not idx: return None
        n = len(self.q) - 1 - max(idx)
        self.q = self.q[max(idx) + 1:]
        assert n <= 63
        return f"s_waitcnt vmcnt({n})"

def phase_idle(a, Lg2):
    Lpub = a.label("idle_pub")
    g2_setup(a)
    IW = int(os.environ.get("IW", "62"))
    flag2_check(a)
    def wl(lo, hi):
        for i in range(lo, hi):
            a(wd_load(i))
            if i - lo == 50: a("s_waitcnt vmcnt(30)")
    wl(0, min(IW, NWD1))
    Lrest = a.label("idle_rest")
    PF0, PF1, PF2 = (int(x) for x in os.environ.get("PF", "0,0,0").split(","))
    def pf(lo, hi):
        a(f"""s_lshr_b32 s9, s2, 3
        s_sub_u32 s9, s9, 27
        s_lshl_b32 s9, s9, 2
        s_add_u32 s9, s9, s3
        s_lshl_b32 s9, s9, 12
        s_and_b32 s10, s2, 4
        s_lshl_b32 s10, s10, 9
        s_add_u32 s9, s9, s10
        s_add_u32 s9, s9, {WS['X1S'] + lo*20*4096}
        s_lshl_b32 m0, s3, 11""")
        add64(a, 14, 12, "s9")
        for i in range(lo, hi):
            a(f"global_load_lds_dwordx4 v9, s[14:15]{SC}\nglobal_load_lds_dwordx4 v9, s[14:15] offset:1024{SC}")
            add64(a, 14, 14, 20 * 4096)
    if PF1 > PF0:
        a("s_mul_i32 s9, s3, 40")
        poll(a, 2, "s9", 40, 52)
        a("s_barrier")
        pf(PF0, PF1)
    a(f"""s_sub_u32 s8, s2, 216
    s_mul_i32 s9, s3, 40
    s_add_u32 s9, s9, 1024
    v_add_u32 v55, s9, v0
    v_cmp_gt_u32 vcc, 40, v0
    v_add_u32 v56, {256+242-40}, v0
    s_nop 0
    v_cndmask_b32 v55, v56, v55, vcc""")
    poll(a, 0, None, 50, 52, idxreg=55)
    R, ACC, U = 100, 16, 32
    a(f"""s_barrier
    s_cmp_ge_u32 s8, 32
    s_cbranch_scc1 {Lrest}
    v_lshrrev_b32 v2, 3, v0
    v_lshlrev_b32 v2, 12, v2
    v_and_b32 v3, 7, v0
    v_lshl_add_u32 v2, v3, 4, v2
    s_lshl_b32 s9, s3, 15
    s_lshl_b32 s10, s8, 7
    s_add_u32 s9, s9, s10
    s_add_u32 s9, s9, {WS['X1T']}""")
    add64(a, 14, 12, "s9")
    for i in range(20):
        a(f"global_load_dwordx4 {vr(R+4*i,4)}, v2, s[14:15]{SC}")
        if i < 19: add64(a, 14, 14, 32 * 4096)
    for i in range(20):
        a(f"s_waitcnt vmcnt({19-i})")
        u = (U + 8 * (i & 1)) if i else ACC
        for j in range(4): a(f"v_lshlrev_b32 v{u+2*j}, 16, v{R+4*i+j}\nv_and_b32 v{u+2*j+1}, s69, v{R+4*i+j}")
        for j in range(4):
            if i == 0: a(f"v_pk_mul_f32 {vr(ACC+8+2*j,2)}, {vr(u+2*j,2)}, {vr(u+2*j,2)}")
            else:
                a(f"v_pk_add_f32 {vr(ACC+2*j,2)}, {vr(ACC+2*j,2)}, {vr(u+2*j,2)}")
                a(f"v_pk_fma_f32 {vr(ACC+8+2*j,2)}, {vr(u+2*j,2)}, {vr(u+2*j,2)}, {vr(ACC+8+2*j,2)}")
    a("s_nop 1")
    for b in (ACC, ACC + 8):
        for j in range(4): a(f"v_permlane32_swap_b32 v{b+j}, v{b+4+j}")
    for b in (ACC, ACC + 8):
        for j in range(4): a(f"v_add_f32 v{b+j}, v{b+j}, v{b+4+j}")
    a("s_nop 1")
    for b in (ACC, ACC + 8):
        for j in range(2): a(f"v_permlane16_swap_b32 v{b+j}, v{b+2+j}")
    for b in (ACC, ACC + 8):
        for j in range(2): a(f"v_add_f32 v{b+j}, v{b+j}, v{b+2+j}")
    a("s_nop 1")
    for b in (ACC, ACC + 8):
        for j in range(2): a(f"v_add_f32_dpp v{b+j}, v{b+j}, v{b+j} row_ror:8 row_mask:0xf bank_mask:0xf")
    a(f"""s_lshl_b32 s14, s3, 9
    v_lshrrev_b32 v4, 4, v0
    v_lshlrev_b32 v3, 5, v3
    v_lshl_add_u32 v3, v4, 3, v3
    v_add_u32 v3, s14, v3
    ds_write_b64 v3, {vr(ACC,2)}
    ds_write_b64 v3, {vr(ACC+8,2)} offset:256
    s_waitcnt lgkmcnt(0)
    s_barrier
    s_cmp_lg_u32 s3, 0
    s_cbranch_scc1 {Lpub}
    v_lshlrev_b32 v2, 2, v0""")
    for w in range(4): a(f"ds_read2st64_b32 {vr(16+2*w,2)}, v2 offset0:{2*w} offset1:{2*w+1}")
    a(f"""s_lshl_b32 s14, s8, 9
    s_add_u32 s14, s14, {WS['ST2']}
    v_lshl_add_u32 v2, v0, 3, s14
    s_waitcnt lgkmcnt(0)
    v_pk_add_f32 v[16:17], v[16:17], v[18:19]
    v_pk_add_f32 v[20:21], v[20:21], v[22:23]
    v_pk_add_f32 v[16:17], v[16:17], v[20:21]
    v_mul_f32 v16, {INV640}, v16
    v_mul_f32 v17, {INV640}, v17
    v_fma_f32 v17, -v16, v16, v17
    v_max_f32 v17, 0, v17
    v_add_f32 v17, 0x3727c5ac, v17
    v_rsq_f32 v18, v17
    s_nop 0
    v_mul_f32 v19, -v16, v18
    global_store_dwordx2 v2, v[18:19], s[12:13]{SC}
    {Lpub}:""")
    publish(a, 4, 52)
    a(f"{Lrest}:")
    wl(min(IW, NWD1), NWD1)
    a(f"s_waitcnt vmcnt(0)\ns_branch {Lg2}")

def phase_g1(a):
    Lidle, Lg2 = "g1_idle", a.label("g2")
    assert NWE == NWA == NW0
    g2_setup(a)
    if "1" in REP:
        publish_rep(a, 1, 52, vm=X1LATE)
        publish(a, 2, 58, nosync=True)
    else: publish(a, 2, 52, vm=X1LATE)
    a.stamp(10)
    flag2_check(a)
    for i in range(NWDP): a(wd_load(i))
    a(f"""s_and_b32 s8, s3, 1
    s_lshl_b32 s7, s6, 1
    s_add_u32 s7, s7, s8
    s_lshr_b32 s4, s3, 1""")
    a(f"""v_lshrrev_b32 v2, 4, v0
    v_and_b32 v3, 15, v0
    v_lshlrev_b32 v4, 1, v2
    v_xor_b32 v4, v4, v3
    v_lshlrev_b32 v2, 12, v2
    s_lshl_b32 s9, s3, 15
    s_lshl_b32 s10, s5, 9
    s_add_u32 s9, s9, s10
    v_add_u32 v2, s9, v2
    v_lshl_add_u32 v5, v4, 4, v2
    v_xor_b32 v4, 8, v4
    v_lshl_add_u32 v6, v4, 4, v2
    v_add_u32 v6, {4*4096}, v6
    s_lshl_b32 s26, s3, 11
    s_lshl_b32 s9, s4, 13""")
    ACC, XF, WF, TA, TW = 128, 64, 32, 10, 18
    xtile_tr_addrs(a, TA, 9)
    a(f"""v_lshrrev_b32 v2, 2, v0
    v_bfe_u32 v3, v0, 3, 2
    v_and_b32 v4, 3, v0
    v_lshlrev_b32 v2, 7, v2
    v_lshl_add_u32 v2, v4, 3, v2
    v_add_u32 v2, {WRING}, v2
    s_lshl_b32 s9, s8, 1
    v_xor_b32 v3, s9, v3
    v_lshl_add_u32 v{TW}, v3, 5, v2
    v_xor_b32 v3, 1, v3
    v_lshl_add_u32 v{TW+1}, v3, 5, v2
    v_add_u32 v28, 0x10000, v{TW}
    v_add_u32 v29, 0x10000, v{TW+1}""")
    add64(a, 14, 12, WS['X1S']); srd(a, 16, 14, 640 * 4096)
    vm = VM()
    def emit(items, nop=False):
        for t, x in items:
            a(x)
            if t: vm.add(t)
            elif nop: a("s_nop 0")
    def xd(k):
        out = []
        for rh in range(2):
            for u in range(2):
                pre = f"s_add_u32 m0, s26, {(k&3)*16384 + rh*(8192-256) + u*1024}" + (f"\ns_mov_b32 s25, {k*0x20000}" if not out else "")
                out += [(None, pre), (("X", k), f"buffer_load_dwordx4 v{5+u}, s[16:19], s25 offen offset:{256*rh}{SC} lds")]
        return out
    def trreads(k):
        x = [(None, f"ds_read_b64_tr_b16 {vr(XF+32*(k&1)+4*m+2*hf,2)}, v{TA+m} offset:{16384*(k&3)+4096*hf}") for m in range(8) for hf in range(2)]
        w = [(None, f"ds_read_b64_tr_b16 {vr(WF+16*(k&1)+4*f+2*hf,2)}, v{(TW if k%NSL < 8 else 28)+(f>>1)} offset:{8192*((k%NSL)&7)+4096*(f&1)+2048*hf}") for f in range(4) for hf in range(2)]
        return w + x
    a(f"""s_lshl_b32 s9, s5, 2
    s_lshl_b32 s10, s4, 1
    s_add_u32 s9, s9, s10
    v_add_u32 v20, s9, v0
    s_mul_i32 s10, s6, 37
    s_lshr_b32 s10, s10, 8
    s_mul_i32 s10, s10, 55
    s_lshl_b32 s11, s6, 3
    s_sub_u32 s10, s11, s10
    s_add_u32 s10, s10, {(512 + 160 - 8 - 1024 - 216) & 0xffffffff}
    v_lshl_add_u32 v21, v0, 2, s10
    v_cmp_gt_u32 vcc, 2, v0
    s_lshl_b32 s9, s9, 9
    s_add_u32 s9, s9, {WS['ST2']}
    v_cndmask_b32 v20, v21, v20, vcc
    v_lshlrev_b32 v20, 7, v20
    v_add_u32 v20, {WS['FL'] + (4*256+216)*128}, v20
    v_add_u32 v21, s9, v9
    v_bfe_u32 v22, v0, 3, 2
    v_mul_u32_u24 v22, {1728*4}, v22
    v_and_b32 v23, 7, v0
    v_lshl_add_u32 v22, v23, 4, v22
    s_lshl_b32 s9, s7, 7
    s_add_u32 s9, s9, {WS['CSB']}
    v_add_u32 v22, s9, v22
    v_mov_b32 v24, s70
    v_mov_b32 v25, s71
    s_lshl_b32 s30, s3, 10
    s_add_u32 s30, s30, {STL}
    s_lshl_b32 s31, s3, 9
    s_add_u32 s31, s31, {CSL}
    v_and_b32 v26, 15, v0
    v_lshl_add_u32 v26, v26, 3, s30
    v_lshrrev_b32 v27, 4, v0
    v_lshl_add_u32 v27, v27, 4, s31
    s_mul_i32 s9, s3, 40""")
    for i in range(NWDP, NWD0): a(wd_load(i))
    a.stamp(11)
    if LAZY:
        a("v_lshrrev_b32 v55, 1, v0\nv_lshlrev_b32 v55, 3, v55\nv_and_or_b32 v55, v0, 1, v55\ns_lshl_b32 s9, s3, 1\nv_add_u32 v55, s9, v55")
        poll(a, 2, None, 2 * LAZY, 52, idxreg=55, rep=1)
        a("v_mov_b32 v30, v54")
    else:
        poll(a, 2, "s9", 40, 52, rep=1 if "1" in REP else None)
        a("s_barrier")
    vm.q = []
    a.stamp(12)
    XE = int(os.environ.get("XE", "3"))
    for j in range(XE): emit(xd(j), True)
    if not LAZY:
        emit(trreads(0)[:8])
        publish(a, 4, 2, nosync=True)
    a(vm.wait([("X", 0)]) + "\ns_barrier")
    if LAZY: emit(trreads(0)); publish(a, 4, 2, nosync=True)
    else: emit(trreads(0)[8:])
    for j in range(XE, 4): emit(xd(j), True)
    a.stamp(13)
    wdi = NWD0; wnext = NW0
    fl = f"s_mov_b64 exec, 0xf\nglobal_load_dwordx2 v[24:25], v20, s[12:13]{SC}\ns_mov_b64 exec, -1"
    STV, CB = 32, 64
    for k in range(20):
        w = vm.wait([("W", k + 1), ("X", k + 1)] + (["S"] if k == 19 else []) + (["G"] if k == HK3 else []) + (["L"] if k == LAZY - 4 else []))
        a("s_waitcnt lgkmcnt(0)")
        if w: a(w)
        if k < 19: a("s_barrier")
        if "g1stamp" in EXP and k % 2 == 0 and k: a.stamp(k // 2)
        mem = []
        fl2 = f"s_mov_b32 exec_hi, 0xff\nglobal_load_dwordx2 v[2:3], v30, s[12:13]{SC}\ns_mov_b64 exec, -1"
        if LAZY and LAZY < 20 and k == LAZY - 6: mem.append(("L", "v_mov_b32 v2, s70\nv_mov_b32 v3, s71\n" + fl2))
        if LAZY and LAZY < 20 and k == LAZY - 4:
            Lok, Lsl = a.label("lz_ok"), a.label("lz_slow")
            a(f"""s_mov_b32 s74, 0x100000
            {Lsl}:
            v_cmp_ne_u64 vcc, s[70:71], v[2:3]
            s_cbranch_vccz {Lok}
            {fl2}
            s_waitcnt vmcnt(0)
            s_sub_u32 s74, s74, 1
            s_cbranch_scc0 {Lsl}
            {Lok}:""")
        if k == HK3:
            Lok, Lsl = a.label("h3_ok"), a.label("h3_slow")
            a(f"""s_mov_b32 s74, 0x100000
            {Lsl}:
            v_cmp_ne_u64 vcc, s[70:71], v[24:25]
            s_cbranch_vccz {Lok}
            {fl}
            s_waitcnt vmcnt(0)
            s_sub_u32 s74, s74, 1
            s_cbranch_scc0 {Lsl}
            {Lok}:""")
            mem += [(None, "s_mov_b32 m0, s30"), ("S", f"global_load_lds_dwordx4 v21, s[12:13]{SC}"),
                    (None, "s_mov_b32 m0, s31"), ("S", f"s_mov_b32 exec_hi, 0\nglobal_load_lds_dwordx4 v22, s[12:13]{SC}\ns_mov_b64 exec, -1")]
        if k == HK3F: mem.append(("G", fl))
        if k == CPF:
            mem += [(None, f"s_getpc_b64 s[14:15]\ns_add_u32 s14, s14, g1_tail - .\ns_addc_u32 s15, s15, 0"), ("P", "global_load_dword v31, v30, s[14:15]")]
        if k == 18: a("g1_tail:")
        if k < 19: rd = trreads(k + 1)
        else:
            rd = [(None, f"ds_read_b64 {vr(STV+2*m,2)}, v26 offset:{128*m}") for m in range(8)]
            rd += [(None, f"ds_read_b128 {vr(CB+16*h+4*mt_,4)}, v27 offset:{128*mt_+64*h}") for h in range(2) for mt_ in range(4)]
        if k + 4 < 20: mem += xd(k + 4)
        if wnext < 20 and k >= WSTART: mem += wd_(wnext); wnext += 1
        cnt = lambda: sum(1 for e in mem if e[0] is not None)
        lim = LEVEL if k < 19 else 99
        while wdi < NWD1 and cnt() < lim and k >= WD_FIRST: mem.append((("D", wdi), wd_load(wdi))); wdi += 1
        slots = [[] for _ in range(32)]
        if SPREAD:
            groups = []; pend = []
            for e in mem:
                if e[0] is None: pend.append(e)
                else: groups.append((pend, e)); pend = []
            n = len(groups)
            pos = [1 + (i * 31) // n for i in range(n)] if n else []
            for (pre, e), p in zip(groups, pos):
                slots[p - 1] += pre; slots[p].insert(0, e)
            free = [i for i in range(RDEND) if i not in pos]
            order = free + [p for p in pos if p < RDEND] + free
            for e, p in zip(rd, sorted(order[:len(rd)])): slots[p].insert(1 if p in pos else 0, e)
        else:
            for i, e in enumerate(rd): slots[i].append(e)
            for i, e in enumerate(mem): slots[(32 - len(mem) + i) if len(mem) <= 20 else None].append(e)
        j = 0
        MO = os.environ.get("MORD", "m")
        if MO == "m": order_ = [(m, f) for m in range(8) for f in range(4)]
        elif MO == "ms": order_ = [(m, f if m % 2 == 0 else 3 - f) for m in range(8) for f in range(4)]
        elif MO == "f": order_ = [(m, f) for f in range(4) for m in range(8)]
        else: order_ = [(m if f % 2 == 0 else 7 - m, f) for f in range(4) for m in range(8)]
        for m, f in order_:
            if True:
                d = vr(ACC + 32 * f + 4 * m, 4)
                if "g1nomfma" in EXP: a("s_nop 0")
                else: a(f"v_mfma_f32_16x16x32_bf16 {d}, {vr(WF+16*(k&1)+4*f,4)}, {vr(XF+32*(k&1)+4*m,4)}, {d if k else '0'}")
                if "g1noload" in EXP: slots[j] = [e for e in slots[j] if "buffer_load" not in e[1]]
                if "g1notr" in EXP: slots[j] = [e for e in slots[j] if "_tr_" not in e[1]]
                emit(slots[j]); j += 1
    assert wdi == NWD1
    a.stamp(14)
    a(f"""s_lshl_b32 s9, s5, 1
    s_add_u32 s9, s9, s4
    s_mul_i32 s9, s9, {2*54}
    s_add_u32 s9, s9, s7
    s_lshl_b32 s9, s9, 12
    s_add_u32 s9, s9, {WS['HH']}""")
    add64(a, 14, 12, "s9"); add64(a, 28, 14, 54 * 4096)
    a("s_waitcnt lgkmcnt(0)")
    for m in range(8):
        st_ = vr(STV + 2 * m, 2); o = 96 + 4 * (m & 3)
        for h in range(2):
            G, U = ACC + 64 * h + 4 * m, ACC + 64 * h + 32 + 4 * m
            c = CB + 16 * h; t = 112 + 8 * h
            for p in range(2):
                a(f"v_pk_fma_f32 {vr(t+2*p,2)}, {vr(c+2*p,2)}, {st_}, {vr(c+4+2*p,2)} op_sel:[0,1,0] op_sel_hi:[1,1,1]")
                a(f"v_pk_fma_f32 {vr(t+4+2*p,2)}, {vr(c+8+2*p,2)}, {st_}, {vr(c+12+2*p,2)} op_sel:[0,1,0] op_sel_hi:[1,1,1]")
            for p in range(2):
                a(f"v_pk_fma_f32 {vr(G+2*p,2)}, {vr(G+2*p,2)}, {st_}, {vr(t+2*p,2)} op_sel_hi:[1,0,1]")
                a(f"v_pk_fma_f32 {vr(U+2*p,2)}, {vr(U+2*p,2)}, {st_}, {vr(t+4+2*p,2)} op_sel_hi:[1,0,1]")
            for r in range(4): a(f"v_max_f32 v{G+r}, 0, v{G+r}")
            for p in range(2): a(f"v_pk_mul_f32 {vr(G+2*p,2)}, {vr(G+2*p,2)}, {vr(U+2*p,2)}")
            for p in range(2): a(f"v_cvt_pk_bf16_f32 v{o+2*h+p}, v{G+2*p}, v{G+2*p+1}")
        sb_ = 14 if m < 4 else 28
        a(f"global_store_dwordx4 v9, {vr(o,4)}, s[{sb_}:{sb_+1}] offset:{1024*(m&3)}{SC}")
    a(f"s_branch {Lg2}\n{Lidle}:")
    phase_idle(a, Lg2)
    a(f"{Lg2}:")

def phase_g2(a):
    a.stamp(15)
    n1 = NWD1
    for i in range(n1, n1 + NWD2): a(wd_load(i))
    a(f"s_load_dwordx2 s[30:31], s[0:1], {KA['out']}")
    for sg in range(4):
        a(f"""s_add_u32 s7, s3, {sg}
        s_and_b32 s7, s7, 3
        s_lshl_b32 s8, s7, 10
        v_add_u32 v{10+sg}, s8, v9""")
        if sg: a(f"s_mul_i32 s8, s7, {15*1024}\ns_add_u32 s8, s8, {(sg-1)*5*1024}\nv_add_u32 v{13+sg}, s8, v9")
    a(f"s_mul_i32 s8, s44, {54*4096}\ns_add_u32 s8, s8, {WS['HH']}")
    add64(a, 14, 12, "s8"); srd(a, 16, 14, 54 * 4096)
    ACC, XR, GB, SEL, HB = 152, 20, 40, 60, 64
    NB = 5
    a(f"""v_and_b32 v2, 15, v0
    v_lshrrev_b32 v3, 4, v0
    v_lshlrev_b32 v4, 12, v2
    v_lshl_add_u32 v4, v3, 4, v4
    v_lshlrev_b32 v18, 4, v3
    s_mul_i32 s8, s45, {80*4096}
    s_lshl_b32 s9, s44, 7
    s_add_u32 s8, s8, s9
    s_lshr_b32 s9, s3, 1
    s_lshl_b32 s9, s9, 6
    s_add_u32 s8, s8, s9
    s_add_u32 s8, s8, {WS['X1T']}
    s_add_u32 s14, s12, s8
    s_addc_u32 s15, s13, 0
    s_mul_i32 s8, s45, 320
    s_add_u32 s8, s8, {WS['MOD'] + 5*2560}
    s_add_u32 s26, s12, s8
    s_addc_u32 s27, s13, 0
    s_and_b32 s8, s3, 1
    s_lshl_b32 s8, s8, 4
    v_lshlrev_b32 v5, 3, v3
    v_sub_u32 v5, v2, v5
    v_add_u32 v5, s8, v5
    v_mov_b32 v6, 0x3f80
    v_mov_b32 v7, 0x3f800000""")
    for p in range(4):
        a(f"""v_cmp_eq_u32 vcc, {2*p}, v5
        v_cmp_eq_u32 s[28:29], {2*p+1}, v5
        s_nop 1
        v_cndmask_b32 v{SEL+p}, 0, v6, vcc
        v_cndmask_b32 v{SEL+p}, v{SEL+p}, v7, s[28:29]""")
    if "c" in REP: a("s_lshr_b32 s8, s3, 1\nv_lshl_add_u32 v147, v0, 1, s8\nv_min_u32 v147, 26, v147")
    else: a("v_mov_b32 v147, v0")
    a(f"""s_bfe_u32 s8, s44, 0x20002
    v_lshl_add_u32 v147, v147, 2, s8
    v_mul_u32_u24 v146, 2428, v147
    v_lshrrev_b32 v146, 16, v146
    v_lshlrev_b32 v147, 3, v147
    v_mul_u32_u24 v145, {8*27-1}, v146
    v_sub_u32 v147, v147, v145
    s_lshr_b32 s8, s44, 4
    s_lshl_b32 s8, s8, 2
    v_add_u32 v147, s8, v147
    s_lshl_b32 s24, s3, 12""")
    if "c" in REP: publish_wave(a, 2, 136, vm=NWD2); a("s_barrier")
    elif "2" in REP: publish_rep(a, 2, 136, vm=NWD2)
    else: publish(a, 3, 148, vm=NWD2)
    a.stamp(16)
    for i in range(n1 + NWD2, 70): a(wd_load(i))
    a(f"""v_lshrrev_b32 v4, 2, v0
    v_lshlrev_b32 v4, 12, v4
    v_bfe_u32 v19, v0, 4, 2
    v_xor_b32 v19, v19, v0
    v_and_b32 v19, 3, v19
    v_lshl_add_u32 v4, v19, 4, v4
    s_mul_i32 s9, s3, 5120
    s_add_u32 s9, s9, {W3L}
    v_bfe_u32 v19, v0, 2, 2
    v_xor_b32 v19, v19, v3
    v_lshl_add_u32 v19, v2, 2, v19
    v_lshl_add_u32 v19, v19, 4, s9""")
    late = [(99, f"s_add_u32 m0, s9, {1024*d}\ns_nop 0\nglobal_load_lds_dwordx4 v4, s[14:15]{SC}\ns_add_u32 s14, s14, 0x10000\ns_addc_u32 s15, s15, 0") for d in range(5)]
    late += [(99, f"s_lshl_b32 s8, s3, 9\ns_add_u32 m0, s8, {CSL}\nv_add_u32 v18, m0, v18\ns_mov_b64 exec, 0xfffff\nglobal_load_lds_dwordx4 v9, s[26:27]{SC}\ns_mov_b64 exec, -1")]
    if not XLATE:
        for e in late: a(e[1])
        late = []
    OA, OB = (148, 149, 150), (151, 1, 4)
    a(f"""s_mul_i32 s8, s3, 2816
    s_add_u32 s8, s8, 65536
    v_mul_u32_u24 v5, 176, v2
    v_lshl_add_u32 v5, v3, 3, v5
    v_add_u32 v5, s8, v5""")
    for i in range(3):
        a(f"""v_add_u32 v6, {64*i}, v0
        v_min_u32 v6, 159, v6
        v_mul_u32_u24 v7, 6554, v6
        v_lshrrev_b32 v7, 16, v7
        v_lshlrev_b32 v6, 4, v6
        v_lshl_add_u32 v{OA[i]}, v7, 4, v6
        v_add_u32 v{OA[i]}, s8, v{OA[i]}
        v_mul_u32_u24 v7, {1280-160}, v7
        v_add_u32 v{OB[i]}, v6, v7""")
    a(f"""s_mul_i32 s8, s3, {15*1024}
    v_add_u32 v17, s8, v9
    s_lshl_b32 s8, s44, 2
    s_add_u32 s8, s8, s3
    s_mul_i32 s8, s8, {16*1280}
    s_mul_i32 s9, s45, 160
    s_add_u32 s8, s8, s9
    s_waitcnt lgkmcnt(0)""")
    add64(a, 30, 30, "s8")
    if "c" in REP:
        a("s_and_b32 s8, s44, 2\ns_and_b32 s9, s3, 1\ns_add_u32 s8, s8, s9")
        poll(a, 3, None, 14, 144, idxreg=147, rep=2, sub="s8")
    else: poll(a, 3, None, 27, 144, idxreg=147, rep=2 if "2" in REP else None)
    a.stamp(17)
    if "opf" in EXP:
        a(f"""s_lshl_b32 s8, s44, 2
        s_add_u32 s8, s8, s3
        s_mul_i32 s8, s8, {16*1280}
        s_mul_i32 s9, s45, 160
        s_add_u32 s8, s8, s9
        v_mul_u32_u24 v19, 1280, v2
        v_mul_u32_u24 v145, 52, v3
        v_add3_u32 v19, v19, v145, s8
        s_waitcnt lgkmcnt(0)
        global_load_dword v145, v19, s[30:31]""")
    vm = VM()
    def hl(st):
        return [(st, (f"s_add_u32 s25, s24, {st*16384}\n" if sg == 0 else "") + f"buffer_load_dwordx4 {vr(HB+16*(st%NB)+4*sg,4)}, v{10+sg}, s[16:19], s25 offen{SC}") for sg in range(4)]
    rest = []
    def emit(e):
        if "g2noload" in EXP and "s[16:19]" in e[1] and e[0] >= 4: return
        if "g2norest" in EXP and "s[16:19]" not in e[1]: return
        a(e[1]); vm.add(e[0])
    for st in range(NB - 1):
        for e in hl(st): emit(e)
    for d in range(5): a(f"ds_read_b128 {vr(128+4*d,4)}, v19 offset:{1024*d}")
    for d in range(5): a(f"ds_read_b128 {vr(GB+4*d,4)}, v18 offset:{64*d}")
    a("s_waitcnt lgkmcnt(5)")
    for d in range(5): a(f"v_mfma_f32_16x16x32_bf16 {vr(20+4*d,4)}, {vr(128+4*d,4)}, {vr(SEL,4)}, 0")
    Lskip, Ljoin = a.label("g2_skip"), a.label("g2_join")
    a.retry = [f"{Lskip}:\n" + "\n".join(f"ds_write_b128 v{13+sg}, {vr(ACC+20*sg+4*d,4)} offset:{1024*d}" for sg in range(1, 4) for d in range(5)) + f"\ns_branch {Ljoin}"]
    for st in range(14):
        if st == 13: a(f"s_cmp_ge_u32 s3, 2\ns_cbranch_scc1 {Lskip}")
        a(vm.wait(list(range(st + 1))) or "s_nop 0")
        if "g2stamp" in EXP and st in (0, 1, 2, 4, 6, 8, 10, 12): a.stamp({0: 1, 1: 2, 2: 3, 4: 4, 6: 5, 8: 6, 10: 7, 12: 8}[st])
        ex = hl(st + NB - 1) if st + NB - 1 < 14 else []
        if st >= 10: ex += late[:4]; late = late[4:]
        for sg in ((0, 1, 2, 3) if st < 13 else (1, 2, 3, 0)):
            for d in range(5):
                t = vr(ACC + 20 * sg + 4 * d, 4)
                if "g2nomfma" not in EXP: a(f"v_mfma_f32_16x16x32_bf16 {t}, {wd_reg(5*st+d)}, {vr(HB+16*(st%NB)+4*sg,4)}, {t if st else '0'}")
                if ex and (d == G2POS or not SPREAD): emit(ex.pop(0))
                if st == 13 and sg in (3, 0): a(f"ds_write_b128 v{14 if sg == 3 else 15}, {vr(ACC+20*(1 if sg == 3 else 2)+4*d,4)} offset:{1024*d}")
        assert not ex
    assert not rest
    a.stamp(18)
    XD = 20
    for d in range(5): a(f"ds_write_b128 v16, {vr(ACC+60+4*d,4)} offset:{1024*d}")
    a(f"{Ljoin}:\ns_waitcnt lgkmcnt(0)")
    if "fstamp" in EXP: a.stamp(1)
    a("s_barrier")
    if "fstamp" in EXP: a.stamp(2)
    for d in range(5):
        for sg in range(1, 4): a(f"ds_read_b128 {vr(ACC+20*sg+4*d,4)}, v17 offset:{1024*(5*(sg-1)+d)}")
    for d in range(5):
        a(f"s_waitcnt lgkmcnt({12-3*d + (d if OUTT else 0)})")
        t = ACC + 4 * d
        for p in range(2):
            a(f"v_pk_add_f32 {vr(t+2*p,2)}, {vr(t+2*p,2)}, {vr(t+20+2*p,2)}")
            a(f"v_pk_add_f32 {vr(t+40+2*p,2)}, {vr(t+40+2*p,2)}, {vr(t+60+2*p,2)}")
        for p in range(2): a(f"v_pk_add_f32 {vr(t+2*p,2)}, {vr(t+2*p,2)}, {vr(t+40+2*p,2)}")
        for p in range(2): a(f"v_pk_fma_f32 {vr(t+2*p,2)}, {vr(t+2*p,2)}, {vr(GB+4*d+2*p,2)}, {vr(XD+4*d+2*p,2)}")
        a(f"v_cvt_pk_bf16_f32 v{t}, v{t}, v{t+1}\nv_cvt_pk_bf16_f32 v{t+1}, v{t+2}, v{t+3}")
        if OUTT: a(f"ds_write_b64 v5, {vr(t,2)} offset:{32*d}")
        else: a(f"global_store_dwordx2 v4, {vr(t,2)}, s[30:31] offset:{32*d}")
    if OUTT:
        for i in range(3): a(f"ds_read_b128 {vr(100+4*i,4)}, v{OA[i]}")
        for i in range(3):
            a(f"s_waitcnt lgkmcnt({2-i})")
            if i == 2: a("s_mov_b32 exec_hi, 0")
            a(f"global_store_dwordx4 v{OB[i]}, {vr(100+4*i,4)}, s[30:31]")

DOC = """; ---------------------------------------------------------------------------------------------
;  wg >= 160 : modulation GEMV, LN1 statistics, W_down fragment layout, column sums for folded LN2
; ---------------------------------------------------------------------------------------------
"""
def build():
    a = A()
    hdr = open("cdna_kernels/" + NAME + ".s.ref").read().split("; Override launch")[0]
    a(f'.amdgcn_target "amdgcn-amd-amdhsa--gfx950"\n.text\n.globl {KNAME}\n.p2align 8\n.type {KNAME},@function\n{KNAME}:')
    Lend, Laux, Lg1, Lnt = a.label("end"), a.label("aux"), a.label("g1"), a.label("notag")
    if DIAG:
        for i in range(NSTAMP): a(f"s_mov_b32 s{48+i}, 0")
    a.stamp(0)
    a(f"""s_cmp_ge_u32 s2, 256
    s_cbranch_scc1 {Lend}
    s_load_dwordx2 s[12:13], s[0:1], {KA['ws']}
    s_load_dwordx2 s[72:73], s[0:1], {KA['dbg']}
    v_lshrrev_b32 v1, 6, v0
    v_and_b32 v0, 63, v0
    v_readfirstlane_b32 s3, v1
    s_mov_b32 s69, 0xffff0000
    s_cmp_lg_u32 s2, 255
    s_cbranch_scc1 {Lnt}
    s_cmp_lg_u32 s3, 0
    s_cbranch_scc1 {Lnt}
    s_memrealtime s[70:71]
    v_mov_b32 v4, 0
    s_waitcnt lgkmcnt(0)
    s_or_b32 s70, s70, 1
    v_mov_b32 v2, s70
    v_mov_b32 v3, s71
    s_mov_b64 exec, 1
    global_store_dwordx2 v4, v[2:3], s[72:73]{SC}
    s_mov_b64 exec, -1
    {Lnt}:""")
    if "tlb" in EXP:
        TSH = int(os.environ.get("TSH", "20"))
        Ltl = a.label("notouch")
        npg = (_off >> TSH) + 1
        assert npg <= 64
        a(f"""s_cmp_lg_u32 s3, 1
        s_cbranch_scc1 {Ltl}
        s_load_dwordx4 s[4:7], s[0:1], {KA['wg']}
        s_load_dwordx2 s[8:9], s[0:1], {KA['wd']}
        s_load_dwordx2 s[10:11], s[0:1], {KA['out']}
        v_min_u32 v2, {npg-1}, v0
        v_lshlrev_b32 v2, {TSH}, v2
        v_min_u32 v3, 0x200000, v2
        s_waitcnt lgkmcnt(0)
        global_load_dword v251, v2, s[12:13]{NT}
        global_load_dword v251, v3, s[4:5]{NT}
        global_load_dword v251, v3, s[6:7]{NT}
        global_load_dword v251, v3, s[8:9]{NT}
        global_load_dword v251, v3, s[10:11]{NT}
        {Ltl}:""")
    a(f"""s_cmp_ge_u32 s2, 160
    s_cbranch_scc1 {Laux}""")
    phase_conv(a, Lg1)
    a(f"{Laux}:")
    phase_aux(a, Lg1)
    a(f"{Lg1}:")
    phase_g1(a)
    phase_g2(a)
    if DIAG:
        if "fstamp" in EXP: a.stamp(3)
        a("s_waitcnt vmcnt(0)")
        a.stamp(19)
        AMP = os.environ.get("AMP", "")
        if AMP:
            i, wgsel = (int(x) for x in AMP.split(":"))
            Lsp, Lsk = a.label("spin"), a.label("nospin")
            a(f"""s_cmp_lg_u32 s2, {wgsel}
            s_cbranch_scc1 {Lsk}
            s_sub_u32 s4, s{48+i}, s48
            s_lshl_b32 s4, s4, 3
            {Lsp}:
            s_memrealtime s[76:77]
            s_waitcnt lgkmcnt(0)
            s_sub_u32 s5, s76, s67
            s_cmp_lt_u32 s5, s4
            s_cbranch_scc1 {Lsp}
            {Lsk}:""")
        a(f"""s_lshl_b32 s4, s2, 2
        s_add_u32 s4, s4, s3
        s_lshl_b32 s4, s4, 7
        s_add_u32 s4, s4, {TS_OFF}
        v_mov_b32 v0, s4
        s_mov_b64 exec, 1""")
        for i in range(NSTAMP): a(f"v_mov_b32 v2, s{48+i}\nglobal_store_dword v0, v2, s[12:13] offset:{4*i}\ns_nop 1")
    a(f"{Lend}:\ns_endpgm")
    for r in a.retry: a(r)
    a("code_end:")
    kd = f""".section .rodata,"a"
.p2align 6
.amdhsa_kernel {KNAME}
  .amdhsa_next_free_vgpr 512
  .amdhsa_next_free_sgpr 102
  .amdhsa_accum_offset 256
  .amdhsa_group_segment_fixed_size 0
  .amdhsa_kernarg_size 120
  .amdhsa_user_sgpr_count 2
  .amdhsa_user_sgpr_kernarg_segment_ptr 1
  .amdhsa_system_sgpr_workgroup_id_x 1
.end_amdhsa_kernel
"""
    return hdr + f"; @launch grid=(256,1,1) block=(256,1,1) lds={LDS_BYTES}\n" + DOC + a.text() + kd

if __name__ == "__main__":
    open(sys.argv[1] if len(sys.argv) > 1 else "p.s", "w").write(build())
```

```python
import sys, os
NAME = "adaLN_cond__ssm_conv_h3__glu_gated_reglu__prompt"
KNAME = NAME + "_kernel"
S, D, F = 2048, 640, 1728
KA = dict(x=0, k=8, v=16, shift=24, ssm=32, ssmD=40, bx=48, wg=56, wu=64, wd=72, c=80, wmod=88, out=96, dbg=104, ws=112)
WS = {}
_off = 0
def alloc(name, n):
    global _off
    WS[name] = _off
    _off += (n + 4095) // 4096 * 4096
alloc("FL", 6 * 256 * 128)
alloc("FR", 3 * 256 * 1024)
alloc("KVT", 640 * 4096 + 4096)
alloc("XTT", 640 * 4096)
alloc("ST", 2 * 2048 * 4)
alloc("MOD", 3840 * 4)
alloc("X1T", 640 * 4096)
alloc("X1S", 640 * 4096)
alloc("ST2", 2048 * 8)
alloc("CSB", 4 * 1728 * 4)
alloc("WD", 54 * 40 * 1024)
alloc("HH", 32 * 54 * 4096)
DIAG = bool(int(os.environ.get("DIAG", "0")))
EXP = os.environ.get("EXP", "").split(",")
TS_OFF = 64 << 20
NSTAMP = 20
SLEEP = int(os.environ.get("SLEEP", "1"))
FLMASK = os.environ.get("FLMASK", "0xffff")
REP = os.environ.get("REP", "01")
FI3 = False
FT = int(os.environ.get("FT", "0"))
POLL1 = os.environ.get("POLL1", "3")
NT = " nt"
SC = " sc1"
INV640 = f"{1.0/640:#.9g}"

class A:
    def __init__(self):
        self.l = []; self.n = 0
    def __call__(self, s):
        for x in s.strip("\n").split("\n"):
            x = x.strip()
            if x: self.l.append(("" if x.endswith(":") else "    ") + x)
    def label(self, p="L"):
        self.n += 1
        return f"{p}_{self.n}"
    def stamp(self, i):
        J = os.environ.get("JIT")
        if J and i not in (0, 19):
            seed, mode = (int(x) for x in J.split(":"))
            L, Ld = self.label("jit"), self.label("jitd")
            self(f"""s_lshl_b32 s78, s2, 2
            s_add_u32 s78, s78, {'s3' if mode & 1 else 0}
            s_add_u32 s78, s78, {seed * 977 + i * 131}
            s_mul_i32 s78, s78, 0x9E3779B1
            s_lshr_b32 s79, s78, 29
            s_cmp_lg_u32 s79, 0
            s_cbranch_scc1 {Ld}
            s_bfe_u32 s78, s78, 0x40014
            {L}:
            s_sleep 32
            s_sub_u32 s78, s78, 1
            s_cbranch_scc0 {L}
            {Ld}:""")
            return
        if DIAG: self(f"{'s_memtime' if 'cyc' in EXP else 's_memrealtime'} s[76:77]\ns_waitcnt lgkmcnt(0)\ns_mov_b32 s{48+i}, s76")
    def text(self): return "\n".join(self.l) + "\n"

def vr(b, n=1, p="v"): return f"{p}{b}" if n == 1 else f"{p}[{b}:{b+n-1}]"
def ar(b, n=1): return vr(b, n, "a")
def srd(a, dst, base, nbytes):
    a(f"s_mov_b32 s{dst}, s{base}\ns_and_b32 s{dst+1}, s{base+1}, 0xffff\ns_mov_b32 s{dst+2}, {nbytes}\ns_mov_b32 s{dst+3}, 0x20000")
def add64(a, dst, base, off):
    a(f"s_add_u32 s{dst}, s{base}, {off}\ns_addc_u32 s{dst+1}, s{base+1}, 0")
def dma(a, voff, sbase, m0, extra=""):
    a(f"s_mov_b32 m0, {m0}\ns_nop 0\nglobal_load_lds_dwordx4 v{voff}, s[{sbase}:{sbase+1}]{extra}")
def rbf16(a, dst, src):
    a(f"v_cvt_pk_bf16_f32 v{dst}, v{src}, v{src}\nv_lshlrev_b32 v{dst}, 16, v{dst}")

def get_tag(a, vt):
    L, Ld = a.label("tag"), a.label("tagd")
    a(f"""s_mov_b32 s74, 0x100000
    v_mov_b32 v{vt+2}, 0
    {L}:
    s_mov_b64 exec, 1
    global_load_dwordx2 {vr(vt,2)}, v{vt+2}, s[72:73]{SC}
    s_mov_b64 exec, -1
    s_waitcnt vmcnt(0)
    v_readfirstlane_b32 s70, v{vt}
    v_readfirstlane_b32 s71, v{vt+1}
    s_sub_u32 s74, s74, 1
    s_cbranch_scc1 {Ld}
    s_cmp_eq_u64 s[70:71], 0
    s_cbranch_scc1 {L}
    {Ld}:""")

def publish(a, phase, vt, vm=0, nosync=False):
    L = a.label("pub")
    if not nosync: a(f"s_waitcnt vmcnt({vm})\ns_barrier")
    a(f"""s_cmp_lg_u32 s3, 0
    s_cbranch_scc1 {L}
    s_lshl_b32 s74, s2, 7
    s_add_u32 s74, s74, {WS['FL'] + phase*256*128}
    v_lshl_add_u32 v{vt+2}, v0, 3, s74
    v_mov_b32 v{vt}, s70
    v_mov_b32 v{vt+1}, s71
    s_mov_b64 exec, {FLMASK}
    global_store_dwordx2 v{vt+2}, {vr(vt,2)}, s[12:13]{SC}
    s_mov_b64 exec, -1
    {L}:""")

def publish_rep(a, fs, vt, vm=0):
    L = a.label("pubr")
    a(f"""s_waitcnt vmcnt({vm})
    s_barrier
    s_cmp_lg_u32 s3, 0
    s_cbranch_scc1 {L}
    s_lshl_b32 s74, s2, 10
    s_add_u32 s74, s74, {WS['FR'] + fs*256*1024}
    v_lshl_add_u32 v{vt+4}, v0, 4, s74
    v_mov_b32 v{vt}, s70
    v_mov_b32 v{vt+1}, s71
    v_mov_b32 v{vt+2}, s70
    v_mov_b32 v{vt+3}, s71
    global_store_dwordx4 v{vt+4}, {vr(vt,4)}, s[12:13]{SC}
    s_nop 1
    {L}:""")

def publish_wave(a, fs, vt, vm=0):
    a(f"""s_lshl_b32 s74, s2, 3
    s_add_u32 s74, s74, s3
    s_lshl_b32 s74, s74, 7
    s_add_u32 s74, s74, {WS['FR'] + fs*256*1024}
    v_lshl_add_u32 v{vt+2}, v0, 3, s74
    v_mov_b32 v{vt}, s70
    v_mov_b32 v{vt+1}, s71
    s_mov_b64 exec, 0xffff
    s_waitcnt vmcnt({vm})
    global_store_dwordx2 v{vt+2}, {vr(vt,2)}, s[12:13]{SC}
    s_mov_b64 exec, -1""")

def poll(a, phase, first, count, vt, idxreg=None, rep=None, sub=None):
    L, Ld = a.label("poll"), a.label("polld")
    if idxreg is None:
        a(f"v_add_u32 v{vt+2}, {first}, v0")
        idxreg = vt + 2
    if rep is None:
        a(f"v_lshlrev_b32 v{vt+2}, 7, v{idxreg}\nv_add_u32 v{vt+2}, {WS['FL'] + phase*256*128}, v{vt+2}")
    else:
        a("s_and_b32 s74, s2, 7" if sub is None else f"s_mov_b32 s74, {sub}")
        a(f"s_lshl_b32 s74, s74, 7\ns_add_u32 s74, s74, {WS['FR'] + rep*256*1024}\nv_lshl_add_u32 v{vt+2}, v{idxreg}, 10, s74")
    a("s_mov_b32 s74, 0x100000")
    if count < 64: a(f"s_mov_b64 exec, {(1 << count) - 1:#x}" if count <= 31 else f"s_mov_b32 exec_hi, {(1 << (count - 32)) - 1:#x}")
    a(f"""{L}:
    global_load_dwordx2 {vr(vt,2)}, v{vt+2}, s[12:13]{SC}
    s_waitcnt vmcnt(0)
    v_cmp_ne_u64 vcc, s[70:71], {vr(vt,2)}
    s_and_b64 exec, exec, vcc
    s_cbranch_execz {Ld}
    s_sleep {SLEEP}
    s_sub_u32 s74, s74, 1
    s_cbranch_scc0 {L}
    {Ld}:
    s_mov_b64 exec, -1""")

def poll_multi(a, phase, count, vt):
    L, Ld = a.label("pollm"), a.label("pollmd")
    a(f"""v_lshlrev_b32 v{vt+6}, 7, v0
    v_add_u32 v{vt+6}, {WS['FL'] + phase*256*128}, v{vt+6}
    v_add_u32 v{vt+7}, {64*128}, v{vt+6}
    v_add_u32 v{vt+8}, {128*128}, v{vt+6}
    s_mov_b64 s[38:39], -1
    s_mov_b64 s[10:11], -1
    s_mov_b32 s28, {(1 << (count - 128)) - 1:#x}
    s_mov_b32 s29, 0
    s_mov_b32 s74, 0x100000
    {L}:""")
    for i, m in enumerate(("s[38:39]", "s[10:11]", "s[28:29]")):
        Ls = a.label("pm")
        a(f"s_mov_b64 exec, {m}\ns_cbranch_execz {Ls}\nglobal_load_dwordx2 {vr(vt+2*i,2)}, v{vt+6+i}, s[12:13]{SC}\n{Ls}:")
    a("s_mov_b64 exec, -1\ns_waitcnt vmcnt(0)")
    for i, m in enumerate(("s[38:39]", "s[10:11]", "s[28:29]")):
        a(f"v_cmp_ne_u64 vcc, s[70:71], {vr(vt+2*i,2)}\ns_and_b64 {m}, {m}, vcc")
    a(f"""s_or_b64 vcc, s[38:39], s[10:11]
    s_or_b64 vcc, vcc, s[28:29]
    s_cbranch_scc0 {Ld}
    s_sleep {SLEEP}
    s_sub_u32 s74, s74, 1
    s_cbranch_scc0 {L}
    {Ld}:""")

def xtile_tr_addrs(a, dst, base_sgpr=None):
    a("""v_lshrrev_b32 v2, 2, v0
    v_and_b32 v3, 7, v2
    v_lshlrev_b32 v3, 1, v3
    v_bfe_u32 v4, v0, 1, 1
    v_or_b32 v3, v3, v4
    v_lshlrev_b32 v2, 8, v2
    v_and_b32 v4, 1, v0
    v_lshl_add_u32 v2, v4, 3, v2""")
    if base_sgpr is not None: a(f"v_add_u32 v2, s{base_sgpr}, v2")
    for m in range(8): a(f"v_xor_b32 v4, {2*m}, v3\nv_lshl_add_u32 v{dst+m}, v4, 4, v2")

def stats_issue(a, R, sx, srow):
    a(f"""s_lshl_b32 s14, s3, 4
    s_add_u32 s14, s14, s{srow}
    s_mul_i32 s14, s14, 1280
    v_lshrrev_b32 v{R+80}, 4, v0
    v_mul_u32_u24 v{R+80}, {1280-256}, v{R+80}
    v_lshl_add_u32 v{R+80}, v0, 4, v{R+80}""")
    add64(a, 14, sx, "s14")
    for gq in range(4):
        for i in range(5): a(f"global_load_dwordx4 {vr(R+20*gq+4*i,4)}, v{R+80}, s[14:15] offset:{256*i}{NT}")
        if gq < 3: add64(a, 14, 14, 4 * 1280)
def stats_compute(a, R, srow):
    T = R + 80
    a("s_mov_b32 s14, 0x3f803f80")
    for half in range(2):
        a(f"s_waitcnt vmcnt({11 if half == 0 else 1})")
        for i in range(20):
            for gq in (2 * half, 2 * half + 1):
                a(f"v_dot2_f32_bf16 v{T+2*gq}, v{R+20*gq+i}, s14, {'0' if i == 0 else f'v{T+2*gq}'}")
                a(f"v_dot2_f32_bf16 v{T+2*gq+1}, v{R+20*gq+i}, v{R+20*gq+i}, {'0' if i == 0 else f'v{T+2*gq+1}'}")
    a("s_nop 2")
    for rot in (8, 4, 2, 1):
        for j in range(8): a(f"v_add_f32_dpp v{T+j}, v{T+j}, v{T+j} row_ror:{rot} row_mask:0xf bank_mask:0xf")
    a(f"""v_and_b32 v{R}, 3, v0
    v_cmp_eq_u32 vcc, 1, v{R}
    v_cmp_eq_u32 s[14:15], 2, v{R}
    v_cmp_eq_u32 s[16:17], 3, v{R}
    v_lshrrev_b32 v{R+1}, 4, v0
    v_lshl_add_u32 v{R}, v{R}, 2, v{R+1}
    v_cndmask_b32 v{T}, v{T}, v{T+2}, vcc
    v_cndmask_b32 v{T+1}, v{T+1}, v{T+3}, vcc
    v_cndmask_b32 v{T}, v{T}, v{T+4}, s[14:15]
    v_cndmask_b32 v{T+1}, v{T+1}, v{T+5}, s[14:15]
    v_cndmask_b32 v{T}, v{T}, v{T+6}, s[16:17]
    v_cndmask_b32 v{T+1}, v{T+1}, v{T+7}, s[16:17]
    v_mul_f32 v{T}, {INV640}, v{T}
    v_mul_f32 v{T+1}, {INV640}, v{T+1}
    v_fma_f32 v{T+1}, -v{T}, v{T}, v{T+1}
    v_max_f32 v{T+1}, 0, v{T+1}
    v_add_f32 v{T+1}, 0x3727c5ac, v{T+1}
    v_rsq_f32 v{T+1}, v{T+1}
    s_lshl_b32 s14, s3, 4
    s_add_u32 s14, s14, s{srow}
    s_lshl_b32 s14, s14, 3
    s_add_u32 s14, s14, {WS['ST']}
    v_mul_f32 v{T}, -v{T}, v{T+1}
    v_and_b32 v{R+1}, 4, v0
    v_cmp_eq_u32 vcc, 0, v{R+1}
    v_lshl_add_u32 v{R}, v{R}, 2, s14
    v_lshl_add_u32 v{R}, v{R+1}, 4, v{R}
    v_cndmask_b32 v{T}, v{T}, v{T+1}, vcc
    s_mov_b32 exec_lo, 0xff00ff
    s_mov_b32 exec_hi, 0xff00ff
    global_store_dword v{R}, v{T}, s[12:13]{SC}
    s_mov_b64 exec, -1""")

def mod_slab(a, sslab, sc, sw, ldsoff):
    R, CR, SV, ACC, U = 100, 180, 16, 56, 64
    a(f"""s_lshl_b32 s14, s3, 3
    v_lshrrev_b32 v2, 3, v0
    v_add_u32 v2, s14, v2
    v_mul_u32_u24 v3, 40, v2
    global_load_dwordx4 {vr(CR,4)}, v3, s[{sc}:{sc+1}]
    global_load_dwordx4 {vr(CR+4,4)}, v3, s[{sc}:{sc+1}] offset:16
    global_load_dwordx2 {vr(CR+8,2)}, v3, s[{sc}:{sc+1}] offset:32
    v_mul_u32_u24 v2, {20*7680}, v2
    v_and_b32 v3, 7, v0
    v_lshl_add_u32 v2, v3, 4, v2
    s_lshl_b32 s16, s{sslab}, 7""")
    add64(a, 14, sw, "s16")
    for i in range(20):
        a(f"global_load_dwordx4 {vr(R+4*i,4)}, v2, s[14:15]{NT}")
        if i < 19: add64(a, 14, 14, 7680)
        if i == 9:
            a("s_waitcnt vmcnt(10)")
            for j in range(10): a(f"v_lshlrev_b32 v{SV+4*j+1}, 16, v{CR+j}\nv_and_b32 v{SV+4*j+3}, s69, v{CR+j}")
            for j in range(20): a(f"v_mul_f32 v{SV+2*j}, 0xbfb8aa3b, v{SV+2*j+1}")
            for j in range(20): a(f"v_exp_f32 v{SV+2*j}, v{SV+2*j}")
            for j in range(20): a(f"v_add_f32 v{SV+2*j}, 1.0, v{SV+2*j}")
            for j in range(20): a(f"v_rcp_f32 v{SV+2*j}, v{SV+2*j}")
            for j in range(20): a(f"v_mul_f32 v{SV+2*j}, v{SV+2*j+1}, v{SV+2*j}")
            for j in range(10): a(f"v_cvt_pk_bf16_f32 v{SV+4*j+1}, v{SV+4*j}, v{SV+4*j+2}")
            for j in range(10): a(f"v_lshlrev_b32 v{SV+4*j}, 16, v{SV+4*j+1}\nv_and_b32 v{SV+4*j+2}, s69, v{SV+4*j+1}")
    tag_issue(a, 212)
    for i in range(20):
        a(f"s_waitcnt vmcnt({20-i if i < 19 else 0})")
        u = U + 8 * (i & 1)
        for j in range(4): a(f"v_lshlrev_b32 v{u+2*j}, 16, v{R+4*i+j}\nv_and_b32 v{u+2*j+1}, s69, v{R+4*i+j}")
        for j in range(4):
            if i == 0: a(f"v_pk_mul_f32 {vr(ACC+2*j,2)}, {vr(u+2*j,2)}, {vr(SV,2)} op_sel_hi:[1,0]")
            else: a(f"v_pk_fma_f32 {vr(ACC+2*j,2)}, {vr(u+2*j,2)}, {vr(SV+2*i,2)}, {vr(ACC+2*j,2)} op_sel_hi:[1,0,1]")
    a("s_nop 1")
    for j in range(4): a(f"v_permlane32_swap_b32 v{ACC+j}, v{ACC+4+j}")
    a("s_nop 0")
    for j in range(4): a(f"v_add_f32 v{ACC+j}, v{ACC+j}, v{ACC+4+j}")
    a("s_nop 1")
    for j in range(2): a(f"v_permlane16_swap_b32 v{ACC+j}, v{ACC+2+j}")
    a("s_nop 0")
    for j in range(2): a(f"v_add_f32 v{ACC+j}, v{ACC+j}, v{ACC+2+j}")
    a("s_nop 1")
    for j in range(2): a(f"v_add_f32_dpp v{ACC+j}, v{ACC+j}, v{ACC+j} row_ror:8 row_mask:0xf bank_mask:0xf")
    L = a.label("modfin")
    a(f"""s_lshl_b32 s14, s3, 8
    s_add_u32 s14, s14, {ldsoff}
    v_lshrrev_b32 v4, 4, v0
    v_lshlrev_b32 v3, 5, v3
    v_lshl_add_u32 v3, v4, 3, v3
    v_add_u32 v3, s14, v3
    ds_write_b64 v3, {vr(ACC,2)}
    s_waitcnt lgkmcnt(0)
    s_barrier
    s_cmp_lg_u32 s3, 0
    s_cbranch_scc1 {L}
    v_lshlrev_b32 v2, 2, v0
    v_add_u32 v3, {ldsoff}, v2
    ds_read2st64_b32 v[4:5], v3 offset0:0 offset1:1
    ds_read2st64_b32 v[6:7], v3 offset0:2 offset1:3
    s_lshl_b32 s14, s{sslab}, 8
    s_add_u32 s14, s14, {WS['MOD']}
    v_add_u32 v2, s14, v2
    s_waitcnt lgkmcnt(0)
    v_pk_add_f32 v[4:5], v[4:5], v[6:7]
    s_nop 0
    v_add_f32 v4, v4, v5""")
    rbf16(a, 4, 4)
    a(f"global_store_dword v2, v4, s[12:13]{SC}\n{L}:")

RW = 4608 + 4160 * 2
OF, OE, OO = 512, 4608, 4608 + 4160
KB = 68096; VB = KB + 17 * 1040; XB = VB + 16 * 1040; MRED = XB + 16 * 1040
NSL = int(os.environ.get("NSL", "11"))
WRING = 69632; STL = 65536; CSL = WRING + 11 * 8192; REDL = CSL + 2048
W3L = WRING + 8 * 8192
LDS_BYTES = REDL + 2048

def tag_issue(a, vt):
    a(f"v_mov_b32 v{vt+2}, 0\ns_mov_b64 exec, 1\nglobal_load_dwordx2 {vr(vt,2)}, v{vt+2}, s[72:73]{SC}\ns_mov_b64 exec, -1")
def tag_check(a, vt):
    Ld = a.label("tagok")
    a(f"""v_readfirstlane_b32 s70, v{vt}
    v_readfirstlane_b32 s71, v{vt+1}
    s_cmp_lg_u64 s[70:71], 0
    s_cbranch_scc1 {Ld}""")
    get_tag(a, vt)
    a(f"{Ld}:")

def interleave(a, mfmas, reads, valu, vmem=()):
    n = len(mfmas)
    slots = [[] for _ in range(n)]
    cap = [2] * n
    vmem = list(vmem)
    for i, (pre, x) in enumerate(vmem):
        p = 1 + (i * (n - 1)) // len(vmem)
        if pre: slots[p - 1].append(pre)
        slots[p].insert(0, x); cap[p] = 0
    free = [i for i in range(n) if cap[i]]
    for e, p in zip(reads, free): slots[p].insert(0, e); cap[p] -= 1
    assert len(reads) <= len(free)
    valu = list(valu)
    tot = sum(cap)
    order = [i for i in range(n) for _ in range(cap[i])]
    if len(valu) < len(order):
        first = [i for i in range(n) if cap[i] == 2]
        pool = sorted(first + [i for i in range(n) if cap[i] >= 1])[:]
        step = len(pool) / max(len(valu), 1)
        order = [pool[int(i * step)] for i in range(len(valu))]
    for i, e in enumerate(valu): slots[order[i] if i < len(order) else n - 1].append(e)
    for m, sl in zip(mfmas, slots):
        a(m)
        for e in sl: a(e)

FLAG2 = f"s_mov_b64 exec, 1\nglobal_load_dwordx2 v[236:237], v240, s[12:13]{SC}\ns_mov_b64 exec, -1"
def flag2_setup(a, zero=False):
    a(f"""s_and_b32 s74, s2, 63
    s_lshl_b32 s74, s74, 7
    s_add_u32 s74, s74, {WS['FL'] + 5*256*128}
    v_mov_b32 v240, s74
    v_mov_b32 v236, s70
    v_mov_b32 v237, s71""")
    if zero: a("v_writelane_b32 v236, 0, 0")
def flag2_check(a, first=False):
    Lok, Lsl, Lld = a.label("f2_ok"), a.label("f2_slow"), a.label("f2_ld")
    a("s_mov_b32 s74, 0x100000")
    if first: a(f"s_branch {Lld}")
    a(f"""{Lsl}:
    v_cmp_ne_u64 vcc, s[70:71], v[236:237]
    s_cbranch_vccz {Lok}
    s_sleep 4
    {Lld}:
    {FLAG2}
    s_waitcnt vmcnt(0)
    s_sub_u32 s74, s74, 1
    s_cbranch_scc0 {Lsl}
    {Lok}:""")
WEL = [int(x) for x in os.environ.get("WEL", "0,2,5,11").split(",")]
NWE = WEL[3]; H2 = int(os.environ.get("H2", "32")); ELP = int(os.environ.get("ELP", "3")); HKP = int(os.environ.get("HKP", "0"))
PUBT = int(os.environ.get("PUBT", "1"))
XST = int(os.environ.get("XST", "0"))
AORD = int(os.environ.get("AORD", "0"))
HK = int(os.environ.get("HK", "4")); HKF = int(os.environ.get("HKF", "3"))
def phase_conv(a, Lg1):
    a(f"""s_load_dwordx4 s[4:7], s[0:1], {KA['x']}
    s_load_dwordx4 s[8:11], s[0:1], {KA['v']}
    s_load_dwordx4 s[36:39], s[0:1], {KA['ssm']}
    s_load_dwordx4 s[40:43], s[0:1], {KA['c']}
    s_lshr_b32 s44, s2, 4
    s_and_b32 s45, s2, 15
    v_lshrrev_b32 v4, 3, v0
    v_and_b32 v5, 7, v0
    v_mul_u32_u24 v2, 1280, v4
    v_lshl_add_u32 v2, v5, 4, v2
    s_lshl_b32 s14, s45, 4
    s_add_u32 s14, s14, s3
    s_mul_i32 s14, s14, {8*1280}
    s_lshl_b32 s15, s44, 7
    s_add_u32 s14, s14, s15
    v_add_u32 v2, s14, v2
    v_add_u32 v3, {(-8*1280) & 0xffffffff}, v2
    s_lshl_b32 s14, s3, 3
    v_add_u32 v6, s14, v4
    s_lshl_b32 s14, s44, 9
    v_lshl_add_u32 v7, v6, 4, s14
    s_mul_i32 s28, s3, 1040
    s_mov_b32 s29, {32*1280}
    s_mov_b32 s30, {64*1280}
    s_mov_b32 s31, {96*1280}
    s_waitcnt lgkmcnt(0)""")
    srd(a, 16, 6, S * D * 2); srd(a, 20, 8, S * D * 2); srd(a, 24, 4, S * D * 2)
    Lh = a.label("nohalo")
    a(f"""s_cmp_lg_u32 s3, 0
    s_cbranch_scc1 {Lh}
    s_mov_b32 m0, {KB}
    s_nop 0
    buffer_load_dwordx4 v3, s[16:19], 0 offen{NT} lds
    {Lh}:""")
    SH = 8
    so = ["0", "s29", "s30", "s31"]
    def tile_dma(base, srdb):
        for i in range(4):
            a(f"s_add_u32 m0, s28, {base + 4*1040*i}\ns_nop 0\nbuffer_load_dwordx4 v2, s[{srdb}:{srdb+3}], {so[i]} offen{NT} lds")
    tile_dma(KB + 1040, 16); tile_dma(VB, 20)
    a(f"global_load_dwordx4 {vr(SH,4)}, v7, s[10:11]")
    code_prefetch(a)
    if FT == 1: flag_touch(a)
    if AORD == 0: tile_dma(XB, 24)
    else: a("v_mov_b32 v243, v2")
    a(f"""    v_mul_u32_u24 v242, 1040, v5
    v_lshl_add_u32 v242, v6, 2, v242
    v_add_u32 v242, {KB}, v242
    v_xor_b32 v3, 7, v5
    v_mul_u32_u24 v12, 1040, v3
    v_lshl_add_u32 v12, v6, 2, v12
    v_add_u32 v12, {KB}, v12
    v_lshlrev_b32 v13, 13, v6
    v_lshl_add_u32 v14, v5, 4, v13
    v_mov_b32 v13, v14
    s_lshl_b32 s14, s44, 18
    s_lshl_b32 s15, s45, 8
    s_sub_u32 s32, s14, s15
    s_add_u32 s32, s32, {WS['KVT'] + 4096 + 240*16}
    s_add_u32 s34, s14, s15
    s_add_u32 s34, s34, {WS['XTT'] + 4096}""")
    add64(a, 32, 12, "s32"); add64(a, 34, 12, "s34")
    a(f"""s_lshl_b32 s8, s2, 2
    s_add_u32 s8, s8, s3
    s_mul_i32 s9, s3, {RW}
    s_add_u32 s9, s9, 16384
    s_lshl_b32 s10, s8, 12
    v_lshlrev_b32 v2, 4, v0
    v_and_b32 v4, 15, v0
    v_lshrrev_b32 v5, 4, v0
    v_mov_b32 v216, 0
    v_mov_b32 v217, 0
    v_lshl_add_u32 v6, v0, 3, s9
    ds_write_b64 v6, v[216:217]
    v_lshl_add_u32 v6, v4, 2, s9
    ds_write_b32 v6, v216 offset:{OE+4096}
    ds_write_b32 v6, v216 offset:{OO+4096}""")
    add64(a, 36, 36, "s10")
    a(f"s_add_u32 s11, s9, {OF}")
    if AORD < 2:
        for i in range(4): dma(a, 2, 36, "s11", f" offset:{1024*i}{NT}")
    a.stamp(1)
    if FT == 2: flag_touch(a)
    a(f"s_waitcnt vmcnt({9 - 4*AORD + (1 if FT else 0)}) lgkmcnt(0)\ns_barrier")
    a.stamp(2)
    SP, KR, VR_, KP, VP, KV, OUT = 16, 24, 46, 62, 84, 100, 116
    def rdk(h, lo, hi):
        for i in range(lo, hi):
            off = 8320 * h + (640 + 128 * i if i < 3 else 1040 + 128 * (i - 3))
            a(f"ds_read_b32 v{KR+11*h+i}, v12 offset:{off}")
    def rdv(h, lo, hi, base=VB, dst=VR_):
        for i in range(lo, hi): a(f"ds_read_b32 v{dst+8*h+i}, v12 offset:{base-KB + 8320*h + 128*i}")
    rdk(0, 0, 11); rdv(0, 0, 4)
    tag_issue(a, 212)
    a(f"""s_lshl_b32 s17, s8, 1
    v_mov_b32 v218, s17
    global_load_ushort v218, v218, s[38:39]
    v_lshlrev_b32 v{SP+0}, 16, v{SH+0}
    v_lshlrev_b32 v{SP+1}, 16, v{SH+2}
    v_and_b32 v{SP+2}, s69, v{SH+0}
    v_and_b32 v{SP+3}, s69, v{SH+2}
    v_lshlrev_b32 v{SP+4}, 16, v{SH+1}
    v_lshlrev_b32 v{SP+5}, 16, v{SH+3}
    v_and_b32 v{SP+6}, s69, v{SH+1}
    v_and_b32 v{SP+7}, s69, v{SH+3}""")
    def ks(h):
        for i in range(11): a(f"v_lshlrev_b32 v{KP+2*i}, 16, v{KR+11*h+i}\nv_and_b32 v{KP+2*i+1}, s69, v{KR+11*h+i}")
        for r in range(8): a(f"v_pk_mul_f32 {vr(KV+2*r,2)}, {vr(KP+2*r,2)}, {vr(SP+6,2)}")
        for j in (2, 1, 0):
            for r in range(8): a(f"v_pk_fma_f32 {vr(KV+2*r,2)}, {vr(KP+2*(r+3-j),2)}, {vr(SP+2*j,2)}, {vr(KV+2*r,2)}")
    def kvs(h):
        for i in range(8): a(f"v_lshlrev_b32 v{VP+2*i}, 16, v{VR_+8*h+i}\nv_and_b32 v{VP+2*i+1}, s69, v{VR_+8*h+i}")
        for r in range(8): a(f"v_pk_mul_f32 {vr(KV+2*r,2)}, {vr(KV+2*r,2)}, {vr(VP+2*r,2)}")
        for ch in range(2):
            o = OUT + 8 * h + 4 * ch
            for j in range(4): a(f"v_cvt_pk_bf16_f32 v{o+j}, v{KV+2*(7-2*j)+ch}, v{KV+2*(6-2*j)+ch}")
            a(f"global_store_dwordx4 v13, {vr(o,4)}, s[32:33] offset:{-4096*(1-ch) + 128*(1-h)}{SC}")
    a("s_waitcnt lgkmcnt(4)"); rdv(0, 4, 8); rdk(1, 0, 7)
    ks(0)
    a("s_waitcnt lgkmcnt(7)"); rdk(1, 7, 11); rdv(1, 0, 4)
    kvs(0)
    a("s_waitcnt lgkmcnt(4)"); rdv(1, 4, 8)
    ks(1)
    a("s_waitcnt lgkmcnt(0)")
    kvs(1)
    a.stamp(3)
    if AORD == 2:
        for i in range(4): dma(a, 2, 36, "s11", f" offset:{1024*i}{NT}")
    if AORD:
        for i in range(4):
            a(f"s_add_u32 m0, s28, {XB + 4*1040*i}\ns_nop 0\nbuffer_load_dwordx4 v243, s[24:27], {so[i]} offen{NT} lds")
    RA, RB = 220, 224
    a(f"""v_and_b32 v6, 1, v4
    v_xor_b32 v6, 1, v6
    v_mul_u32_u24 v6, {4160-2}, v6
    v_lshl_add_u32 v6, v5, 4, v6
    v_lshlrev_b32 v7, 1, v4
    v_sub_u32 v6, v6, v7
    v_add_u32 v6, s9, v6""")
    for q2 in range(4): a(f"v_add_u32 v{RA+q2}, {OE + 2*2031 - 512*(2*q2+1) - 64*7}, v6")
    a(f"""v_lshlrev_b32 v6, 5, v4
    v_lshl_add_u32 v15, v5, 3, v6
    v_lshl_add_u32 v6, v5, 4, v6
    v_add_u32 v6, s9, v6
    v_add_u32 v{RB}, {OF - 32 - 64*7}, v6
    v_add_u32 v3, s9, v2""")
    a(f"s_waitcnt vmcnt({4 + 4*AORD})")
    tag_check(a, 212)
    if "a" in REP: publish_wave(a, 0, 232); a("s_barrier")
    elif "0" in REP: publish_rep(a, 0, 232, vm=4*AORD)
    else: publish(a, 0, 212, vm=4*AORD)
    a.stamp(4)
    def xtrans():
        for h in range(2):
            for i in range(8): a(f"ds_read_b32 v{24+8*h+i}, v242 offset:{XB-KB + 8320*h + 128*i}")
            if h == 0: a("s_waitcnt lgkmcnt(6)")
        a("s_mov_b32 s14, 0x05040100\ns_mov_b32 s15, 0x07060302")
        for h in range(2):
            a(f"s_waitcnt lgkmcnt({8 if h == 0 else 0})")
            for ch in range(2):
                o = 40 + 8 * h + 4 * ch
                for j in range(4): a(f"v_perm_b32 v{o+j}, v{24+8*h+2*j+1}, v{24+8*h+2*j}, s{14+ch}")
                a(f"global_store_dwordx4 v14, {vr(o,4)}, s[34:35] offset:{-4096*(1-ch) + 128*h}{SC}")
    if AORD == 0: xtrans()
    a(f"s_add_u32 s10, s10, {WS['KVT']}\ns_add_u32 s11, s9, {OE}")
    add64(a, 16, 12, "s10")
    KO = 176
    ACC, KD, HG, SBv, XF, XR, KVR = 16, 48, 80, 112, 144, 176, 192
    FA, FB = 0, 64
    def bread(t, q): return f"ds_read_b128 {ar(FB+32*(t&1)+4*q,4)}, v{RB} offset:{512*q + 64*(7-t)}"
    def areads(t, q):
        o = 16 * (7 - t) + (0 if q & 1 else 128)
        return [f"ds_read2_b32 {ar(FA+32*(t&1)+4*q+2*h,2)}, v{RA+q//2} offset0:{o+2*h} offset1:{o+2*h+1}" for h in range(2)]
    def reads(t):
        r = []
        for q in range(8): r += [bread(t, q)] + areads(t, q)
        return r
    a(f"""v_lshlrev_b32 v218, 16, v218
    v_sub_u32 v11, s9, v15
    v_add_u32 v11, {OE + 4088 - 512*7}, v11
    v_min_u32 v208, 4, v0
    v_mul_u32_u24 v208, 2560, v208
    v_lshrrev_b32 v209, 3, v0
    v_xor_b32 v209, v209, v0
    v_lshlrev_b32 v209, 4, v209
    v_and_b32 v12, 7, v4
    v_xor_b32 v12, v12, v5
    v_lshlrev_b32 v12, 4, v12
    v_lshl_add_u32 v12, v4, 7, v12
    v_xor_b32 v243, 64, v12
    v_lshlrev_b32 v10, 5, v4
    v_lshrrev_b32 v13, 1, v5
    v_lshl_add_u32 v10, v13, 4, v10
    v_and_b32 v13, 1, v5
    v_lshl_add_u32 v10, v13, 9, v10
    s_and_b32 s14, s2, 0xf0
    v_add_u32 v210, s14, v0
    v_add_u32 v211, {210-16}, v0
    v_cmp_gt_u32 s[18:19], 16, v0
    v_mov_b32 v212, s70
    v_mov_b32 v213, s71
    v_cndmask_b32 v210, v211, v210, s[18:19]
    v_mul_u32_u24 v211, 10, v0
    v_cmp_gt_u32 s[18:19], 48, v0
    s_sub_u32 s14, s44, {480-160}
    v_add_u32 v211, s14, v211
    v_cndmask_b32 v210, v211, v210, s[18:19]
    v_lshlrev_b32 v210, 7, v210
    v_add_u32 v210, {WS['FL'] + 256*128}, v210
    s_lshl_b32 s14, s3, 4
    s_lshl_b64 s[28:29], 0xffff, s14
    s_and_b32 s29, s29, 0x1fffff
    """)
    flag2_setup(a)
    w_setup(a)
    a.stamp(5)
    a("s_and_b32 s14, s2, 0xf0")
    if "a" in REP: a("s_bfe_u32 s15, s2, 0x20002"); poll(a, 0, "s14", 16, 232, rep=0, sub="s15")
    elif "0" in POLL1:
        L1 = a.label("p0")
        a(f"s_cmp_lg_u32 s3, 3\ns_cbranch_scc1 {L1}")
        poll(a, 0, "s14", 16, 232, rep=0 if "0" in REP else None)
        a(f"{L1}:\ns_barrier")
    else: poll(a, 0, "s14", 16, 232, rep=0 if "0" in REP else None)
    a.stamp(6)
    for i in range(4): a(f"global_load_dwordx4 {vr(KO+6*i,4)}, v2, s[16:17] offset:{1024*i}{SC}")
    ny = 0
    if AORD == 0: publish(a, 1, 232, vm=4)
    else:
        a("s_barrier"); xtrans(); ny = 4
    w_early(a, 0, WEL[0]); ny += 2 * WEL[0]
    for q in range(8): a(bread(0, q))
    for i in range(4):
        a(f"s_waitcnt vmcnt({max(2-i,0)+ny})")
        a(f"ds_write_b128 v3, {vr(KO+6*i,4)} offset:{OE+1024*i}")
        if i < 3: a(f"v_readlane_b32 s14, v{KO+6*i+6}, 0")
        a(f"v_mov_b32_dpp v{KO+6*i+4}, v{KO+6*i} wave_shl:1 row_mask:0xf bank_mask:0xf bound_ctrl:0")
        if i < 3: a(f"s_nop 0\nv_writelane_b32 v{KO+6*i+4}, s14, 63")
        for j in range(4): a(f"v_alignbit_b32 v{200+4*(i&1)+j}, v{KO+6*i+j+1}, v{KO+6*i+j}, 16")
        a(f"ds_write_b128 v3, {vr(200+4*(i&1),4)} offset:{OO+1024*i}")
        if i == 1: a("s_waitcnt lgkmcnt(2)")
    a("s_waitcnt lgkmcnt(0)")
    for q in range(8):
        for r in areads(0, q): a(r)
    a.stamp(7)
    P, Q, C1 = 226, 228, 230
    unk = []
    for n in range(8):
        unk += [f"v_and_b32 v{KD+4*n}, s69, v{KVR+2*n+1}", f"v_lshlrev_b32 v{KD+4*n+1}, 16, v{KVR+2*n+1}",
                f"v_and_b32 v{KD+4*n+2}, s69, v{KVR+2*n}", f"v_lshlrev_b32 v{KD+4*n+3}, 16, v{KVR+2*n}"]
    mulk = [f"v_mul_f32 v{KD+i}, v218, v{KD+i}" for i in range(32)]
    unx = []
    for n in range(4): unx += [f"v_permlane16_swap_b32 v{XR+4*n}, v{XR+4*n+2}", f"v_permlane16_swap_b32 v{XR+4*n+1}, v{XR+4*n+3}"]
    for n in range(16): unx += [f"v_lshlrev_b32 v{XF+2*n}, 16, v{XR+n}", f"v_and_b32 v{XF+2*n+1}, s69, v{XR+n}"]
    flagld = f"s_mov_b64 exec, s[28:29]\nglobal_load_dwordx2 v[212:213], v210, s[12:13]{SC}\ns_mov_b64 exec, -1"
    eld = [(f"s_lshl_b32 s17, s8, 2\ns_add_u32 s17, s17, {WS['MOD']}\nv_add_u32 v212, s17, v208", f"s_mov_b64 exec, 0x1f\nglobal_load_dword v219, v212, s[12:13]{SC}\ns_mov_b64 exec, -1")]
    pre = f"s_lshl_b32 s16, s3, 12\ns_add_u32 s17, s16, {WS['ST']}\ns_add_u32 s14, s12, s17\ns_addc_u32 s15, s13, 0\ns_mov_b32 m0, s16"
    eld += [(pre if i == 0 else "", f"global_load_lds_dwordx4 v209, s[14:15] offset:{1024*i}{SC}") for i in range(4)]
    pre = f"s_lshl_b32 s17, s8, 12\ns_add_u32 s17, s17, {WS['XTT']}\ns_add_u32 s14, s12, s17\ns_addc_u32 s15, s13, 0"
    eld += [(pre if n == 0 else "", f"global_load_dwordx4 {vr(XR+4*n,4)}, v10, s[14:15] offset:{1024*n}{SC}") for n in range(4)]
    def wpairs(k):
        l = wd_(k); return [(l[0][1], l[1][1]), (l[2][1], l[3][1])]
    strd = []
    for n in range(8): strd += [f"ds_read_b128 {vr(HG+4*n,4)}, v12 offset:{2048*n}", f"ds_read_b128 {vr(SBv+4*n,4)}, v243 offset:{2048*n}"]
    scal = ["v_add_f32 v214, 1.0, v219", "v_readlane_b32 s20, v219, 0", "v_cvt_pk_bf16_f32 v214, v214, v214", "v_readlane_b32 s22, v219, 2",
            "v_lshlrev_b32 v214, 16, v214\ns_nop 0", "v_readlane_b32 s21, v214, 1", "v_readlane_b32 s23, v214, 4", f"v_mov_b32 v{Q}, s22\ns_nop 0",
            f"v_mul_f32 v{P}, s21, v{Q}", f"v_mul_f32 v{Q}, s20, v{Q}", f"v_mov_b32 v{C1}, s23"]
    hg1 = [f"v_fma_f32 v{HG+i}, v{XF+i}, v{HG+i}, v{SBv+i}" for i in range(32)]
    hg2 = [f"v_fma_f32 v{HG+i}, v{HG+i}, v{P}, v{Q}" for i in range(32)]
    oadr = [f"s_lshl_b32 s17, s8, 12\ns_add_u32 s17, s17, {WS['X1T']}\ns_add_u32 s14, s12, s17\ns_addc_u32 s15, s13, 0\ns_add_u32 s16, s14, {WS['X1S']-WS['X1T']}\ns_addc_u32 s17, s15, 0"]
    post = []
    assert HK == 4
    WSCH = [int(x) for x in os.environ.get("WSCH", "2,3,3,3,0,0,0,0").split(",")]
    assert sum(WSCH) == NWE and WEL[0] == 0
    KRT = int(os.environ.get("KRT", "0"))
    cvm = VM(); wk = 0
    for t in range(8):
        a("s_waitcnt lgkmcnt(0)")
        if "cstamp" in EXP and 2 <= t <= 7: a.stamp(t - 1)
        rd = reads(t + 1) if t < 7 else []
        va = []; vm_ = []; tags = []
        if t == KRT: rd = rd + [f"ds_read_b64 {vr(KVR+2*n,2)}, v11 offset:{512*(7-n)}" for n in range(8)]
        if t == KRT + 1: va = unk[:24]
        if t == KRT + 2: va = unk[24:] + mulk[:16]
        if t == (KRT + 3 if KRT + 3 != 4 else 5): va = mulk[16:]
        if t == HKF: vm_ = [("", flagld)]; tags = ["F"]
        if t == HK:
            Lok, Lsl = a.label("hk_ok"), a.label("hk_slow")
            a(cvm.wait(["F"]))
            a(f"""s_mov_b32 s74, 0x100000
            {Lsl}:
            v_cmp_ne_u64 vcc, s[70:71], v[212:213]
            s_cbranch_vccz {Lok}
            {flagld}
            s_waitcnt vmcnt(0)
            s_sub_u32 s74, s74, 1
            s_cbranch_scc0 {Lsl}
            {Lok}:
            s_barrier""")
            vm_ = [eld[0]] + eld[5:] + eld[1:5]; tags = ["X"] * 5 + ["S"] * 4
            if not WSCH[t]: vm_ += [("", "")] * ELP
        if t == 6:
            a(cvm.wait(["X"]))
            va = scal + unx[:36]
        if t == 7:
            a(cvm.wait(["S"]) + "\ns_barrier")
            rd = strd
            va = unx[36:] + oadr + [""] * 10
            for n in range(H2 // 4): va += [f"s_waitcnt lgkmcnt({max(14 - 2*n - 4, 0)})\n" + hg1[4*n]] + hg1[4*n+1:4*n+4]
            post = [f"v_pk_fma_f32 {vr(HG+2*i,2)}, {vr(XF+2*i,2)}, {vr(HG+2*i,2)}, {vr(SBv+2*i,2)}" for i in range(H2 // 2, 16)]
            post += [f"v_pk_fma_f32 {vr(HG+2*i,2)}, {vr(HG+2*i,2)}, {vr(P,2)}, {vr(Q,2)} op_sel_hi:[1,0,0]" for i in range(16)]
            vm_ = [("", FLAG2)]
        for _ in range(WSCH[t]): vm_ += wpairs(wk); tags += ["W", "W"]; wk += 1
        for x in tags: cvm.add(x)
        mf = []
        for q in range(8):
            for n in range(q, 8):
                c = "0" if (t == 0 and q == 0) else vr(ACC + 4 * n, 4)
                mf.append(f"v_mfma_f32_16x16x32_bf16 {vr(ACC+4*n,4)}, {ar(FA+32*(t&1)+4*q,4)}, {ar(FB+32*(t&1)+4*(n-q),4)}, {c}")
        interleave(a, mf, rd, va, vm_)
    a.stamp(8)
    a("s_waitcnt lgkmcnt(0)")
    for x in post: a(x)
    a("v_add_u32 v11, s9, v15")
    a("s_nop 3")
    for n in range(0, 8, 2):
        for m in (n, n + 1):
            for h in range(2): a(f"v_pk_add_f32 {vr(ACC+4*m+2*h,2)}, {vr(ACC+4*m+2*h,2)}, {vr(KD+4*m+2*h,2)}")
        for m in (n, n + 1):
            for h in range(2): a(f"v_pk_fma_f32 {vr(ACC+4*m+2*h,2)}, {vr(HG+4*m+2*h,2)}, {vr(ACC+4*m+2*h,2)}, {vr(XF+4*m+2*h,2)}")
        for m in (n, n + 1):
            for h in range(2): a(f"v_pk_mul_f32 {vr(KD+4*m+2*h,2)}, {vr(ACC+4*m+2*h,2)}, {vr(C1,2)} op_sel_hi:[1,0]")
        o = SBv + 2 * n
        for m in (n, n + 1):
            for h in range(2): a(f"v_cvt_pk_bf16_f32 v{o+2*(m-n)+h}, v{KD+4*m+2*h}, v{KD+4*m+2*h+1}")
        if XST:
            for m in (n, n + 1): a(f"ds_write_b64 v11, {vr(o+2*(m-n),2)} offset:{512*m}")
            if n: a(f"s_waitcnt lgkmcnt(2)\nglobal_store_dwordx4 v2, {vr(XF+2*(n-2),4)}, s[16:17] offset:{512*(n-2)}{SC}")
            a(f"ds_read_b128 {vr(XF+2*n,4)}, v3 offset:{512*n}")
        else:
            a(f"""s_nop 1
            v_permlane16_swap_b32 v{o}, v{o+2}
            v_permlane16_swap_b32 v{o+1}, v{o+3}
            global_store_dwordx4 v10, {vr(o,4)}, s[16:17] offset:{512*n}{SC}""")
    for i in range(16): a(f"v_cvt_pk_bf16_f32 v{SBv+16+i}, v{ACC+2*i}, v{ACC+2*i+1}")
    if XST:
        a(f"s_waitcnt lgkmcnt(0)\nglobal_store_dwordx4 v2, {vr(XF+12,4)}, s[16:17] offset:{512*6}{SC}")
        for m in range(8): a(f"ds_write_b64 v11, {vr(SBv+16+2*m,2)} offset:{4096+512*m}")
        for n in range(4): a(f"ds_read_b128 {vr(XF+16+4*n,4)}, v3 offset:{4096+1024*n}")
        for n in range(4): a(f"s_waitcnt lgkmcnt({3-n})\nglobal_store_dwordx4 v2, {vr(XF+16+4*n,4)}, s[14:15] offset:{1024*n}{SC}")
    else:
        for n in range(0, 8, 2):
            o = SBv + 16 + 2 * n
            a(f"""v_permlane16_swap_b32 v{o}, v{o+2}
            v_permlane16_swap_b32 v{o+1}, v{o+3}
            global_store_dwordx4 v10, {vr(o,4)}, s[14:15] offset:{512*n}{SC}""")
    a.stamp(9)
    a(f"s_branch {Lg1}")

def flag_touch(a):
    nl = (WS['KVT'] - WS['FL']) // 128
    assert nl == 640 * 12
    a(f"""s_lshl_b32 s17, s2, 2
    s_add_u32 s17, s17, s3
    s_mul_i32 s17, s17, {12*128}
    s_add_u32 s17, s17, {WS['FL']}
    v_lshl_add_u32 v249, v0, 7, s17
    s_mov_b64 exec, 0xfff
    global_load_dword v251, v249, s[12:13]{os.environ.get("FTP", "")}
    s_mov_b64 exec, -1""")

def code_prefetch(a):
    a(f"""s_getpc_b64 s[14:15]
    s_sub_u32 s14, s14, . - {KNAME}
    s_subb_u32 s15, s15, 0
    s_lshr_b32 s17, s2, 3
    s_lshl_b32 s17, s17, 2
    s_add_u32 s17, s17, s3
    s_min_u32 s17, s17, (code_end - {KNAME}) / 1024 - 1
    s_lshl_b32 s17, s17, 10
    v_lshl_add_u32 v250, v0, 4, s17
    global_load_dwordx4 v[252:255], v250, s[14:15]""")

def phase_aux(a, Lg1):
    Lst, L2, Lnd, Lnw, Lnd2, Lnw3 = (a.label(x) for x in ("aux_st", "aux2", "aux_nod", "aux_now", "aux_nod2", "aux_now3"))
    RED, MRD = REDL, CSL
    LwE, Lwd, Lmod, Lgbd, Lnp1, Ltg = (a.label(x) for x in ("aux_we", "aux_wd", "aux_mod", "aux_gbd", "aux_np1", "aux_tg"))
    a(f"""s_load_dwordx2 s[4:5], s[0:1], {KA['x']}
    s_load_dwordx4 s[36:39], s[0:1], {KA['wg']}
    s_load_dwordx2 s[6:7], s[0:1], {KA['wd']}
    s_load_dwordx4 s[40:43], s[0:1], {KA['c']}
    s_sub_u32 s8, s2, 160
    s_mov_b32 s44, s8
    v_lshlrev_b32 v9, 4, v0
    s_waitcnt lgkmcnt(0)
    s_cmp_ge_u32 s8, 82
    s_cbranch_scc1 {Lwd}
    s_cmp_ge_u32 s8, 50
    s_cbranch_scc1 {Lst}
    {Lmod}:""")
    mod_slab(a, 44, 40, 42, MRD)
    a(f"""s_cmp_ge_u32 s8, 82
    s_cbranch_scc1 {Lgbd}
    s_branch {L2}
    {Lst}:
    s_sub_u32 s45, s8, 50
    s_lshl_b32 s45, s45, 6""")
    stats_issue(a, 100, 4, 45)
    tag_issue(a, 212)
    stats_compute(a, 100, 45)
    a(f"{L2}:")
    a.stamp(3)
    a("s_waitcnt vmcnt(1)")
    tag_check(a, 212)
    a(f"""s_cmp_ge_u32 s8, 56
    s_cbranch_scc1 {Lwd}""")
    TA, RAW, MV, PK, RES = 10, 128, 16, 96, 208
    a(f"""s_and_b32 s10, s8, 3
    s_mul_i32 s10, s10, 7
    s_lshr_b32 s11, s8, 3
    s_add_u32 s10, s10, s11
    s_min_u32 s10, s10, 26
    s_bfe_u32 s9, s8, 0x10002
    s_cmp_eq_u32 s9, 1
    s_cselect_b32 s36, s38, s36
    s_cselect_b32 s37, s39, s37
    v_lshrrev_b32 v2, 3, v0
    v_bfe_u32 v3, v0, 4, 2
    v_lshlrev_b32 v3, 1, v3
    v_and_b32 v4, 7, v0
    v_xor_b32 v3, v3, v4
    v_mul_u32_u24 v2, 3456, v2
    v_lshl_add_u32 v2, v3, 4, v2
    s_lshl_b32 s11, s10, 7
    s_mul_i32 s16, s3, {32*3456}
    s_add_u32 s11, s11, s16
    v_add_u32 v2, s11, v2
    s_mul_i32 s16, s3, {5*4096}
    s_cmp_eq_u32 s3, 3
    s_cselect_b32 s16, {W3L}, s16""")
    srd(a, 20, 36, 640 * 3456)
    for io in range(5):
        for u in range(4):
            if io * 4 + u == 6:
                publish(a, 1, 16, vm=6)
                a.stamp(4)
            a(f"s_add_u32 m0, s16, {4096*io + 1024*u}\ns_mov_b32 s17, {(128*io + 8*u)*3456}\nbuffer_load_dwordx4 v2, s[20:23], s17 offen{WPOL} lds")
    a(f"""v_lshrrev_b32 v2, 2, v0
    v_bfe_u32 v3, v0, 3, 2
    v_and_b32 v4, 3, v0
    v_lshlrev_b32 v2, 7, v2
    v_lshl_add_u32 v2, v4, 3, v2
    v_add_u32 v2, s16, v2""")
    for T_ in range(4): a(f"v_xor_b32 v4, {T_}, v3\nv_lshl_add_u32 v{TA+T_}, v4, 5, v2")
    a(f"""v_lshrrev_b32 v14, 4, v0
    v_lshlrev_b32 v14, 4, v14
    s_lshl_b32 s16, s3, 7
    s_add_u32 s16, s16, 61440
    v_add_u32 v14, s16, v14
    s_mul_i32 s16, s3, 1280
    s_add_u32 s17, s16, {WS['MOD'] + 3*2560}
    v_add_u32 v15, s17, v9
    s_add_u32 s18, s16, 61440""")
    flag2_setup(a, zero=True)
    w_setup(a)
    poll(a, 1, 190, 20, 16)
    a.stamp(6)
    a(f"""s_mov_b32 m0, s18
    s_nop 0
    global_load_lds_dwordx4 v15, s[12:13]{SC}
    s_mov_b64 exec, 0xffff
    global_load_lds_dwordx4 v15, s[12:13] offset:1024{SC}
    s_mov_b64 exec, -1""")
    w_early(a, 0, 4)
    for io in range(5):
        for T_ in range(4):
            for hf in range(2): a(f"ds_read_b64_tr_b16 {vr(RAW+16*io+4*T_+2*hf,2)}, v{TA+T_} offset:{4096*io+2048*hf}")
        a("s_waitcnt lgkmcnt(4)")
    a("s_waitcnt vmcnt(8) lgkmcnt(0)\ns_barrier")
    for io in range(5):
        for hf in range(2):
            a(f"ds_read_b128 {vr(MV+16*io+4*hf,4)}, v14 offset:{512*io+64*hf}")
            a(f"ds_read_b128 {vr(MV+16*io+8+4*hf,4)}, v14 offset:{2560+512*io+64*hf}")
        if io == 2: a("s_waitcnt lgkmcnt(4)")
    w_early(a, 4, NWE)
    a("s_waitcnt lgkmcnt(0)")
    for io in range(5):
        b = MV + 16 * io; p = PK + 8 * (io & 1)
        for i in range(4): a(f"v_cvt_pk_bf16_f32 v{p+i}, v{b+2*i}, v{b+2*i+1}")
        for i in range(8): a(f"v_add_f32 v{b+8+i}, 1.0, v{b+8+i}")
        for i in range(4): a(f"v_cvt_pk_bf16_f32 v{p+4+i}, v{b+8+2*i}, v{b+8+2*i+1}")
        for T_ in range(4): a(f"v_mfma_f32_16x16x32_bf16 {vr(112+4*T_,4)}, {vr(RAW+16*io+4*T_,4)}, {vr(p,4)}, {vr(112+4*T_,4) if io else '0'}")
        for T_ in range(4): a(f"v_mfma_f32_16x16x32_bf16 {vr(RES+4*T_,4)}, {vr(RAW+16*io+4*T_,4)}, {vr(p+4,4)}, {vr(RES+4*T_,4) if io else '0'}")
    a(f"""s_lshl_b32 s16, s3, 9
    s_add_u32 s16, s16, {RED}
    v_add_u32 v2, s16, v0
    s_mov_b32 exec_lo, 0x10001
    s_mov_b32 exec_hi, 0x10001
    s_nop 2""")
    for T_ in range(4): a(f"ds_write_b128 v2, {vr(112+4*T_,4)} offset:{256+64*T_}")
    for T_ in range(4): a(f"ds_write_b128 v2, {vr(RES+4*T_,4)} offset:{64*T_}")
    a(f"""s_mov_b64 exec, -1
    s_waitcnt lgkmcnt(0)
    s_barrier
    s_cmp_ge_u32 s3, 2
    s_cbranch_scc1 {LwE}
    s_lshl_b32 s16, s3, 8
    s_add_u32 s16, s16, {RED}
    v_lshlrev_b32 v3, 2, v0
    v_add_u32 v2, s16, v3
    ds_read2st64_b32 v[4:5], v2 offset0:0 offset1:2
    ds_read2st64_b32 v[16:17], v2 offset0:4 offset1:6
    s_lshl_b32 s16, s9, 1
    s_add_u32 s16, s16, s3
    s_mul_i32 s16, s16, {1728*4}
    s_lshl_b32 s17, s10, 8
    s_add_u32 s16, s16, s17
    s_add_u32 s16, s16, {WS['CSB']}""")
    add64(a, 14, 12, "s16")
    a(f"""s_waitcnt lgkmcnt(0)
    v_add_f32 v4, v4, v5
    v_add_f32 v16, v16, v17
    v_add_f32 v4, v4, v16
    global_store_dword v3, v4, s[14:15]{SC}
    s_waitcnt vmcnt(0)
    {LwE}:""")
    a.stamp(9)
    a(f"s_branch {Lg1}")
    a(f"""{Lwd}:
    s_lshl_b32 s46, s8, 2
    s_add_u32 s46, s46, s3
    s_sub_u32 s17, s46, {4*82}
    s_sub_u32 s46, s46, {4*56-165}
    s_cmp_eq_u32 s17, 55
    s_cselect_b32 s17, 269, s17
    s_cmp_ge_u32 s8, 82
    s_cselect_b32 s46, s17, s46
    v_lshrrev_b32 v2, 4, v0
    v_and_b32 v3, 15, v0
    v_lshlrev_b32 v4, 1, v2
    v_xor_b32 v4, v4, v3
    v_mul_u32_u24 v2, 1280, v2
    v_lshl_add_u32 v5, v4, 4, v2
    v_xor_b32 v4, 8, v4
    v_lshl_add_u32 v6, v4, 4, v2
    v_add_u32 v6, {4*1280}, v6
    s_mul_i32 s16, s3, {3*8192}
    s_mul_i32 s17, s46, 52429
    s_lshr_b32 s17, s17, 18
    s_mul_i32 s11, s17, 5
    s_sub_u32 s11, s46, s11
    s_mul_i32 s17, s17, {32*1280}
    s_lshl_b32 s11, s11, 8
    s_add_u32 s17, s17, s11
    v_add_u32 v5, s17, v5
    v_add_u32 v6, s17, v6""")
    srd(a, 20, 6, 1728 * 1280)
    add64(a, 14, 12, WS['WD']); srd(a, 24, 14, 54 * 40 * 1024)
    for un in range(3):
        for u in range(8):
            if un * 8 + u == 6:
                a(f"s_cmp_ge_u32 s8, 82\ns_cbranch_scc1 {Lnp1}")
                publish(a, 1, 16, vm=6)
                a.stamp(4)
                a(f"{Lnp1}:")
            a(f"s_add_u32 m0, s16, {8192*un + 1024*u}\ns_mov_b32 s17, {(11*32*un + 8*(u>>1))*1280}\nbuffer_load_dwordx4 v{5+(u&1)}, s[20:23], s17 offen{NT} lds")
        if un == 0: a("s_cmp_ge_u32 s8, 82\ns_cselect_b32 s22, s22, 0")
    tag_issue(a, 212)
    xtile_tr_addrs(a, 48, 16)
    a("s_lshl_b32 s17, s46, 13\nv_add_u32 v7, s17, v9")
    for un in range(3):
        a("s_waitcnt vmcnt(17)")
        for q in range(3):
            if q < 2:
                for dt in range(4):
                    for hf in range(2): a(f"ds_read_b64_tr_b16 {vr(100+32*un+16*q+4*dt+2*hf,2)}, v{48+4*q+dt} offset:{8192*un+4096*hf}")
            if q:
                a(f"s_waitcnt lgkmcnt({8 if q < 2 else 0})\ns_mov_b32 s17, {55*8192*un + 4096*(q-1)}")
                for dt in range(4): a(f"buffer_store_dwordx4 {vr(100+32*un+16*(q-1)+4*dt,4)}, v7, s[24:27], s17 offen offset:{1024*dt}{SC}")
        if un == 0: a(f"s_cmp_lt_u32 s8, 82\ns_cbranch_scc1 {Ltg}")
    a(f"{Ltg}:\ns_waitcnt vmcnt(8)")
    tag_check(a, 212)
    publish(a, 0, 16)
    a.stamp(6)
    a(f"""s_cmp_lt_u32 s8, 82
    s_cbranch_scc1 {Lnw3}
    s_sub_u32 s44, s8, 32
    s_cmp_lt_u32 s8, 92
    s_cbranch_scc1 {Lmod}
    s_cmp_lg_u32 s8, 95
    s_cbranch_scc1 {Lnw3}
    s_cmp_lg_u32 s3, 0
    s_cbranch_scc1 {Lnw3}""")
    poll(a, 0, 216, 40, 20)
    a(f"v_mov_b32 v16, s70\nv_mov_b32 v17, s71\nv_mov_b32 v18, s70\nv_mov_b32 v19, s71")
    add64(a, 14, 12, WS['FL'] + 5 * 256 * 128 + 4096)
    for i in range(8): a(f"global_store_dwordx4 v9, v[16:19], s[14:15] offset:{1024*i-4096}{SC}")
    a(f"s_branch {Lnw3}\n{Lgbd}:")
    publish(a, 1, 16)
    a(f"{Lnw3}:")
    flag2_setup(a, zero=True)
    a.stamp(9)
    a("s_branch g1_idle")

def w_setup(a):
    a(f"""s_load_dwordx4 s[84:87], s[0:1], {KA['wg']}
    s_lshr_b32 s6, s2, 3
    s_and_b32 s5, s2, 3
    s_mul_i32 s5, s5, 27
    s_add_u32 s5, s5, s6
    s_lshr_b32 s6, s5, 2
    s_and_b32 s5, s5, 3
    s_and_b32 s89, s2, 4
    s_add_u32 s5, s5, s89
    v_lshrrev_b32 v244, 3, v0
    v_bfe_u32 v245, v0, 4, 2
    v_lshlrev_b32 v245, 1, v245
    v_and_b32 v246, 7, v0
    v_xor_b32 v245, v245, v246
    v_mul_u32_u24 v244, 3456, v244
    v_lshl_add_u32 v7, v245, 4, v244
    s_mul_i32 s88, s3, {8*3456}
    s_lshl_b32 s89, s6, 7
    s_add_u32 s88, s88, s89
    v_add_u32 v7, s88, v7
    s_lshl_b32 s88, s3, 10
    s_add_u32 s88, s88, {WRING}
    s_waitcnt lgkmcnt(0)""")
    srd(a, 80, 84, 640 * 3456); srd(a, 84, 86, 640 * 3456)
def wd_(k):
    out = []
    for m in range(2):
        pre = f"s_add_u32 m0, s88, {(k%NSL)*8192 + m*4096}" + (f"\ns_mov_b32 s89, {k*32*3456}" if not out else "")
        out += [(None, pre), (("W", k), f"buffer_load_dwordx4 v7, s[{80+4*m}:{83+4*m}], s89 offen lds")]
    return out
def w_early(a, lo, hi):
    for k in range(lo, hi):
        for t, x in wd_(k): a(x + ("" if t else "\ns_nop 0"))

def g2_setup(a):
    a(f"""s_lshr_b32 s4, s2, 3
    s_bfe_u32 s44, s2, 0x20001
    s_lshl_b32 s44, s44, 3
    s_lshr_b32 s45, s4, 2
    s_add_u32 s44, s44, s45
    s_and_b32 s45, s2, 1
    s_lshl_b32 s45, s45, 2
    s_and_b32 s9, s4, 3
    s_add_u32 s45, s45, s9
    s_mul_i32 s9, s45, 5120
    s_add_u32 s10, s9, {WS['WD']}
    v_lshlrev_b32 v9, 4, v0
    v_add_u32 v8, 4096, v9""")
    add64(a, 14, 12, "s10"); srd(a, 40, 14, 0)
    a(f"s_sub_u32 s42, {54*40960}, s9\ns_mul_i32 s46, s3, 40960")

SPREAD = int(os.environ.get("SPREAD", "1")); RDEND = int(os.environ.get("RDEND", "28"))
G2POS = int(os.environ.get("G2POS", "0"))
LEVEL = int(os.environ.get("LEVEL", "7"))
XLATE = int(os.environ.get("XLATE", "0"))
OUTT = int(os.environ.get("OUTT", "1"))
CPF = int(os.environ.get("CPF", "99"))
WSTART = int(os.environ.get("WSTART", "4"))
NWDP = int(os.environ.get("NWDP", "12"))
LAZY = int(os.environ.get("LAZY", "0"))
X1LATE = int(os.environ.get("X1LATE", "4"))
WPOL = os.environ.get("WPOL", "")
NWA = int(os.environ.get("NWA", "11"))
NWD0 = int(os.environ.get("NWD0", "22"))
NWD1 = int(os.environ.get("NWD1", "62"))
NW0 = int(os.environ.get("NW0", "11"))
WD_FIRST = int(os.environ.get("WD_FIRST", "4")); WD_LAST = int(os.environ.get("WD_LAST", "20"))
NWD2 = int(os.environ.get("NWD2", "6"))
HK3F = int(os.environ.get("HK3F", "14")); HK3 = int(os.environ.get("HK3", "16"))
def wd_reg(i):
    return ar(4 * i, 4) if i < 64 else vr(232 + 4 * (i - 64), 4)
def wd_load(i):
    st, d = divmod(i, 5)
    return f"s_add_u32 s47, s46, {st*4*40960}\nbuffer_load_dwordx4 {wd_reg(i)}, v{9 if d < 4 else 8}, s[40:43], s47 offen offset:{1024*(d&3)}{SC}"

class VM:
    def __init__(self): self.q = []
    def add(self, tag): self.q.append(tag)
    def wait(self, tags):
        idx = [i for i, t in enumerate(self.q) if t in tags]
        if not idx: return None
        n = len(self.q) - 1 - max(idx)
        self.q = self.q[max(idx) + 1:]
        assert n <= 63
        return f"s_waitcnt vmcnt({n})"

def phase_idle(a, Lg2):
    Lpub = a.label("idle_pub")
    g2_setup(a)
    IW = int(os.environ.get("IW", "62"))
    flag2_check(a)
    def wl(lo, hi):
        for i in range(lo, hi):
            a(wd_load(i))
            if i - lo == 50: a("s_waitcnt vmcnt(30)")
    wl(0, min(IW, NWD1))
    Lrest = a.label("idle_rest")
    PF0, PF1, PF2 = (int(x) for x in os.environ.get("PF", "0,0,0").split(","))
    def pf(lo, hi):
        a(f"""s_lshr_b32 s9, s2, 3
        s_sub_u32 s9, s9, 27
        s_lshl_b32 s9, s9, 2
        s_add_u32 s9, s9, s3
        s_lshl_b32 s9, s9, 12
        s_and_b32 s10, s2, 4
        s_lshl_b32 s10, s10, 9
        s_add_u32 s9, s9, s10
        s_add_u32 s9, s9, {WS['X1S'] + lo*20*4096}
        s_lshl_b32 m0, s3, 11""")
        add64(a, 14, 12, "s9")
        for i in range(lo, hi):
            a(f"global_load_lds_dwordx4 v9, s[14:15]{SC}\nglobal_load_lds_dwordx4 v9, s[14:15] offset:1024{SC}")
            add64(a, 14, 14, 20 * 4096)
    if PF1 > PF0:
        a("s_mul_i32 s9, s3, 40")
        poll(a, 2, "s9", 40, 52)
        a("s_barrier")
        pf(PF0, PF1)
    a(f"""s_sub_u32 s8, s2, 216
    s_mul_i32 s9, s3, 40
    s_add_u32 s9, s9, 1024
    v_add_u32 v55, s9, v0
    v_cmp_gt_u32 vcc, 40, v0
    v_add_u32 v56, {256+242-40}, v0
    s_nop 0
    v_cndmask_b32 v55, v56, v55, vcc""")
    poll(a, 0, None, 50, 52, idxreg=55)
    R, ACC, U = 100, 16, 32
    a(f"""s_barrier
    s_cmp_ge_u32 s8, 32
    s_cbranch_scc1 {Lrest}
    v_lshrrev_b32 v2, 3, v0
    v_lshlrev_b32 v2, 12, v2
    v_and_b32 v3, 7, v0
    v_lshl_add_u32 v2, v3, 4, v2
    s_lshl_b32 s9, s3, 15
    s_lshl_b32 s10, s8, 7
    s_add_u32 s9, s9, s10
    s_add_u32 s9, s9, {WS['X1T']}""")
    add64(a, 14, 12, "s9")
    for i in range(20):
        a(f"global_load_dwordx4 {vr(R+4*i,4)}, v2, s[14:15]{SC}")
        if i < 19: add64(a, 14, 14, 32 * 4096)
    for i in range(20):
        a(f"s_waitcnt vmcnt({19-i})")
        u = (U + 8 * (i & 1)) if i else ACC
        for j in range(4): a(f"v_lshlrev_b32 v{u+2*j}, 16, v{R+4*i+j}\nv_and_b32 v{u+2*j+1}, s69, v{R+4*i+j}")
        for j in range(4):
            if i == 0: a(f"v_pk_mul_f32 {vr(ACC+8+2*j,2)}, {vr(u+2*j,2)}, {vr(u+2*j,2)}")
            else:
                a(f"v_pk_add_f32 {vr(ACC+2*j,2)}, {vr(ACC+2*j,2)}, {vr(u+2*j,2)}")
                a(f"v_pk_fma_f32 {vr(ACC+8+2*j,2)}, {vr(u+2*j,2)}, {vr(u+2*j,2)}, {vr(ACC+8+2*j,2)}")
    a("s_nop 1")
    for b in (ACC, ACC + 8):
        for j in range(4): a(f"v_permlane32_swap_b32 v{b+j}, v{b+4+j}")
    for b in (ACC, ACC + 8):
        for j in range(4): a(f"v_add_f32 v{b+j}, v{b+j}, v{b+4+j}")
    a("s_nop 1")
    for b in (ACC, ACC + 8):
        for j in range(2): a(f"v_permlane16_swap_b32 v{b+j}, v{b+2+j}")
    for b in (ACC, ACC + 8):
        for j in range(2): a(f"v_add_f32 v{b+j}, v{b+j}, v{b+2+j}")
    a("s_nop 1")
    for b in (ACC, ACC + 8):
        for j in range(2): a(f"v_add_f32_dpp v{b+j}, v{b+j}, v{b+j} row_ror:8 row_mask:0xf bank_mask:0xf")
    a(f"""s_lshl_b32 s14, s3, 9
    v_lshrrev_b32 v4, 4, v0
    v_lshlrev_b32 v3, 5, v3
    v_lshl_add_u32 v3, v4, 3, v3
    v_add_u32 v3, s14, v3
    ds_write_b64 v3, {vr(ACC,2)}
    ds_write_b64 v3, {vr(ACC+8,2)} offset:256
    s_waitcnt lgkmcnt(0)
    s_barrier
    s_cmp_lg_u32 s3, 0
    s_cbranch_scc1 {Lpub}
    v_lshlrev_b32 v2, 2, v0""")
    for w in range(4): a(f"ds_read2st64_b32 {vr(16+2*w,2)}, v2 offset0:{2*w} offset1:{2*w+1}")
    a(f"""s_lshl_b32 s14, s8, 9
    s_add_u32 s14, s14, {WS['ST2']}
    v_lshl_add_u32 v2, v0, 3, s14
    s_waitcnt lgkmcnt(0)
    v_pk_add_f32 v[16:17], v[16:17], v[18:19]
    v_pk_add_f32 v[20:21], v[20:21], v[22:23]
    v_pk_add_f32 v[16:17], v[16:17], v[20:21]
    v_mul_f32 v16, {INV640}, v16
    v_mul_f32 v17, {INV640}, v17
    v_fma_f32 v17, -v16, v16, v17
    v_max_f32 v17, 0, v17
    v_add_f32 v17, 0x3727c5ac, v17
    v_rsq_f32 v18, v17
    s_nop 0
    v_mul_f32 v19, -v16, v18
    global_store_dwordx2 v2, v[18:19], s[12:13]{SC}
    {Lpub}:""")
    publish(a, 4, 52)
    a(f"{Lrest}:")
    wl(min(IW, NWD1), NWD1)
    a(f"s_waitcnt vmcnt(0)\ns_branch {Lg2}")

def phase_g1(a):
    Lidle, Lg2 = "g1_idle", a.label("g2")
    assert NWE == NWA == NW0
    g2_setup(a)
    if "1" in REP:
        publish_rep(a, 1, 52, vm=X1LATE)
        publish(a, 2, 58, nosync=True)
    else: publish(a, 2, 52, vm=X1LATE)
    a.stamp(10)
    flag2_check(a)
    for i in range(NWDP): a(wd_load(i))
    a(f"""s_and_b32 s8, s3, 1
    s_lshl_b32 s7, s6, 1
    s_add_u32 s7, s7, s8
    s_lshr_b32 s4, s3, 1""")
    a(f"""v_lshrrev_b32 v2, 4, v0
    v_and_b32 v3, 15, v0
    v_lshlrev_b32 v4, 1, v2
    v_xor_b32 v4, v4, v3
    v_lshlrev_b32 v2, 12, v2
    s_lshl_b32 s9, s3, 15
    s_lshl_b32 s10, s5, 9
    s_add_u32 s9, s9, s10
    v_add_u32 v2, s9, v2
    v_lshl_add_u32 v5, v4, 4, v2
    v_xor_b32 v4, 8, v4
    v_lshl_add_u32 v6, v4, 4, v2
    v_add_u32 v6, {4*4096}, v6
    s_lshl_b32 s26, s3, 11
    s_lshl_b32 s9, s4, 13""")
    ACC, XF, WF, TA, TW = 128, 64, 32, 10, 18
    xtile_tr_addrs(a, TA, 9)
    a(f"""v_lshrrev_b32 v2, 2, v0
    v_bfe_u32 v3, v0, 3, 2
    v_and_b32 v4, 3, v0
    v_lshlrev_b32 v2, 7, v2
    v_lshl_add_u32 v2, v4, 3, v2
    v_add_u32 v2, {WRING}, v2
    s_lshl_b32 s9, s8, 1
    v_xor_b32 v3, s9, v3
    v_lshl_add_u32 v{TW}, v3, 5, v2
    v_xor_b32 v3, 1, v3
    v_lshl_add_u32 v{TW+1}, v3, 5, v2
    v_add_u32 v28, 0x10000, v{TW}
    v_add_u32 v29, 0x10000, v{TW+1}""")
    add64(a, 14, 12, WS['X1S']); srd(a, 16, 14, 640 * 4096)
    vm = VM()
    def emit(items, nop=False):
        for t, x in items:
            a(x)
            if t: vm.add(t)
            elif nop: a("s_nop 0")
    def xd(k):
        out = []
        for rh in range(2):
            for u in range(2):
                pre = f"s_add_u32 m0, s26, {(k&3)*16384 + rh*(8192-256) + u*1024}" + (f"\ns_mov_b32 s25, {k*0x20000}" if not out else "")
                out += [(None, pre), (("X", k), f"buffer_load_dwordx4 v{5+u}, s[16:19], s25 offen offset:{256*rh}{SC} lds")]
        return out
    def trreads(k):
        x = [(None, f"ds_read_b64_tr_b16 {vr(XF+32*(k&1)+4*m+2*hf,2)}, v{TA+m} offset:{16384*(k&3)+4096*hf}") for m in range(8) for hf in range(2)]
        w = [(None, f"ds_read_b64_tr_b16 {vr(WF+16*(k&1)+4*f+2*hf,2)}, v{(TW if k%NSL < 8 else 28)+(f>>1)} offset:{8192*((k%NSL)&7)+4096*(f&1)+2048*hf}") for f in range(4) for hf in range(2)]
        return w + x + (w if "emu" in EXP else [])
    a(f"""s_lshl_b32 s9, s5, 2
    s_lshl_b32 s10, s4, 1
    s_add_u32 s9, s9, s10
    v_add_u32 v20, s9, v0
    s_mul_i32 s10, s6, 37
    s_lshr_b32 s10, s10, 8
    s_mul_i32 s10, s10, 55
    s_lshl_b32 s11, s6, 3
    s_sub_u32 s10, s11, s10
    s_add_u32 s10, s10, {(512 + 160 - 8 - 1024 - 216) & 0xffffffff}
    v_lshl_add_u32 v21, v0, 2, s10
    v_cmp_gt_u32 vcc, 2, v0
    s_lshl_b32 s9, s9, 9
    s_add_u32 s9, s9, {WS['ST2']}
    v_cndmask_b32 v20, v21, v20, vcc
    v_lshlrev_b32 v20, 7, v20
    v_add_u32 v20, {WS['FL'] + (4*256+216)*128}, v20
    v_add_u32 v21, s9, v9
    v_bfe_u32 v22, v0, 3, 2
    v_mul_u32_u24 v22, {1728*4}, v22
    v_and_b32 v23, 7, v0
    v_lshl_add_u32 v22, v23, 4, v22
    s_lshl_b32 s9, s7, 7
    s_add_u32 s9, s9, {WS['CSB']}
    v_add_u32 v22, s9, v22
    v_mov_b32 v24, s70
    v_mov_b32 v25, s71
    s_lshl_b32 s30, s3, 10
    s_add_u32 s30, s30, {STL}
    s_lshl_b32 s31, s3, 9
    s_add_u32 s31, s31, {CSL}
    v_and_b32 v26, 15, v0
    v_lshl_add_u32 v26, v26, 3, s30
    v_lshrrev_b32 v27, 4, v0
    v_lshl_add_u32 v27, v27, 4, s31
    s_mul_i32 s9, s3, 40""")
    for i in range(NWDP, NWD0): a(wd_load(i))
    a.stamp(11)
    if LAZY:
        a("v_lshrrev_b32 v55, 1, v0\nv_lshlrev_b32 v55, 3, v55\nv_and_or_b32 v55, v0, 1, v55\ns_lshl_b32 s9, s3, 1\nv_add_u32 v55, s9, v55")
        poll(a, 2, None, 2 * LAZY, 52, idxreg=55, rep=1)
        a("v_mov_b32 v30, v54")
    else:
        poll(a, 2, "s9", 40, 52, rep=1 if "1" in REP else None)
        a("s_barrier")
    vm.q = []
    a.stamp(12)
    XE = int(os.environ.get("XE", "3"))
    for j in range(XE): emit(xd(j), True)
    if not LAZY:
        emit(trreads(0)[:8])
        publish(a, 4, 2, nosync=True)
    a(vm.wait([("X", 0)]) + "\ns_barrier")
    if LAZY: emit(trreads(0)); publish(a, 4, 2, nosync=True)
    else: emit(trreads(0)[8:])
    for j in range(XE, 4): emit(xd(j), True)
    a.stamp(13)
    wdi = NWD0; wnext = NW0
    fl = f"s_mov_b64 exec, 0xf\nglobal_load_dwordx2 v[24:25], v20, s[12:13]{SC}\ns_mov_b64 exec, -1"
    STV, CB = 32, 64
    for k in range(20):
        w = vm.wait([("W", k + 1), ("X", k + 1)] + (["S"] if k == 19 else []) + (["G"] if k == HK3 else []) + (["L"] if k == LAZY - 4 else []))
        a("s_waitcnt lgkmcnt(0)")
        if w: a(w)
        if k < 19: a("s_barrier")
        if "g1stamp" in EXP and k % 2 == 0 and k: a.stamp(k // 2)
        mem = []
        fl2 = f"s_mov_b32 exec_hi, 0xff\nglobal_load_dwordx2 v[2:3], v30, s[12:13]{SC}\ns_mov_b64 exec, -1"
        if LAZY and LAZY < 20 and k == LAZY - 6: mem.append(("L", "v_mov_b32 v2, s70\nv_mov_b32 v3, s71\n" + fl2))
        if LAZY and LAZY < 20 and k == LAZY - 4:
            Lok, Lsl = a.label("lz_ok"), a.label("lz_slow")
            a(f"""s_mov_b32 s74, 0x100000
            {Lsl}:
            v_cmp_ne_u64 vcc, s[70:71], v[2:3]
            s_cbranch_vccz {Lok}
            {fl2}
            s_waitcnt vmcnt(0)
            s_sub_u32 s74, s74, 1
            s_cbranch_scc0 {Lsl}
            {Lok}:""")
        if k == HK3:
            Lok, Lsl = a.label("h3_ok"), a.label("h3_slow")
            a(f"""s_mov_b32 s74, 0x100000
            {Lsl}:
            v_cmp_ne_u64 vcc, s[70:71], v[24:25]
            s_cbranch_vccz {Lok}
            {fl}
            s_waitcnt vmcnt(0)
            s_sub_u32 s74, s74, 1
            s_cbranch_scc0 {Lsl}
            {Lok}:""")
            mem += [(None, "s_mov_b32 m0, s30"), ("S", f"global_load_lds_dwordx4 v21, s[12:13]{SC}"),
                    (None, "s_mov_b32 m0, s31"), ("S", f"s_mov_b32 exec_hi, 0\nglobal_load_lds_dwordx4 v22, s[12:13]{SC}\ns_mov_b64 exec, -1")]
        if k == HK3F: mem.append(("G", fl))
        if k == CPF:
            mem += [(None, f"s_getpc_b64 s[14:15]\ns_add_u32 s14, s14, g1_tail - .\ns_addc_u32 s15, s15, 0"), ("P", "global_load_dword v31, v30, s[14:15]")]
        if k == 18: a("g1_tail:")
        if k < 19: rd = trreads(k + 1)
        else:
            rd = [(None, f"ds_read_b64 {vr(STV+2*m,2)}, v26 offset:{128*m}") for m in range(8)]
            rd += [(None, f"ds_read_b128 {vr(CB+16*h+4*mt_,4)}, v27 offset:{128*mt_+64*h}") for h in range(2) for mt_ in range(4)]
        if k + 4 < 20: mem += xd(k + 4)
        if wnext < 20 and k >= WSTART: mem += wd_(wnext); wnext += 1
        if "emu" in EXP and 9 <= k < 19: mem += [(e[0] and ("Z", 0), e[1].replace("s88", "s30")) for e in wd_(0)]
        cnt = lambda: sum(1 for e in mem if e[0] is not None)
        lim = LEVEL if k < 19 else 99
        while wdi < NWD1 and cnt() < lim and k >= WD_FIRST: mem.append((("D", wdi), wd_load(wdi))); wdi += 1
        slots = [[] for _ in range(32)]
        if SPREAD:
            groups = []; pend = []
            for e in mem:
                if e[0] is None: pend.append(e)
                else: groups.append((pend, e)); pend = []
            n = len(groups)
            pos = [1 + (i * 31) // n for i in range(n)] if n else []
            for (pre, e), p in zip(groups, pos):
                slots[p - 1] += pre; slots[p].insert(0, e)
            free = [i for i in range(RDEND) if i not in pos]
            order = free + [p for p in pos if p < RDEND] + free
            for e, p in zip(rd, sorted(order[:len(rd)])): slots[p].insert(1 if p in pos else 0, e)
        else:
            for i, e in enumerate(rd): slots[i].append(e)
            for i, e in enumerate(mem): slots[(32 - len(mem) + i) if len(mem) <= 20 else None].append(e)
        j = 0
        MO = os.environ.get("MORD", "m")
        if MO == "m": order_ = [(m, f) for m in range(8) for f in range(4)]
        elif MO == "ms": order_ = [(m, f if m % 2 == 0 else 3 - f) for m in range(8) for f in range(4)]
        elif MO == "f": order_ = [(m, f) for f in range(4) for m in range(8)]
        else: order_ = [(m if f % 2 == 0 else 7 - m, f) for f in range(4) for m in range(8)]
        for m, f in order_:
            if True:
                d = vr(ACC + 32 * f + 4 * m, 4)
                if "g1nomfma" in EXP: a("s_nop 0")
                else: a(f"v_mfma_f32_16x16x32_bf16 {d}, {vr(WF+16*(k&1)+4*f,4)}, {vr(XF+32*(k&1)+4*m,4)}, {d if k else '0'}")
                if "g1noload" in EXP: slots[j] = [e for e in slots[j] if "buffer_load" not in e[1]]
                if "g1notr" in EXP: slots[j] = [e for e in slots[j] if "_tr_" not in e[1]]
                emit(slots[j]); j += 1
    assert wdi == NWD1
    a.stamp(14)
    a(f"""s_lshl_b32 s9, s5, 1
    s_add_u32 s9, s9, s4
    s_mul_i32 s9, s9, {2*54}
    s_add_u32 s9, s9, s7
    s_lshl_b32 s9, s9, 12
    s_add_u32 s9, s9, {WS['HH']}""")
    add64(a, 14, 12, "s9"); add64(a, 28, 14, 54 * 4096)
    a("s_waitcnt lgkmcnt(0)")
    for m in range(8):
        st_ = vr(STV + 2 * m, 2); o = 96 + 4 * (m & 3)
        for h in range(2):
            G, U = ACC + 64 * h + 4 * m, ACC + 64 * h + 32 + 4 * m
            c = CB + 16 * h; t = 112 + 8 * h
            for p in range(2):
                a(f"v_pk_fma_f32 {vr(t+2*p,2)}, {vr(c+2*p,2)}, {st_}, {vr(c+4+2*p,2)} op_sel:[0,1,0] op_sel_hi:[1,1,1]")
                a(f"v_pk_fma_f32 {vr(t+4+2*p,2)}, {vr(c+8+2*p,2)}, {st_}, {vr(c+12+2*p,2)} op_sel:[0,1,0] op_sel_hi:[1,1,1]")
            for p in range(2):
                a(f"v_pk_fma_f32 {vr(G+2*p,2)}, {vr(G+2*p,2)}, {st_}, {vr(t+2*p,2)} op_sel_hi:[1,0,1]")
                a(f"v_pk_fma_f32 {vr(U+2*p,2)}, {vr(U+2*p,2)}, {st_}, {vr(t+4+2*p,2)} op_sel_hi:[1,0,1]")
            for r in range(4): a(f"v_max_f32 v{G+r}, 0, v{G+r}")
            for p in range(2): a(f"v_pk_mul_f32 {vr(G+2*p,2)}, {vr(G+2*p,2)}, {vr(U+2*p,2)}")
            for p in range(2): a(f"v_cvt_pk_bf16_f32 v{o+2*h+p}, v{G+2*p}, v{G+2*p+1}")
        sb_ = 14 if m < 4 else 28
        a(f"global_store_dwordx4 v9, {vr(o,4)}, s[{sb_}:{sb_+1}] offset:{1024*(m&3)}{SC}")
    a(f"s_branch {Lg2}\n{Lidle}:")
    phase_idle(a, Lg2)
    a(f"{Lg2}:")

def phase_g2(a):
    a.stamp(15)
    n1 = NWD1
    for i in range(n1, n1 + NWD2): a(wd_load(i))
    a(f"s_load_dwordx2 s[30:31], s[0:1], {KA['out']}")
    for sg in range(4):
        a(f"""s_add_u32 s7, s3, {sg}
        s_and_b32 s7, s7, 3
        s_lshl_b32 s8, s7, 10
        v_add_u32 v{10+sg}, s8, v9""")
        if sg: a(f"s_mul_i32 s8, s7, {15*1024}\ns_add_u32 s8, s8, {(sg-1)*5*1024}\nv_add_u32 v{13+sg}, s8, v9")
    a(f"s_mul_i32 s8, s44, {54*4096}\ns_add_u32 s8, s8, {WS['HH']}")
    add64(a, 14, 12, "s8"); srd(a, 16, 14, 54 * 4096)
    ACC, XR, GB, SEL, HB = 152, 20, 40, 60, 64
    NB = 5
    a(f"""v_and_b32 v2, 15, v0
    v_lshrrev_b32 v3, 4, v0
    v_lshlrev_b32 v4, 12, v2
    v_lshl_add_u32 v4, v3, 4, v4
    v_lshlrev_b32 v18, 4, v3
    s_mul_i32 s8, s45, {80*4096}
    s_lshl_b32 s9, s44, 7
    s_add_u32 s8, s8, s9
    s_lshr_b32 s9, s3, 1
    s_lshl_b32 s9, s9, 6
    s_add_u32 s8, s8, s9
    s_add_u32 s8, s8, {WS['X1T']}
    s_add_u32 s14, s12, s8
    s_addc_u32 s15, s13, 0
    s_mul_i32 s8, s45, 320
    s_add_u32 s8, s8, {WS['MOD'] + 5*2560}
    s_add_u32 s26, s12, s8
    s_addc_u32 s27, s13, 0
    s_and_b32 s8, s3, 1
    s_lshl_b32 s8, s8, 4
    v_lshlrev_b32 v5, 3, v3
    v_sub_u32 v5, v2, v5
    v_add_u32 v5, s8, v5
    v_mov_b32 v6, 0x3f80
    v_mov_b32 v7, 0x3f800000""")
    for p in range(4):
        a(f"""v_cmp_eq_u32 vcc, {2*p}, v5
        v_cmp_eq_u32 s[28:29], {2*p+1}, v5
        s_nop 1
        v_cndmask_b32 v{SEL+p}, 0, v6, vcc
        v_cndmask_b32 v{SEL+p}, v{SEL+p}, v7, s[28:29]""")
    if "c" in REP: a("s_lshr_b32 s8, s3, 1\nv_lshl_add_u32 v147, v0, 1, s8\nv_min_u32 v147, 26, v147")
    else: a("v_mov_b32 v147, v0")
    a(f"""s_bfe_u32 s8, s44, 0x20002
    v_lshl_add_u32 v147, v147, 2, s8
    v_mul_u32_u24 v146, 2428, v147
    v_lshrrev_b32 v146, 16, v146
    v_lshlrev_b32 v147, 3, v147
    v_mul_u32_u24 v145, {8*27-1}, v146
    v_sub_u32 v147, v147, v145
    s_lshr_b32 s8, s44, 4
    s_lshl_b32 s8, s8, 2
    v_add_u32 v147, s8, v147
    s_lshl_b32 s24, s3, 12""")
    if "c" in REP: publish_wave(a, 2, 136, vm=NWD2); a("s_barrier")
    elif "2" in REP: publish_rep(a, 2, 136, vm=NWD2)
    else: publish(a, 3, 148, vm=NWD2)
    a.stamp(16)
    for i in range(n1 + NWD2, 70): a(wd_load(i))
    a(f"""v_lshrrev_b32 v4, 2, v0
    v_lshlrev_b32 v4, 12, v4
    v_bfe_u32 v19, v0, 4, 2
    v_xor_b32 v19, v19, v0
    v_and_b32 v19, 3, v19
    v_lshl_add_u32 v4, v19, 4, v4
    s_mul_i32 s9, s3, 5120
    s_add_u32 s9, s9, {W3L}
    v_bfe_u32 v19, v0, 2, 2
    v_xor_b32 v19, v19, v3
    v_lshl_add_u32 v19, v2, 2, v19
    v_lshl_add_u32 v19, v19, 4, s9""")
    late = [(99, f"s_add_u32 m0, s9, {1024*d}\ns_nop 0\nglobal_load_lds_dwordx4 v4, s[14:15]{SC}\ns_add_u32 s14, s14, 0x10000\ns_addc_u32 s15, s15, 0") for d in range(5)]
    late += [(99, f"s_lshl_b32 s8, s3, 9\ns_add_u32 m0, s8, {CSL}\nv_add_u32 v18, m0, v18\ns_mov_b64 exec, 0xfffff\nglobal_load_lds_dwordx4 v9, s[26:27]{SC}\ns_mov_b64 exec, -1")]
    if not XLATE:
        for e in late: a(e[1])
        late = []
    OA, OB = (148, 149, 150), (151, 1, 4)
    a(f"""s_mul_i32 s8, s3, 2816
    s_add_u32 s8, s8, 65536
    v_mul_u32_u24 v5, 176, v2
    v_lshl_add_u32 v5, v3, 3, v5
    v_add_u32 v5, s8, v5""")
    for i in range(3):
        a(f"""v_add_u32 v6, {64*i}, v0
        v_min_u32 v6, 159, v6
        v_mul_u32_u24 v7, 6554, v6
        v_lshrrev_b32 v7, 16, v7
        v_lshlrev_b32 v6, 4, v6
        v_lshl_add_u32 v{OA[i]}, v7, 4, v6
        v_add_u32 v{OA[i]}, s8, v{OA[i]}
        v_mul_u32_u24 v7, {1280-160}, v7
        v_add_u32 v{OB[i]}, v6, v7""")
    a(f"""s_mul_i32 s8, s3, {15*1024}
    v_add_u32 v17, s8, v9
    s_lshl_b32 s8, s44, 2
    s_add_u32 s8, s8, s3
    s_mul_i32 s8, s8, {16*1280}
    s_mul_i32 s9, s45, 160
    s_add_u32 s8, s8, s9
    s_waitcnt lgkmcnt(0)""")
    add64(a, 30, 30, "s8")
    if "c" in REP:
        a("s_and_b32 s8, s44, 2\ns_and_b32 s9, s3, 1\ns_add_u32 s8, s8, s9")
        poll(a, 3, None, 14, 144, idxreg=147, rep=2, sub="s8")
    elif "3" in POLL1:
        L1 = a.label("p1")
        a(f"s_waitcnt vmcnt(0)\ns_cmp_lg_u32 s3, 3\ns_cbranch_scc1 {L1}")
        poll(a, 3, None, 27, 144, idxreg=147, rep=2 if "2" in REP else None)
        a(f"{L1}:\ns_barrier")
    else: poll(a, 3, None, 27, 144, idxreg=147, rep=2 if "2" in REP else None)
    a.stamp(17)
    if "opf" in EXP:
        a(f"""s_lshl_b32 s8, s44, 2
        s_add_u32 s8, s8, s3
        s_mul_i32 s8, s8, {16*1280}
        s_mul_i32 s9, s45, 160
        s_add_u32 s8, s8, s9
        v_mul_u32_u24 v19, 1280, v2
        v_mul_u32_u24 v145, 52, v3
        v_add3_u32 v19, v19, v145, s8
        s_waitcnt lgkmcnt(0)
        global_load_dword v145, v19, s[30:31]""")
    vm = VM()
    def hl(st):
        return [(st, (f"s_add_u32 s25, s24, {st*16384}\n" if sg == 0 else "") + f"buffer_load_dwordx4 {vr(HB+16*(st%NB)+4*sg,4)}, v{10+sg}, s[16:19], s25 offen{SC}") for sg in range(4)]
    rest = []
    def emit(e):
        if "g2noload" in EXP and "s[16:19]" in e[1] and e[0] >= 4: return
        if "g2norest" in EXP and "s[16:19]" not in e[1]: return
        a(e[1]); vm.add(e[0])
    for st in range(NB - 1):
        for e in hl(st): emit(e)
    for d in range(5): a(f"ds_read_b128 {vr(128+4*d,4)}, v19 offset:{1024*d}")
    for d in range(5): a(f"ds_read_b128 {vr(GB+4*d,4)}, v18 offset:{64*d}")
    a("s_waitcnt lgkmcnt(5)")
    for d in range(5): a(f"v_mfma_f32_16x16x32_bf16 {vr(20+4*d,4)}, {vr(128+4*d,4)}, {vr(SEL,4)}, 0")
    Lskip, Ljoin = a.label("g2_skip"), a.label("g2_join")
    a.retry = [f"{Lskip}:\n" + "\n".join(f"ds_write_b128 v{13+sg}, {vr(ACC+20*sg+4*d,4)} offset:{1024*d}" for sg in range(1, 4) for d in range(5)) + f"\ns_branch {Ljoin}"]
    for st in range(14):
        if st == 13: a(f"s_cmp_ge_u32 s3, 2\ns_cbranch_scc1 {Lskip}")
        a(vm.wait(list(range(st + 1))) or "s_nop 0")
        if "g2stamp" in EXP and st in (0, 1, 2, 4, 6, 8, 10, 12): a.stamp({0: 1, 1: 2, 2: 3, 4: 4, 6: 5, 8: 6, 10: 7, 12: 8}[st])
        ex = hl(st + NB - 1) if st + NB - 1 < 14 else []
        if st >= 10: ex += late[:4]; late = late[4:]
        for sg in ((0, 1, 2, 3) if st < 13 else (1, 2, 3, 0)):
            for d in range(5):
                t = vr(ACC + 20 * sg + 4 * d, 4)
                if "g2nomfma" not in EXP: a(f"v_mfma_f32_16x16x32_bf16 {t}, {wd_reg(5*st+d)}, {vr(HB+16*(st%NB)+4*sg,4)}, {t if st else '0'}")
                if ex and (d == G2POS or not SPREAD): emit(ex.pop(0))
                if st == 13 and sg in (3, 0): a(f"ds_write_b128 v{14 if sg == 3 else 15}, {vr(ACC+20*(1 if sg == 3 else 2)+4*d,4)} offset:{1024*d}")
        assert not ex
    assert not rest
    a.stamp(18)
    XD = 20
    for d in range(5): a(f"ds_write_b128 v16, {vr(ACC+60+4*d,4)} offset:{1024*d}")
    a(f"{Ljoin}:\ns_waitcnt lgkmcnt(0)")
    if "fstamp" in EXP: a.stamp(1)
    a("s_barrier")
    if "fstamp" in EXP: a.stamp(2)
    for d in range(5):
        for sg in range(1, 4): a(f"ds_read_b128 {vr(ACC+20*sg+4*d,4)}, v17 offset:{1024*(5*(sg-1)+d)}")
    for d in range(5):
        a(f"s_waitcnt lgkmcnt({12-3*d + (d if OUTT else 0)})")
        t = ACC + 4 * d
        for p in range(2):
            a(f"v_pk_add_f32 {vr(t+2*p,2)}, {vr(t+2*p,2)}, {vr(t+20+2*p,2)}")
            a(f"v_pk_add_f32 {vr(t+40+2*p,2)}, {vr(t+40+2*p,2)}, {vr(t+60+2*p,2)}")
        for p in range(2): a(f"v_pk_add_f32 {vr(t+2*p,2)}, {vr(t+2*p,2)}, {vr(t+40+2*p,2)}")
        for p in range(2): a(f"v_pk_fma_f32 {vr(t+2*p,2)}, {vr(t+2*p,2)}, {vr(GB+4*d+2*p,2)}, {vr(XD+4*d+2*p,2)}")
        a(f"v_cvt_pk_bf16_f32 v{t}, v{t}, v{t+1}\nv_cvt_pk_bf16_f32 v{t+1}, v{t+2}, v{t+3}")
        if OUTT: a(f"ds_write_b64 v5, {vr(t,2)} offset:{32*d}")
        else: a(f"global_store_dwordx2 v4, {vr(t,2)}, s[30:31] offset:{32*d}")
    if OUTT:
        for i in range(3): a(f"ds_read_b128 {vr(100+4*i,4)}, v{OA[i]}")
        for i in range(3):
            a(f"s_waitcnt lgkmcnt({2-i})")
            if i == 2: a("s_mov_b32 exec_hi, 0")
            a(f"global_store_dwordx4 v{OB[i]}, {vr(100+4*i,4)}, s[30:31]")

DOC = """; ---------------------------------------------------------------------------------------------
;  wg >= 160 : modulation GEMV, LN1 statistics, W_down fragment layout, column sums for folded LN2
; ---------------------------------------------------------------------------------------------
"""
def build():
    a = A()
    hdr = open("cdna_kernels/" + NAME + ".s.ref").read().split("; Override launch")[0]
    a(f'.amdgcn_target "amdgcn-amd-amdhsa--gfx950"\n.text\n.globl {KNAME}\n.p2align 8\n.type {KNAME},@function\n{KNAME}:')
    Lend, Laux, Lg1, Lnt = a.label("end"), a.label("aux"), a.label("g1"), a.label("notag")
    if DIAG:
        for i in range(NSTAMP): a(f"s_mov_b32 s{48+i}, 0")
    a.stamp(0)
    a(f"""s_cmp_ge_u32 s2, 256
    s_cbranch_scc1 {Lend}
    s_load_dwordx2 s[12:13], s[0:1], {KA['ws']}
    s_load_dwordx2 s[72:73], s[0:1], {KA['dbg']}
    v_lshrrev_b32 v1, 6, v0
    v_and_b32 v0, 63, v0
    v_readfirstlane_b32 s3, v1
    s_mov_b32 s69, 0xffff0000
    s_cmp_lg_u32 s2, 255
    s_cbranch_scc1 {Lnt}
    s_cmp_lg_u32 s3, 0
    s_cbranch_scc1 {Lnt}
    s_memrealtime s[70:71]
    v_mov_b32 v4, 0
    s_waitcnt lgkmcnt(0)
    s_or_b32 s70, s70, 1
    v_mov_b32 v2, s70
    v_mov_b32 v3, s71
    s_mov_b64 exec, 1
    global_store_dwordx2 v4, v[2:3], s[72:73]{SC}
    s_mov_b64 exec, -1
    {Lnt}:""")
    if "tlb" in EXP:
        TSH = int(os.environ.get("TSH", "20"))
        Ltl = a.label("notouch")
        npg = (_off >> TSH) + 1
        assert npg <= 64
        a(f"""s_cmp_lg_u32 s3, 1
        s_cbranch_scc1 {Ltl}
        s_load_dwordx4 s[4:7], s[0:1], {KA['wg']}
        s_load_dwordx2 s[8:9], s[0:1], {KA['wd']}
        s_load_dwordx2 s[10:11], s[0:1], {KA['out']}
        v_min_u32 v2, {npg-1}, v0
        v_lshlrev_b32 v2, {TSH}, v2
        v_min_u32 v3, 0x200000, v2
        s_waitcnt lgkmcnt(0)
        global_load_dword v251, v2, s[12:13]{NT}
        global_load_dword v251, v3, s[4:5]{NT}
        global_load_dword v251, v3, s[6:7]{NT}
        global_load_dword v251, v3, s[8:9]{NT}
        global_load_dword v251, v3, s[10:11]{NT}
        {Ltl}:""")
    a(f"""s_cmp_ge_u32 s2, 160
    s_cbranch_scc1 {Laux}""")
    phase_conv(a, Lg1)
    a(f"{Laux}:")
    phase_aux(a, Lg1)
    a(f"{Lg1}:")
    phase_g1(a)
    phase_g2(a)
    if DIAG:
        if "fstamp" in EXP: a.stamp(3)
        a("s_waitcnt vmcnt(0)")
        a.stamp(19)
        AMP = os.environ.get("AMP", "")
        if AMP:
            i, wgsel = (int(x) for x in AMP.split(":"))
            Lsp, Lsk = a.label("spin"), a.label("nospin")
            a(f"""s_cmp_lg_u32 s2, {wgsel}
            s_cbranch_scc1 {Lsk}
            s_sub_u32 s4, s{48+i}, s48
            s_lshl_b32 s4, s4, 3
            {Lsp}:
            s_memrealtime s[76:77]
            s_waitcnt lgkmcnt(0)
            s_sub_u32 s5, s76, s67
            s_cmp_lt_u32 s5, s4
            s_cbranch_scc1 {Lsp}
            {Lsk}:""")
        a(f"""s_lshl_b32 s4, s2, 2
        s_add_u32 s4, s4, s3
        s_lshl_b32 s4, s4, 7
        s_add_u32 s4, s4, {TS_OFF}
        v_mov_b32 v0, s4
        s_mov_b64 exec, 1""")
        for i in range(NSTAMP): a(f"v_mov_b32 v2, s{48+i}\nglobal_store_dword v0, v2, s[12:13] offset:{4*i}\ns_nop 1")
    a(f"{Lend}:\ns_endpgm")
    for r in a.retry: a(r)
    a("code_end:")
    kd = f""".section .rodata,"a"
.p2align 6
.amdhsa_kernel {KNAME}
  .amdhsa_next_free_vgpr 512
  .amdhsa_next_free_sgpr 102
  .amdhsa_accum_offset 256
  .amdhsa_group_segment_fixed_size 0
  .amdhsa_kernarg_size 120
  .amdhsa_user_sgpr_count 2
  .amdhsa_user_sgpr_kernarg_segment_ptr 1
  .amdhsa_system_sgpr_workgroup_id_x 1
.end_amdhsa_kernel
"""
    return hdr + f"; @launch grid=(256,1,1) block=(256,1,1) lds={LDS_BYTES}\n" + DOC + a.text() + kd

if __name__ == "__main__":
    open(sys.argv[1] if len(sys.argv) > 1 else "p.s", "w").write(build())
```
